```python
import torch

def _softmax(x, axis=-1):
    return torch.softmax(x, dim=axis)
def _gelu(x):
    return torch.nn.functional.gelu(x, approximate="tanh")
def _silu(x):
    return torch.nn.functional.silu(x)
def _sigmoid(x):
    return torch.sigmoid(x)
def _layernorm(x, axis=-1, eps=1e-5):
    m = x.mean(dim=axis, keepdim=True)
    v = x.var(dim=axis, keepdim=True, unbiased=False)
    return (x - m) / torch.sqrt(v + eps)
def _scatter_add(tgt, idx, src, axis=0):
    return tgt.clone().index_add_(axis, idx, src)
def _segment_sum(src, seg, n):
    out = torch.zeros((n,) + src.shape[1:], dtype=src.dtype)
    return out.index_add_(0, seg, src)
def _pad(x, pw):
    flat = tuple(v for pair in reversed(pw) for v in pair)
    return torch.nn.functional.pad(x, flat)

kernel_name = 'recurrent_scan__softmax_full_mha__dense_activation_relu__prompt'

def setup_inputs():

    _w = (lambda a: (lambda t: t.to(torch.bfloat16) if t.is_floating_point() else t)(torch.as_tensor(a)))
    def _A_setup():
        B, S, D = 1, 2048, 512
        return {
            "x": _w((lambda *s: torch.randn(*s, dtype=torch.bfloat16) * 0.05)(B, S, D)),
            "wqkv": _w((lambda *s: torch.randn(*s, dtype=torch.bfloat16) * 0.05)(D, 3 * D)),
            "wo": _w((lambda *s: torch.randn(*s, dtype=torch.bfloat16) * 0.05)(D, D)),
        }
    _A_in = _A_setup()

    def _B_setup():
        B, S, D, Dff = 1, 2048, 512, 1376
        return {
            "x": _w((lambda *s: torch.randn(*s, dtype=torch.bfloat16) * 0.05)(B, S, D)),
            "w1": _w((lambda *s: torch.randn(*s, dtype=torch.bfloat16) * 0.05)(D, Dff)),
            "w2": _w((lambda *s: torch.randn(*s, dtype=torch.bfloat16) * 0.05)(Dff, D)),
        }
    _B_in = _B_setup()

    return {
        "A_x": _A_in["x"],
        "A_wqkv": _A_in["wqkv"],
        "A_wo": _A_in["wo"],
        "B_x": _B_in["x"],
        "B_w1": _B_in["w1"],
        "B_w2": _B_in["w2"],
    }

def reference(A_x, A_wqkv, A_wo, B_x, B_w1, B_w2):
    def _A_ref(x, wqkv, wo):
        B, S, D = x.shape
        H = 32; Dh = D // H
        qkv = (lambda x, *d: x.permute(*d))((x @ wqkv).reshape(B, S, 3, H, Dh), 2, 0, 3, 1, 4)
        q, k, v = qkv[0], qkv[1], qkv[2]
        scale = Dh ** -0.5
        scores = torch.einsum("bhqd,bhkd->bhqk", q, k) * scale
        p = _softmax(scores, axis=-1)
        o = torch.einsum("bhqk,bhkd->bhqd", p, v)
        return (lambda x, *d: x.permute(*d))(o, 0, 2, 1, 3).reshape(B, S, D) @ wo

    def _B_ref(x, w1, w2):
        h = torch.einsum("bsd,df->bsf", x, w1)
        zero = torch.zeros_like(h)
        h = torch.maximum(h, zero)
        return torch.einsum("bsf,fd->bsd", h, w2)

    x = A_x
    xn = _layernorm(x, axis=-1)
    s = _A_ref(xn, A_wqkv, A_wo)
    g = _silu(_B_ref(xn, B_w1, B_w2))
    return x + s * g
```

```python
class Asm:
    def __init__(self):
        self.lines = []
        self.vm = []
        self.uid = 0

    def __call__(self, s=""):
        for ln in s.split("\n"):
            ln = ln.strip()
            if not ln:
                continue
            if ln.endswith(":") or ln.startswith("."):
                self.lines.append(ln)
            else:
                self.lines.append("    " + ln)

    def c(self, s):
        self.lines.append("    ; " + s)

    def label(self, base):
        self.uid += 1
        return "L_%s_%d" % (base, self.uid)

    def vmem(self, s, tag):
        self(s)
        self.vm.append(tag)

    def wait_vm(self, *tags, extra=""):
        last = -1
        for i, t in enumerate(self.vm):
            if t in tags:
                last = i
        if last < 0:
            if extra:
                self("s_waitcnt " + extra)
            return
        n = len(self.vm) - 1 - last
        assert n <= 63
        self("s_waitcnt vmcnt(%d) %s" % (n, extra))
        self.vm = self.vm[last + 1:]

    def text(self):
        return "\n".join(self.lines) + "\n"


def vr(b, n=1):
    return "v%d" % b if n == 1 else "v[%d:%d]" % (b, b + n - 1)


def sr(b, n=1):
    return "s%d" % b if n == 1 else "s[%d:%d]" % (b, b + n - 1)


def mfma(d, a, b, c):
    cs = c if isinstance(c, str) else vr(c, 16)
    return "v_mfma_f32_32x32x16_bf16 %s, %s, %s, %s" % (vr(d, 16), vr(a, 4), vr(b, 4), cs)


def srd(A, d, base, nbytes):
    A("s_mov_b32 s%d, s%d" % (d, base))
    A("s_mov_b32 s%d, s%d" % (d + 1, base + 1))
    A("s_mov_b32 s%d, 0x%x" % (d + 2, nbytes))
    A("s_mov_b32 s%d, 0x00020000" % (d + 3))


def kernel_begin(A, name):
    A.lines.append(".globl %s" % name)
    A.lines.append(".p2align 8")
    A.lines.append(".type %s,@function" % name)
    A.lines.append("%s:" % name)
    A.vm = []


def descriptor(name, nvgpr, nsgpr=96):
    acc = (nvgpr + 3) // 4 * 4
    return """.p2align 6
.amdhsa_kernel %s
  .amdhsa_next_free_vgpr %d
  .amdhsa_next_free_sgpr %d
  .amdhsa_accum_offset %d
  .amdhsa_group_segment_fixed_size 0
  .amdhsa_kernarg_size 72
  .amdhsa_user_sgpr_count 2
  .amdhsa_user_sgpr_kernarg_segment_ptr 1
  .amdhsa_system_sgpr_workgroup_id_x 1
.end_amdhsa_kernel
""" % (name, nvgpr, nsgpr, min(acc, 256))
```

```python
from asmlib import *
from layout import *

Q = 4; NEGM = 16; S = [32, 48]; P = 64; O = 72; KF = [88, 92]; VF = [[96, 100], [104, 108]]

def att_tile(A, i):
    p = i & 1
    A("s_waitcnt lgkmcnt(0)")
    A("s_mov_b64 exec, s[40:41]")
    A("ds_read_b128 %s, v3 offset:%d" % (vr(VF[p ^ 1][0], 4), (i + 1) * 2048))
    A("ds_read_b128 %s, v3 offset:%d" % (vr(VF[p ^ 1][1], 4), (i + 1) * 2048 + 512))
    A("s_mov_b64 exec, -1")
    A("v_exp_f32 v%d, v%d" % (S[p], S[p]))
    A(mfma(S[p ^ 1], KF[p ^ 1], Q, NEGM))
    A("ds_read_b128 %s, v2 offset:%d" % (vr(KF[p], 4), (i + 2) * 2048))
    s = S[p]
    A("v_exp_f32 v%d, v%d" % (s + 1, s + 1))
    A("v_exp_f32 v%d, v%d" % (s + 2, s + 2))
    A("v_cvt_pk_bf16_f32 v%d, v%d, v%d" % (P, s, s + 1))
    A("v_exp_f32 v%d, v%d" % (s + 3, s + 3))
    A("v_exp_f32 v%d, v%d" % (s + 4, s + 4))
    A("v_cvt_pk_bf16_f32 v%d, v%d, v%d" % (P + 1, s + 2, s + 3))
    A("v_exp_f32 v%d, v%d" % (s + 5, s + 5))
    A("v_exp_f32 v%d, v%d" % (s + 6, s + 6))
    A("v_cvt_pk_bf16_f32 v%d, v%d, v%d" % (P + 2, s + 4, s + 5))
    A("v_exp_f32 v%d, v%d" % (s + 7, s + 7))
    A("v_exp_f32 v%d, v%d" % (s + 8, s + 8))
    A("v_cvt_pk_bf16_f32 v%d, v%d, v%d" % (P + 3, s + 6, s + 7))
    A("v_exp_f32 v%d, v%d" % (s + 9, s + 9))
    A("v_exp_f32 v%d, v%d" % (s + 10, s + 10))
    A(mfma(O, VF[p][0], P, O))
    A("v_cvt_pk_bf16_f32 v%d, v%d, v%d" % (P + 4, s + 8, s + 9))
    A("v_exp_f32 v%d, v%d" % (s + 11, s + 11))
    A("v_exp_f32 v%d, v%d" % (s + 12, s + 12))
    A("v_cvt_pk_bf16_f32 v%d, v%d, v%d" % (P + 5, s + 10, s + 11))
    A("v_exp_f32 v%d, v%d" % (s + 13, s + 13))
    A("v_exp_f32 v%d, v%d" % (s + 14, s + 14))
    A("v_cvt_pk_bf16_f32 v%d, v%d, v%d" % (P + 6, s + 12, s + 13))
    A("v_exp_f32 v%d, v%d" % (s + 15, s + 15))
    A("s_nop 0")
    A("v_cvt_pk_bf16_f32 v%d, v%d, v%d" % (P + 7, s + 14, s + 15))
    A("s_nop 0")
    A("s_nop 0")
    A(mfma(O, VF[p][1], P + 4, O))


def rowmax16(A, dst, s, init=None):
    if init is None:
        A("v_max3_f32 v%d, v%d, v%d, v%d" % (dst, s, s + 1, s + 2))
        rest = list(range(3, 16))
    else:
        A("v_max3_f32 v%d, v%d, v%d, v%d" % (dst, s, s + 1, init))
        rest = list(range(2, 16))
    while len(rest) >= 2:
        A("v_max3_f32 v%d, v%d, v%d, v%d" % (dst, dst, s + rest[0], s + rest[1]))
        rest = rest[2:]
    if rest:
        A("v_max_f32 v%d, v%d, v%d" % (dst, dst, s + rest[0]))


def set_negm(A, m):
    A("v_mov_b32 v9, v%d" % m)
    A("s_nop 1")
    A("v_permlane32_swap_b32 v%d, v9" % m)
    A("s_nop 1")
    A("v_max_f32 v%d, v%d, v9" % (m, m))
    A("v_sub_f32 v%d, 0, v%d" % (NEGM, m))
    for r in range(1, 16):
        A("v_mov_b32 v%d, v%d" % (NEGM + r, NEGM))


def gen_att(A, name="att_kernel"):
    kernel_begin(A, name)
    Lend = A.label("attend")
    A("s_cmp_ge_u32 s2, 256")
    A("s_cbranch_scc1 %s" % Lend)
    A("s_load_dwordx2 s[8:9], s[0:1], 64")
    A("v_and_b32 v1, 63, v0")
    A("v_lshrrev_b32 v8, 6, v0")
    A("s_and_b32 s25, s2, 7")
    A("v_readfirstlane_b32 s24, v8")
    A("s_lshr_b32 s26, s2, 3")
    A("s_lshl_b32 s27, s25, 2")
    A("s_and_b32 s28, s26, 3")
    A("s_add_u32 s27, s27, s28")
    A("s_lshr_b32 s28, s26, 2")
    A("s_lshl_b32 s28, s28, 3")
    A("s_add_u32 s28, s28, s24")
    A("v_lshlrev_b32 v10, 4, v1")
    A("s_waitcnt lgkmcnt(0)")
    srd(A, 20, 8, WS_BYTES)
    A("s_lshl_b32 s30, s27, 16")
    A("s_lshl_b32 s31, s28, 10")
    A("s_add_u32 s30, s30, s31")
    A("s_add_u32 s30, s30, 0x%x" % QF_OFF)
    A.vmem("buffer_load_dwordx4 %s, v10, s[20:23], s30 offen" % vr(Q, 4), "q")
    A("s_lshl_b32 s31, s27, 17")
    A("s_lshl_b32 s32, s24, 10")
    A("s_add_u32 s31, s31, s32")
    A("s_add_u32 s31, s31, 0x%x" % KV_OFF)
    for i in range(16):
        A("s_add_u32 m0, s32, %d" % (i * 8192))
        A("s_add_u32 s33, s31, %d" % (i * 8192))
        A.vmem("buffer_load_dwordx4 v10, s[20:23], s33 offen lds", "kv%d" % i)
    A("s_mov_b32 s40, 0x0000ffff")
    A("s_mov_b32 s41, 0x0000ffff")
    A("v_lshrrev_b32 v8, 5, v1")
    A("v_lshlrev_b32 v11, 8, v8")
    A("v_and_b32 v8, 15, v1")
    A("v_lshl_add_u32 v11, v8, 4, v11")
    A("v_add_u32 v11, 1024, v11")
    for r in range(96, 112):
        A("v_mov_b32 v%d, 0x3f803f80" % r)
    A("s_mov_b32 s42, 2")
    A("s_mov_b32 s43, 0")
    A.wait_vm("q", "kv0", "kv1")
    A("s_barrier")
    A("ds_read_b128 %s, v10" % vr(KF[0], 4))
    A("s_waitcnt lgkmcnt(0)")
    A(mfma(S[0], KF[0], Q, "0"))
    A("s_nop 15")
    rowmax16(A, 8, S[0])
    set_negm(A, 8)
    Lstart = A.label("attstart")
    Lloop = A.label("attloop")
    Lnb = A.label("attnb")
    Lb2 = A.label("attb2")
    Lb3 = A.label("attb3")
    A("%s:" % Lstart)
    A("v_mov_b32 v2, v10")
    A("v_mov_b32 v3, v11")
    A("ds_read_b128 %s, v2" % vr(KF[0], 4))
    A("ds_read_b128 %s, v2 offset:2048" % vr(KF[1], 4))
    A("s_mov_b64 exec, s[40:41]")
    A("ds_read_b128 %s, v3" % vr(VF[0][0], 4))
    A("ds_read_b128 %s, v3 offset:512" % vr(VF[0][1], 4))
    A("s_mov_b64 exec, -1")
    for r in range(16):
        A("v_mov_b32 v%d, 0" % (O + r))
    A("s_waitcnt lgkmcnt(3)")
    A(mfma(S[0], KF[0], Q, NEGM))
    A("s_mov_b32 s44, 16")
    A("s_nop 15")
    A(".p2align 6")
    A("%s:" % Lloop)
    for i in range(4):
        att_tile(A, i)
    A("v_add_u32 v2, 0x2000, v2")
    A("v_add_u32 v3, 0x2000, v3")
    A("s_sub_u32 s44, s44, 1")
    A("s_cmp_eq_u32 s42, 0")
    A("s_cbranch_scc0 %s" % Lb2)
    A("%s:" % Lnb)
    A("s_cmp_lg_u32 s44, 0")
    A("s_cbranch_scc1 %s" % Lloop)
    Lok = A.label("attok")
    A("s_nop 15")
    A("v_mul_f32 v8, 0, v%d" % O)
    for r in range(1, 8):
        A("v_fma_f32 v8, v%d, 0, v8" % (O + r))
    A("s_mov_b32 s45, 0x5f800000")
    A("v_cmp_u_f32 vcc, v8, v8")
    A("v_cmp_ngt_f32 s[46:47], s45, v%d" % (O + 8))
    A("s_nop 1")
    A("s_or_b64 s[46:47], s[46:47], vcc")
    A("s_cbranch_scc0 %s" % Lok)
    A("s_cmp_lg_u32 s43, 0")
    A("s_cbranch_scc1 %s" % Lok)
    Lfb = A.label("attfb")
    A("s_mov_b32 s43, 1")
    A("s_mov_b32 s44, 64")
    A("v_mov_b32 v2, v10")
    A("v_mov_b32 v8, 0xff800000")
    A("%s:" % Lfb)
    A("ds_read_b128 %s, v2" % vr(KF[0], 4))
    A("v_add_u32 v2, 0x800, v2")
    A("s_waitcnt lgkmcnt(0)")
    A(mfma(S[0], KF[0], Q, "0"))
    A("s_nop 15")
    rowmax16(A, 8, S[0], init=8)
    A("s_sub_u32 s44, s44, 1")
    A("s_cmp_lg_u32 s44, 0")
    A("s_cbranch_scc1 %s" % Lfb)
    set_negm(A, 8)
    A("s_branch %s" % Lstart)
    A("%s:" % Lok)
    A("v_rcp_f32 v8, v%d" % (O + 8))
    A("s_lshl_b32 s30, s28, 15")
    A("s_lshl_b32 s31, s27, 10")
    A("s_add_u32 s30, s30, s31")
    A("s_add_u32 s30, s30, 0x%x" % OF_OFF)
    for r in range(8):
        A("v_mul_f32 v%d, v%d, v8" % (O + r, O + r))
    for i in range(4):
        A("v_cvt_pk_bf16_f32 v%d, v%d, v%d" % (P + i, O + 2 * i, O + 2 * i + 1))
    A("buffer_store_dwordx4 %s, v10, s[20:23], s30 offen" % vr(P, 4))
    A("%s:" % Lend)
    A("s_endpgm")
    A("%s:" % Lb2)
    A("s_cmp_eq_u32 s42, 2")
    A("s_cbranch_scc0 %s" % Lb3)
    A("s_waitcnt vmcnt(13)")
    A("s_barrier")
    A("s_mov_b32 s42, 1")
    A("s_branch %s" % Lnb)
    A("%s:" % Lb3)
    A("s_waitcnt vmcnt(0)")
    A("s_barrier")
    A("s_mov_b32 s42, 0")
    A("s_branch %s" % Lnb)
    return 112
```

```python
from asmlib import *
from layout import *

WF = 16
AF = 32
ACC = 96

def gemm_addr_setup(A, rowstride, kind, s_ring):
    A("v_lshlrev_b32 v2, 4, v1")
    A("v_lshrrev_b32 v6, 3, v1")
    A("v_and_b32 v7, 7, v1")
    A("v_lshrrev_b32 v8, 2, v1")
    A("v_and_b32 v8, 4, v8")
    A("v_xor_b32 v7, v7, v8")
    A("v_mul_u32_u24 v3, %d, v6" % rowstride)
    A("v_lshl_add_u32 v3, v7, 4, v3")
    A("v_lshrrev_b32 v6, 5, v1")
    A("v_lshlrev_b32 v4, %d, v6" % (10 if kind == "x" else 9))
    A("v_bfe_u32 v7, v1, 2, 2")
    A("v_lshl_add_u32 v4, v7, 7, v4")
    A("v_lshrrev_b32 v7, 1, v7")
    A("v_lshl_add_u32 v4, v7, 6, v4")
    A("v_bfe_u32 v7, v1, 4, 1")
    A("v_lshl_add_u32 v4, v7, 5, v4")
    A("v_and_b32 v7, 3, v1")
    A("v_lshl_add_u32 v4, v7, 3, v4")
    A("v_add_u32 v4, %s, v4" % s_ring)
    A("v_xor_b32 v5, 64, v4")


def gemm_loop(A, nsteps, D, kind, rowstride, srdA, srdW, sA0, sA1, sW, s_ring, st):
    jstep = 512 if kind == "x" else 1024

    def issue(s):
        slot = s % D
        if s and s % 4 == 0:
            A("s_add_u32 s%d, s%d, 4096" % (sA0, sA0))
            A("s_add_u32 s%d, s%d, 4096" % (sA1, sA1))
        for hh in range(2):
            A("s_add_u32 m0, %s, %d" % (s_ring, slot * 2048 + hh * 1024))
            A("s_add_u32 s%d, s%d, %d" % (st, sW, (16 * s + 8 * hh) * rowstride))
            A.vmem("buffer_load_dwordx4 v3, %s, s%d offen lds" % (sr(srdW, 4), st), "g%d" % s)
        for a, sa in enumerate((sA0, sA1)):
            A.vmem("buffer_load_dwordx4 %s, v2, %s, s%d offen offset:%d" % (vr(AF + (slot * 2 + a) * 4, 4), sr(srdA, 4), sa, (s % 4) * 1024), "g%d" % s)
    for s in range(min(D, nsteps)):
        issue(s)
    for s in range(nsteps):
        slot = s % D
        A.wait_vm("g%d" % s)
        for b in range(2):
            for j in range(2):
                A("ds_read_b64_tr_b16 %s, v%d offset:%d" % (vr(WF + 4 * b + 2 * j, 2), 4 + b, slot * 2048 + j * jstep))
        for b in range(2):
            A("s_waitcnt lgkmcnt(%d)" % (2 - 2 * b))
            for a in range(2):
                d = ACC + (b * 2 + a) * 16
                A(mfma(d, WF + 4 * b, AF + (slot * 2 + a) * 4, "0" if s == 0 else d))
        if s + D < nsteps:
            issue(s + D)


def common_head(A, Lend):
    A("s_cmp_ge_u32 s2, 256")
    A("s_cbranch_scc1 %s" % Lend)
    A("v_and_b32 v1, 63, v0")
    A("v_lshrrev_b32 v8, 6, v0")
    A("s_and_b32 s25, s2, 7")
    A("v_readfirstlane_b32 s24, v8")
    A("s_lshr_b32 s26, s2, 3")
    A("s_lshl_b32 s27, s25, 2")
    A("s_and_b32 s28, s26, 3")
    A("s_add_u32 s27, s27, s28")
    A("s_lshr_b32 s28, s26, 2")


def gen_f1(A, name="f1_kernel"):
    kernel_begin(A, name)
    Lend = A.label("f1end")
    A("s_load_dwordx2 s[4:5], s[0:1], 32")
    A("s_load_dwordx2 s[8:9], s[0:1], 64")
    common_head(A, Lend)
    A("s_mul_i32 s29, s28, 3")
    A("s_add_u32 s29, s29, s24")
    A("s_waitcnt lgkmcnt(0)")
    A("s_cmp_ge_u32 s24, 3")
    A("s_cbranch_scc1 %s" % Lend)
    A("s_cmp_ge_u32 s29, 22")
    A("s_cbranch_scc1 %s" % Lend)
    srd(A, 16, 4, W1_BYTES)
    srd(A, 20, 8, WS_BYTES)
    A("s_lshl_b32 s30, s24, 13")
    gemm_addr_setup(A, 2752, "x", "s30")
    A("s_lshl_b32 s31, s27, 16")
    A("s_add_u32 s31, s31, 0x%x" % XN_OFF)
    A("s_add_u32 s32, s31, 32768")
    A("s_lshl_b32 s33, s29, 7")
    gemm_loop(A, 32, 4, "x", 2752, 20, 16, 31, 32, 33, "s30", 34)
    A("s_mul_i32 s31, s27, %d" % (2 * HF_MB))
    A("s_lshl_b32 s32, s29, 12")
    A("s_add_u32 s31, s31, s32")
    A("s_add_u32 s31, s31, 0x%x" % HF_OFF)
    A("s_add_u32 s32, s31, %d" % HF_MB)
    A("s_nop 10")
    for b in range(2):
        for a in range(2):
            d = ACC + (b * 2 + a) * 16
            o = AF + (b * 2 + a) * 8
            for i in range(8):
                A("v_cvt_pk_bf16_f32 v%d, v%d, v%d" % (o + i, d + 2 * i, d + 2 * i + 1))
            for i in range(8):
                A("v_pk_max_i16 v%d, v%d, 0" % (o + i, o + i))
            for j in range(2):
                A("buffer_store_dwordx4 %s, v2, s[20:23], s%d offen offset:%d" % (vr(o + 4 * j, 4), 31 + a, (2 * b + j) * 1024))
    A("%s:" % Lend)
    A("s_endpgm")
    return 160


def reduce_tile(A):
    A("v_and_b32 v6, 31, v1")
    A("v_lshrrev_b32 v7, 5, v1")
    A("v_and_b32 v8, 15, v1")
    A("v_xor_b32 v8, v8, v7")
    A("v_lshlrev_b32 v8, 4, v8")
    A("v_lshl_add_u32 v8, v6, 8, v8")
    A("s_lshl_b32 s34, s24, 14")
    A("v_add_u32 v8, s34, v8")
    for k in range(1, 8):
        A("v_xor_b32 v%d, %d, v8" % (8 + k, k * 32))
    A("s_nop 7")
    for b in range(2):
        for a in range(2):
            d = ACC + (b * 2 + a) * 16
            for g in range(4):
                A("ds_write_b128 v%d, %s offset:%d" % (8 + 4 * b + g, vr(d + 4 * g, 4), a * 8192))
    A("v_lshrrev_b32 v6, 3, v0")
    A("v_and_b32 v7, 7, v0")
    A("v_lshlrev_b32 v7, 1, v7")
    A("v_and_b32 v16, 15, v6")
    A("v_xor_b32 v7, v7, v16")
    A("v_lshlrev_b32 v7, 4, v7")
    A("v_lshl_add_u32 v16, v6, 8, v7")
    A("v_xor_b32 v17, 16, v16")
    A("s_waitcnt lgkmcnt(0)")
    A("s_barrier")
    for i in range(2):
        for w in range(4):
            for e in range(2):
                A("ds_read_b128 %s, v%d offset:%d" % (vr(ACC + ((i * 4 + w) * 2 + e) * 4, 4), 16 + e, w * 16384 + i * 8192))
    for i in range(2):
        A("s_waitcnt lgkmcnt(%d)" % (8 - 8 * i))
        b = ACC + i * 32
        for k in range(8):
            A("v_add_f32 v%d, v%d, v%d" % (b + k, b + k, b + 8 + k))
            A("v_add_f32 v%d, v%d, v%d" % (b + 16 + k, b + 16 + k, b + 24 + k))
        for k in range(8):
            A("v_add_f32 v%d, v%d, v%d" % (32 + 8 * i + k, b + k, b + 16 + k))


def round_bf16(A, regs, tmp, smask):
    for k in range(0, len(regs), 2):
        A("v_cvt_pk_bf16_f32 v%d, v%d, v%d" % (tmp + k // 2, regs[k], regs[k + 1]))
    for k in range(0, len(regs), 2):
        A("v_lshlrev_b32 v%d, 16, v%d" % (regs[k], tmp + k // 2))
        A("v_and_b32 v%d, %s, v%d" % (regs[k + 1], smask, tmp + k // 2))


def rowmajor_off(A, dst):
    A("v_lshrrev_b32 v6, 3, v0")
    A("v_and_b32 v7, 7, v0")
    A("v_lshlrev_b32 v%d, 10, v6" % dst)
    A("v_lshl_add_u32 v%d, v7, 4, v%d" % (dst, dst))


def gen_f2(A, name="f2_kernel"):
    kernel_begin(A, name)
    Lend = A.label("f2end")
    A("s_load_dwordx2 s[4:5], s[0:1], 40")
    A("s_load_dwordx2 s[8:9], s[0:1], 64")
    common_head(A, Lend)
    A("s_waitcnt lgkmcnt(0)")
    srd(A, 16, 4, W2_BYTES)
    srd(A, 20, 8, WS_BYTES)
    A("s_lshl_b32 s30, s24, 14")
    gemm_addr_setup(A, 1024, "d", "s30")
    A("s_mul_i32 s31, s27, %d" % (2 * HF_MB))
    A("s_mul_i32 s32, s24, %d" % (22 * 1024))
    A("s_add_u32 s31, s31, s32")
    A("s_add_u32 s31, s31, 0x%x" % HF_OFF)
    A("s_add_u32 s32, s31, %d" % HF_MB)
    A("s_mul_i32 s33, s24, %d" % (22 * 16 * 1024))
    A("s_lshl_b32 s34, s28, 7")
    A("s_add_u32 s33, s33, s34")
    gemm_loop(A, 22, 4, "d", 1024, 20, 16, 31, 32, 33, "s30", 34)
    reduce_tile(A)
    A("s_mov_b32 s41, 0xffff0000")
    regs = list(range(32, 48))
    round_bf16(A, regs, 48, "s41")
    for r in regs:
        A("v_mul_f32 v%d, 0x%x, v%d" % (r + 32, f32bits(-LOG2E), r))
    for r in regs:
        A("v_exp_f32 v%d, v%d" % (r + 32, r + 32))
    for r in regs:
        A("v_add_f32 v%d, 1.0, v%d" % (r + 32, r + 32))
    for r in regs:
        A("v_rcp_f32 v%d, v%d" % (r + 32, r + 32))
    for r in regs:
        A("v_mul_f32 v%d, v%d, v%d" % (r, r, r + 32))
    for k in range(8):
        A("v_cvt_pk_bf16_f32 v%d, v%d, v%d" % (48 + k, 32 + 2 * k, 33 + 2 * k))
    rowmajor_off(A, 9)
    A("s_lshl_b32 s31, s27, 16")
    A("s_lshl_b32 s32, s28, 7")
    A("s_add_u32 s31, s31, s32")
    A("s_add_u32 s31, s31, 0x%x" % G_OFF)
    A("s_add_u32 s32, s31, 32768")
    A("buffer_store_dwordx4 v[48:51], v9, s[20:23], s31 offen")
    A("buffer_store_dwordx4 v[52:55], v9, s[20:23], s32 offen")
    A("%s:" % Lend)
    A("s_endpgm")
    return 160


def gen_k3(A, name="k3_kernel"):
    kernel_begin(A, name)
    Lend = A.label("k3end")
    A("s_load_dwordx2 s[4:5], s[0:1], 16")
    A("s_load_dwordx2 s[6:7], s[0:1], 0")
    A("s_load_dwordx2 s[8:9], s[0:1], 64")
    A("s_load_dwordx2 s[10:11], s[0:1], 48")
    common_head(A, Lend)
    A("s_waitcnt lgkmcnt(0)")
    srd(A, 12, 6, X_BYTES)
    srd(A, 16, 4, WO_BYTES)
    srd(A, 20, 8, WS_BYTES)
    srd(A, 36, 10, X_BYTES)
    A("s_lshl_b32 s30, s24, 14")
    gemm_addr_setup(A, 1024, "d", "s30")
    A("s_lshl_b32 s31, s27, 16")
    A("s_lshl_b32 s32, s24, 13")
    A("s_add_u32 s31, s31, s32")
    A("s_add_u32 s31, s31, 0x%x" % OF_OFF)
    A("s_add_u32 s32, s31, 32768")
    A("s_lshl_b32 s33, s24, 17")
    A("s_lshl_b32 s34, s28, 7")
    A("s_add_u32 s33, s33, s34")
    rowmajor_off(A, 24)
    A("s_lshl_b32 s42, s27, 16")
    A("s_lshl_b32 s43, s28, 7")
    A("s_add_u32 s42, s42, s43")
    A("s_add_u32 s43, s42, 32768")
    A("s_add_u32 s44, s42, 0x%x" % G_OFF)
    A("s_add_u32 s45, s43, 0x%x" % G_OFF)
    gemm_loop_pre = len(A.vm)
    A.vmem("buffer_load_dwordx4 v[160:163], v24, s[12:15], s42 offen", "x")
    A.vmem("buffer_load_dwordx4 v[164:167], v24, s[12:15], s43 offen", "x")
    A.vmem("buffer_load_dwordx4 v[168:171], v24, s[20:23], s44 offen", "x")
    A.vmem("buffer_load_dwordx4 v[172:175], v24, s[20:23], s45 offen", "x")
    gemm_loop(A, 8, 8, "d", 1024, 20, 16, 31, 32, 33, "s30", 34)
    reduce_tile(A)
    A("s_mov_b32 s41, 0xffff0000")
    regs = list(range(32, 48))
    round_bf16(A, regs, 48, "s41")
    for k in range(8):
        A("v_lshlrev_b32 v%d, 16, v%d" % (64 + 2 * k, 168 + k))
        A("v_and_b32 v%d, s41, v%d" % (65 + 2 * k, 168 + k))
    for r in regs:
        A("v_mul_f32 v%d, v%d, v%d" % (r, r, r + 32))
    round_bf16(A, regs, 48, "s41")
    for k in range(8):
        A("v_lshlrev_b32 v%d, 16, v%d" % (64 + 2 * k, 160 + k))
        A("v_and_b32 v%d, s41, v%d" % (65 + 2 * k, 160 + k))
    for r in regs:
        A("v_add_f32 v%d, v%d, v%d" % (r, r, r + 32))
    for k in range(8):
        A("v_cvt_pk_bf16_f32 v%d, v%d, v%d" % (48 + k, 32 + 2 * k, 33 + 2 * k))
    A("buffer_store_dwordx4 v[48:51], v24, s[36:39], s42 offen")
    A("buffer_store_dwordx4 v[52:55], v24, s[36:39], s43 offen")
    A("%s:" % Lend)
    A("s_endpgm")
    return 176
```

```python
from asmlib import *
from layout import *

def gen_k1(A, name="k1_kernel"):
    kernel_begin(A, name)
    Lend = A.label("k1end")
    A("s_cmp_ge_u32 s2, 256")
    A("s_cbranch_scc1 %s" % Lend)
    A("s_load_dwordx4 s[4:7], s[0:1], 0")
    A("s_load_dwordx2 s[8:9], s[0:1], 64")
    A("v_and_b32 v1, 63, v0")
    A("v_lshrrev_b32 v11, 6, v0")
    A("s_and_b32 s25, s2, 7")
    A("v_readfirstlane_b32 s24, v11")
    A("s_lshr_b32 s26, s2, 3")
    A("s_and_b32 s27, s25, 3")
    A("s_lshl_b32 s27, s27, 3")
    A("s_and_b32 s28, s26, 7")
    A("s_add_u32 s27, s27, s28")
    A("s_lshr_b32 s28, s25, 2")
    A("s_lshl_b32 s28, s28, 2")
    A("s_lshr_b32 s29, s26, 3")
    A("s_add_u32 s28, s28, s29")
    A("v_lshrrev_b32 v11, 3, v1")
    A("v_and_b32 v12, 7, v1")
    A("v_lshlrev_b32 v2, 10, v11")
    A("v_lshl_add_u32 v2, v12, 4, v2")
    A("v_lshrrev_b32 v13, 2, v1")
    A("v_and_b32 v13, 4, v13")
    A("v_xor_b32 v13, v12, v13")
    A("v_mul_u32_u24 v3, 3072, v11")
    A("v_lshl_add_u32 v3, v13, 4, v3")
    A("s_waitcnt lgkmcnt(0)")
    srd(A, 12, 4, X_BYTES)
    srd(A, 16, 6, WQKV_BYTES)
    srd(A, 20, 8, WS_BYTES)
    A("s_lshl_b32 s30, s27, 16")
    A("s_lshl_b32 s31, s24, 14")
    A("s_add_u32 s30, s30, s31")
    A("s_add_u32 s31, s30, 8192")
    XR = 64
    for g in range(2):
        for c in range(8):
            A.vmem("buffer_load_dwordx4 %s, v2, s[12:15], s%d offen offset:%d" % (vr(XR + (g * 8 + c) * 4, 4), 30 + g, c * 128), "x%d_%d" % (g, c))
    A("s_mul_i32 s32, s24, 49152")
    A("s_lshl_b32 s34, s28, 7")
    A("s_add_u32 s32, s32, s34")
    A("s_mul_i32 s33, s24, 6144")
    A("s_add_u32 s33, s33, 65536")

    def wdma(c):
        for hh in range(2):
            A("s_add_u32 s34, s32, %d" % (c * 4 * 49152 + hh * 24576))
            A("s_add_u32 m0, s33, %d" % ((c & 3) * 24576 + hh * 3072))
            A("s_nop 0")
            for G in range(3):
                A.vmem("buffer_load_dwordx4 v3, s[16:19], s34 offen offset:%d lds" % (G * 1024), "w%d" % c)
    for c in range(4):
        wdma(c)
    A("v_xor_b32 v13, v11, v12")
    A("v_lshlrev_b32 v4, 4, v13")
    A("v_lshrrev_b32 v13, 1, v12")
    A("v_lshl_add_u32 v4, v13, 10, v4")
    A("v_and_b32 v13, 1, v1")
    A("v_lshl_add_u32 v4, v13, 9, v4")
    A("s_lshr_b32 s35, s24, 1")
    A("s_and_b32 s36, s24, 1")
    A("s_lshl_b32 s37, s35, 15")
    A("s_lshl_b32 s38, s36, 8")
    A("s_add_u32 s37, s37, s38")
    A("v_add_u32 v4, s37, v4")
    A("v_and_b32 v13, 31, v1")
    A("v_lshrrev_b32 v14, 5, v1")
    A("s_lshl_b32 s37, s36, 15")
    for v in range(4):
        A("v_add_u32 v15, %d, v14" % (2 * v))
        A("v_xor_b32 v15, v13, v15")
        A("v_lshlrev_b32 v15, 4, v15")
        A("v_lshl_add_u32 v15, v14, 9, v15")
        A("v_add_u32 v15, %d, v15" % (v * 1024))
        A("v_add_u32 v%d, s37, v15" % (5 + v))
    A("v_mul_u32_u24 v9, 3072, v14")
    A("v_bfe_u32 v15, v1, 2, 2")
    A("v_lshl_add_u32 v9, v15, 7, v9")
    A("v_lshrrev_b32 v15, 1, v15")
    A("v_xor_b32 v15, s35, v15")
    A("v_lshl_add_u32 v9, v15, 6, v9")
    A("v_bfe_u32 v15, v1, 4, 1")
    A("v_lshl_add_u32 v9, v15, 5, v9")
    A("v_and_b32 v15, 3, v1")
    A("v_lshl_add_u32 v9, v15, 3, v9")
    A("v_add_u32 v9, 65536, v9")
    A("v_add_u32 v10, 49152, v9")
    A("s_mov_b32 s40, 0x3f803f80")
    A("s_mov_b32 s41, 0xffff0000")
    for g in range(2):
        S = 16 + g * 4
        for i in range(4):
            A("v_mov_b32 v%d, 0" % (S + i))
    for g in range(2):
        S = 16 + g * 4
        for c in range(8):
            A.wait_vm("x%d_%d" % (g, c))
            for d in range(4):
                r = XR + (g * 8 + c) * 4 + d
                A("v_dot2c_f32_bf16 v%d, s40, v%d" % (S + (d & 1), r))
                A("v_dot2c_f32_bf16 v%d, v%d, v%d" % (S + 2 + (d & 1), r, r))
    A("s_nop 2")
    for g in range(2):
        S = 16 + g * 4
        A("v_add_f32 v%d, v%d, v%d" % (S, S, S + 1))
        A("v_add_f32 v%d, v%d, v%d" % (S + 2, S + 2, S + 3))
    for mode in ("quad_perm:[1,0,3,2]", "quad_perm:[2,3,0,1]", "row_half_mirror"):
        A("s_nop 0")
        for r in (16, 18, 20, 22):
            A("v_add_f32_dpp v%d, v%d, v%d %s row_mask:0xf bank_mask:0xf" % (r, r, r, mode))
    for g in range(2):
        S = 16 + g * 4
        A("v_mul_f32 v%d, 0x3b000000, v%d" % (S, S))
        A("v_mul_f32 v%d, 0x3b000000, v%d" % (S + 2, S + 2))
    for g in range(2):
        S = 16 + g * 4
        A("v_fma_f32 v%d, -v%d, v%d, v%d" % (S + 2, S, S, S + 2))
    for g in range(2):
        S = 16 + g * 4
        A("v_max_f32 v%d, 0, v%d" % (S + 2, S + 2))
    for g in range(2):
        S = 16 + g * 4
        A("v_cvt_pk_bf16_f32 v%d, v%d, v%d" % (S + 1, S, S + 2))
    for g in range(2):
        S = 16 + g * 4
        A("v_lshlrev_b32 v%d, 16, v%d" % (S, S + 1))
        A("v_and_b32 v%d, s41, v%d" % (S + 2, S + 1))
    for g in range(2):
        S = 16 + g * 4
        A("v_add_f32 v%d, 0x3727c5ac, v%d" % (S + 2, S + 2))
    for g in range(2):
        S = 16 + g * 4
        A("v_cvt_pk_bf16_f32 v%d, v%d, v%d" % (S + 2, S + 2, S + 2))
    for g in range(2):
        S = 16 + g * 4
        A("v_and_b32 v%d, s41, v%d" % (S + 2, S + 2))
    for g in range(2):
        S = 16 + g * 4
        A("v_sqrt_f32 v%d, v%d" % (S + 2, S + 2))
    A("s_nop 0")
    for g in range(2):
        S = 16 + g * 4
        A("v_cvt_pk_bf16_f32 v%d, v%d, v%d" % (S + 2, S + 2, S + 2))
    for g in range(2):
        S = 16 + g * 4
        A("v_and_b32 v%d, s41, v%d" % (S + 2, S + 2))
    for g in range(2):
        S = 16 + g * 4
        A("v_rcp_f32 v%d, v%d" % (24 + 2 * g, S + 2))
    A("s_nop 0")
    for g in range(2):
        S = 16 + g * 4
        A("v_mul_f32 v%d, v%d, v%d" % (25 + 2 * g, S, 24 + 2 * g))
        A("v_sub_f32 v%d, 0, v%d" % (25 + 2 * g, 25 + 2 * g))
    for g in range(2):
        P = 24 + 2 * g
        for c in range(8):
            b = XR + (g * 8 + c) * 4
            for d in range(4):
                t = 32 + 2 * d
                A("v_lshlrev_b32 v%d, 16, v%d" % (t, b + d))
                A("v_and_b32 v%d, s41, v%d" % (t + 1, b + d))
            for d in range(4):
                t = 32 + 2 * d
                A("v_pk_fma_f32 %s, %s, %s, %s op_sel:[0,0,1] op_sel_hi:[1,0,1]" % (vr(t, 2), vr(t, 2), vr(P, 2), vr(P, 2)))
            for d in range(4):
                t = 32 + 2 * d
                A("v_cvt_pk_bf16_f32 v%d, v%d, v%d" % (b + d, t, t + 1))
            A("ds_write_b128 v4, %s offset:%d" % (vr(b, 4), c * 4096 + g * 128))
    A.wait_vm("w0", extra="lgkmcnt(0)")
    A("s_barrier")
    A("s_lshl_b32 s42, s28, 2")
    A("s_lshl_b32 s43, s35, 1")
    A("s_add_u32 s42, s42, s43")
    A("s_lshl_b32 s43, s27, 1")
    A("s_add_u32 s43, s43, s36")
    A("s_lshl_b32 s44, s43, 15")
    A("s_lshl_b32 s45, s42, 10")
    A("s_add_u32 s44, s44, s45")
    A("s_add_u32 s44, s44, 0x%x" % XN_OFF)
    A("s_add_u32 s45, s45, s37")
    A("s_lshl_b32 s46, s35, 2")
    for i in range(2):
        A("v_add_u32 v15, s46, v14")
        if i:
            A("v_add_u32 v15, 2, v15")
        A("v_xor_b32 v15, v13, v15")
        A("v_lshlrev_b32 v15, 4, v15")
        A("v_lshl_add_u32 v15, v14, 9, v15")
        A("v_add_u32 v15, s45, v15")
        A("ds_read_b128 %s, v15 offset:%d" % (vr(64 + 4 * i, 4), i * 1024))
    A("v_lshlrev_b32 v11, 4, v1")
    XF = [32, 36]
    WF = [[40, 44, 48], [52, 56, 60]]
    ACC = [128, 144, 160]

    def reads(s):
        p = s & 1
        A("ds_read_b128 %s, v%d offset:%d" % (vr(XF[p], 4), 5 + (s & 3), (s >> 2) * 4096))
        sl = s & 15
        base = 9 if sl < 8 else 10
        for G in range(3):
            for j in range(2):
                A("ds_read_b64_tr_b16 %s, v%d offset:%d" % (vr(WF[p][G] + 2 * j, 2), base, (sl & 7) * 6144 + G * 1024 + j * 512))
    reads(0)
    A("s_waitcnt lgkmcnt(7)")
    for i in range(2):
        A.vmem("buffer_store_dwordx4 %s, v11, s[20:23], s44 offen offset:%d" % (vr(64 + 4 * i, 4), i * 1024), "xn")
    for s in range(32):
        p = s & 1
        if (s & 3) == 3 and s < 31:
            c = s >> 2
            A.wait_vm("w%d" % (c + 1), extra="lgkmcnt(0)")
            A("s_barrier")
            if c + 4 < 8:
                wdma(c + 4)
        else:
            A("s_waitcnt lgkmcnt(0)")
        if s < 31:
            reads(s + 1)
        cq = "0" if s == 0 else None
        A(mfma(ACC[0], WF[p][0], XF[p], "0" if s == 0 else ACC[0]))
        A(mfma(ACC[1], WF[p][1], XF[p], "0" if s == 0 else ACC[1]))
        A(mfma(ACC[2], XF[p], WF[p][2], "0" if s == 0 else ACC[2]))
    A("s_lshl_b32 s46, s28, 2")
    A("s_lshl_b32 s47, s35, 1")
    A("s_add_u32 s46, s46, s47")
    A("s_lshl_b32 s47, s46, 16")
    A("s_lshl_b32 s48, s43, 10")
    A("s_add_u32 s47, s47, s48")
    A("s_add_u32 s47, s47, 0x%x" % QF_OFF)
    A("s_add_u32 s48, s47, 65536")
    A("s_lshl_b32 s49, s46, 17")
    A("s_lshl_b32 s50, s43, 11")
    A("s_add_u32 s49, s49, s50")
    A("s_add_u32 s49, s49, 0x%x" % KV_OFF)
    A("s_add_u32 s50, s49, 131072")
    A("v_bfe_u32 v15, v1, 4, 1")
    A("v_lshlrev_b32 v12, 17, v15")
    A("v_lshl_add_u32 v12, v14, 8, v12")
    A("v_and_b32 v15, 15, v1")
    A("v_lshl_add_u32 v12, v15, 4, v12")
    A("s_mov_b32 s51, 0x%x" % QSCALE_BITS)
    A("s_nop 7")
    for r in range(16):
        A("v_mul_f32 v%d, s51, v%d" % (ACC[0] + r, ACC[0] + r))
    for t, regs in enumerate(ACC):
        for i in range(8):
            A("v_cvt_pk_bf16_f32 v%d, v%d, v%d" % (64 + t * 8 + i, regs + 2 * i, regs + 2 * i + 1))
        if t == 0:
            A("buffer_store_dwordx4 v[64:67], v11, s[20:23], s47 offen")
            A("buffer_store_dwordx4 v[68:71], v11, s[20:23], s48 offen")
        elif t == 1:
            A("buffer_store_dwordx4 v[72:75], v11, s[20:23], s49 offen")
            A("buffer_store_dwordx4 v[76:79], v11, s[20:23], s50 offen")
        else:
            A("buffer_store_dwordx4 v[80:83], v12, s[20:23], s49 offen offset:1024")
            A("buffer_store_dwordx4 v[84:87], v12, s[20:23], s49 offen offset:1536")
    A("%s:" % Lend)
    A("s_endpgm")
    return 176
```

```python
import struct
X_BYTES = 2048 * 512 * 2
WQKV_BYTES = 512 * 1536 * 2
WO_BYTES = 512 * 512 * 2
W1_BYTES = 512 * 1376 * 2
W2_BYTES = 1376 * 512 * 2
WS_BYTES = 0x2000000
MB = 1 << 20
QF_OFF = 0
KV_OFF = 2 * MB
XN_OFF = 6 * MB
HF_OFF = 8 * MB
OF_OFF = 14 * MB
G_OFF = 16 * MB
def f32bits(x):
    return struct.unpack("<I", struct.pack("<f", x))[0]
LOG2E = 1.4426950408889634
QSCALE_BITS = f32bits(0.25 * LOG2E)
HF_MB = 88 * 1024
```

```python
import sys
from asmlib import *
import k1, att, gemm
NAME = "recurrent_scan__softmax_full_mha__dense_activation_relu__prompt"
hdr = open("cdna_kernels/%s.s.ref" % NAME).read().split("; Override launch")[0]
A = Asm()
ks = []
ks.append(("k1_kernel", k1.gen_k1(A), 256, 256, 163840))
ks.append(("f1_kernel", gemm.gen_f1(A), 256, 256, 32768))
ks.append(("f2_kernel", gemm.gen_f2(A), 256, 256, 65536))
ks.append(("att_kernel", att.gen_att(A), 256, 512, 131072 + 8192))
ks.append(("k3_kernel", gemm.gen_k3(A), 256, 256, 65536))
out = hdr
for n, v, g, b, l in ks:
    out += "; @launch kernel=%s grid=(%d,1,1) block=(%d,1,1) lds=%d\n" % (n, g, b, l)
out += '.amdgcn_target "amdgcn-amd-amdhsa--gfx950"\n.text\n' + A.text()
out += '.section .rodata,"a"\n'
for n, v, g, b, l in ks:
    out += descriptor(n, v)
dst = sys.argv[1] if len(sys.argv) > 1 else "cdna_kernels/%s.s" % NAME
open(dst, "w").write(out)
print("wrote", dst, len(out))
```

```python
import sys
from asmlib import *
import k1, att, gemm
NAME = "recurrent_scan__softmax_full_mha__dense_activation_relu__prompt"
hdr = open("cdna_kernels/%s.s.ref" % NAME).read().split("; Override launch")[0]
def build(order, dst):
    A = Asm()
    ks = {}
    ks["k1"] = ("k1_kernel", k1.gen_k1(A), 256, 256, 163840)
    ks["f1"] = ("f1_kernel", gemm.gen_f1(A), 256, 256, 32768)
    ks["f2"] = ("f2_kernel", gemm.gen_f2(A), 256, 256, 65536)
    ks["att"] = ("att_kernel", att.gen_att(A), 256, 512, 131072 + 8192)
    ks["k3"] = ("k3_kernel", gemm.gen_k3(A), 256, 256, 65536)
    kernel_begin(A, "nop_kernel"); A("s_endpgm")
    ks["nop"] = ("nop_kernel", 8, 256, 256, 0)
    out = hdr
    for o in order:
        n, v, g, b, l = ks[o]
        out += "; @launch kernel=%s grid=(%d,1,1) block=(%d,1,1) lds=%d\n" % (n, g, b, l)
    out += '.amdgcn_target "amdgcn-amd-amdhsa--gfx950"\n.text\n' + A.text()
    out += '.section .rodata,"a"\n'
    for n, v, g, b, l in ks.values():
        out += descriptor(n, v)
    open(dst, "w").write(out)
base = ["k1", "f1", "f2", "att", "k3"]
build(base + ["nop"] * 5, "a_nop5.s")
build(["k1", "k1", "f1", "f2", "att", "k3"], "b_k1x2.s")
build(["k1", "f1", "f1", "f2", "att", "k3"], "c_f1x2.s")
build(["k1", "f1", "f2", "f2", "att", "k3"], "d_f2x2.s")
build(["k1", "f1", "f2", "att", "att", "k3"], "e_attx2.s")
build(["k1", "f1", "f2", "att", "k3", "k3"], "f_k3x2.s")
```

```python
class Asm:
    def __init__(self):
        self.lines = []
        self.vm = []
        self.lg = []
        self.uid = 0

    def __call__(self, s=""):
        for ln in s.split("\n"):
            ln = ln.strip()
            if not ln:
                continue
            if ln.endswith(":") or ln.startswith("."):
                self.lines.append(ln)
            else:
                self.lines.append("    " + ln)

    def c(self, s):
        self.lines.append("    ; " + s)

    def label(self, base):
        self.uid += 1
        return "L_%s_%d" % (base, self.uid)

    def vmem(self, s, tag):
        self(s)
        self.vm.append(tag)

    def wait_vm(self, *tags, extra=""):
        last = -1
        for i, t in enumerate(self.vm):
            if t in tags:
                last = i
        if last < 0:
            if extra:
                self("s_waitcnt " + extra)
            return
        n = len(self.vm) - 1 - last
        assert n <= 63
        self("s_waitcnt vmcnt(%d) %s" % (n, extra))
        self.vm = self.vm[last + 1:]

    def lds(self, s, tag):
        self(s)
        self.lg.append(tag)

    def wait_lds(self, *tags):
        last = -1
        for i, t in enumerate(self.lg):
            if t in tags:
                last = i
        if last < 0:
            return
        n = len(self.lg) - 1 - last
        if n > 15:
            last = len(self.lg) - 1 - 15
            n = 15
        self("s_waitcnt lgkmcnt(%d)" % n)
        self.lg = self.lg[last + 1:]

    def text(self):
        return "\n".join(self.lines) + "\n"


def vr(b, n=1):
    return "v%d" % b if n == 1 else "v[%d:%d]" % (b, b + n - 1)


def sr(b, n=1):
    return "s%d" % b if n == 1 else "s[%d:%d]" % (b, b + n - 1)


def mfma(d, a, b, c):
    cs = c if isinstance(c, str) else vr(c, 16)
    return "v_mfma_f32_32x32x16_bf16 %s, %s, %s, %s" % (vr(d, 16), vr(a, 4), vr(b, 4), cs)


def srd(A, d, base, nbytes):
    A("s_mov_b32 s%d, s%d" % (d, base))
    A("s_mov_b32 s%d, s%d" % (d + 1, base + 1))
    A("s_mov_b32 s%d, 0x%x" % (d + 2, nbytes))
    A("s_mov_b32 s%d, 0x00020000" % (d + 3))


def kernel_begin(A, name):
    A.lines.append(".globl %s" % name)
    A.lines.append(".p2align 8")
    A.lines.append(".type %s,@function" % name)
    A.lines.append("%s:" % name)
    A.vm = []


def descriptor(name, nvgpr, nsgpr=96):
    acc = (nvgpr + 3) // 4 * 4
    return """.p2align 6
.amdhsa_kernel %s
  .amdhsa_next_free_vgpr %d
  .amdhsa_next_free_sgpr %d
  .amdhsa_accum_offset %d
  .amdhsa_group_segment_fixed_size 0
  .amdhsa_kernarg_size 72
  .amdhsa_user_sgpr_count 2
  .amdhsa_user_sgpr_kernarg_segment_ptr 1
  .amdhsa_system_sgpr_workgroup_id_x 1
.end_amdhsa_kernel
""" % (name, nvgpr, nsgpr, min(acc, 256))


STAMP = False
TS_OFF = 24 << 20
def stamp(A, kidx, slot, srd_ws=20, wave="s24", t=88, vt=(250, 251, 252), saved=None):
    import asmlib
    if not asmlib.STAMP:
        return
    if saved is None:
        A("s_memrealtime s[%d:%d]" % (t, t + 1))
        A("s_memtime s[%d:%d]" % (t + 2, t + 3))
    else:
        A("s_mov_b32 s%d, s%d" % (t, saved))
        A("s_mov_b32 s%d, s%d" % (t + 2, saved + 2))
    A("s_lshl_b32 s%d, s2, 4" % (t + 4))
    A("s_add_u32 s%d, s%d, %s" % (t + 4, t + 4, wave))
    A("s_lshl_b32 s%d, s%d, 6" % (t + 4, t + 4))
    A("s_add_u32 s%d, s%d, 0x%x" % (t + 4, t + 4, TS_OFF + kidx * 256 * 16 * 64 + slot * 8))
    A("s_waitcnt lgkmcnt(0)")
    A.lg = []
    A("v_mov_b32 v%d, s%d" % (vt[0], t))
    A("v_mov_b32 v%d, s%d" % (vt[1], t + 2))
    A("v_mov_b32 v%d, 0" % vt[2])
    A.vmem("buffer_store_dwordx2 v[%d:%d], v%d, s[%d:%d], s%d offen" % (vt[0], vt[1], vt[2], srd_ws, srd_ws + 3, t + 4), "stamp")
```

```python
import asmlib
from asmlib import *
from layout import *

WBASE = 65536
WSLOT = 24576
K1_LDS = 163840

def gen_k1(A, name="k1_kernel", kidx=0, st_flag="", code_bytes=0):
    VT = (128, 129, 130)
    kernel_begin(A, name)
    Lend = A.label("k1end")
    Lld = A.label("k1ld")
    A("s_cmp_ge_u32 s2, 256")
    A("s_cbranch_scc1 %s" % Lend)
    A("s_load_dwordx4 s[4:7], s[0:1], 0")
    A("s_load_dwordx2 s[8:9], s[0:1], 64")
    A("v_and_b32 v1, 63, v0")
    A("v_lshrrev_b32 v11, 6, v0")
    A("s_and_b32 s25, s2, 7")
    A("v_readfirstlane_b32 s24, v11")
    A("s_lshr_b32 s26, s2, 3")
    A("s_and_b32 s27, s25, 3")
    A("s_lshl_b32 s27, s27, 3")
    A("s_and_b32 s28, s26, 7")
    A("s_add_u32 s27, s27, s28")
    A("s_lshr_b32 s28, s25, 2")
    A("s_lshl_b32 s28, s28, 2")
    A("s_lshr_b32 s29, s26, 3")
    A("s_add_u32 s28, s28, s29")
    A("v_lshrrev_b32 v11, 3, v1")
    A("v_and_b32 v12, 7, v1")
    A("v_lshlrev_b32 v2, 10, v11")
    A("v_lshl_add_u32 v2, v12, 4, v2")
    A("s_lshl_b32 s55, s29, 1")
    A("s_lshr_b32 s54, s25, 2")
    A("s_add_u32 s55, s55, s54")
    if ROT == 1:
        A("s_add_u32 s55, s55, s26")
    A("s_and_b32 s55, s55, 7")
    A("s_waitcnt lgkmcnt(0)")
    srd(A, 12, 4, X_BYTES)
    srd(A, 16, 6, WQKV_BYTES)
    srd(A, 20, 8, WS_BYTES)
    A("s_cmp_ge_u32 s24, 8")
    A("s_cbranch_scc1 %s" % Lld)
    A("s_lshl_b32 s30, s27, 16")
    A("s_lshl_b32 s31, s24, 13")
    A("s_add_u32 s30, s30, s31")
    XR = 32
    for c in range(8):
        A("s_add_u32 s31, s55, %d" % c)
        A("s_and_b32 s31, s31, 7")
        A("s_lshl_b32 s31, s31, 7")
        A("s_add_u32 s31, s31, s30")
        A.vmem("buffer_load_dwordx4 %s, v2, s[12:15], s31 offen%s" % (vr(XR + c * 4, 4), K1NT), "x%d" % c)
    if K1PRE:
        A("s_barrier")
    A("v_xor_b32 v13, v11, v12")
    A("v_lshlrev_b32 v4, 9, v12")
    A("v_lshl_add_u32 v10, v11, 4, v4")
    A("v_lshl_add_u32 v4, v13, 4, v4")
    A("s_lshr_b32 s35, s24, 2")
    A("s_and_b32 s36, s24, 3")
    A("s_lshl_b32 s37, s35, 12")
    A("s_lshl_b32 s38, s36, 7")
    A("s_add_u32 s37, s37, s38")
    A("v_add_u32 v4, s37, v4")
    A("s_lshl_b32 s52, s27, 1")
    A("s_add_u32 s52, s52, s35")
    A("s_lshl_b32 s52, s52, 15")
    A("s_lshl_b32 s53, s55, 12")
    A("s_add_u32 s52, s52, s53")
    A("s_add_u32 s52, s52, s38")
    A("s_add_u32 s52, s52, 0x%x" % XN_OFF)
    A("s_bfe_u32 s35, s24, 0x10001")
    A("s_and_b32 s36, s24, 1")
    A("v_and_b32 v13, 31, v1")
    A("v_lshrrev_b32 v14, 5, v1")
    A("s_lshl_b32 s37, s36, 12")
    for v in range(4):
        A("v_add_u32 v15, %d, v14" % (2 * v))
        A("v_xor_b32 v16, v13, v15")
        A("v_lshlrev_b32 v16, 4, v16")
        A("v_lshl_add_u32 v16, v15, 9, v16")
        A("v_add_u32 v%d, s37, v16" % (5 + v))
    A("v_mul_u32_u24 v9, 3072, v14")
    A("v_bfe_u32 v15, v1, 2, 2")
    A("v_lshl_add_u32 v9, v15, 7, v9")
    A("v_lshrrev_b32 v15, 1, v15")
    A("v_xor_b32 v15, s35, v15")
    A("v_lshl_add_u32 v9, v15, 6, v9")
    A("v_bfe_u32 v15, v1, 4, 1")
    A("v_lshl_add_u32 v9, v15, 5, v9")
    A("v_and_b32 v15, 3, v1")
    A("v_lshl_add_u32 v9, v15, 3, v9")
    A("v_add_u32 v9, %d, v9" % WBASE)
    A("v_lshlrev_b32 v11, 4, v1")
    A("v_bfe_u32 v15, v1, 4, 1")
    A("v_lshlrev_b32 v12, 17, v15")
    A("v_lshl_add_u32 v12, v14, 8, v12")
    A("v_and_b32 v15, 15, v1")
    A("v_lshl_add_u32 v12, v15, 4, v12")
    A("s_lshl_b32 s43, s27, 1")
    A("s_add_u32 s43, s43, s36")
    A("s_lshl_b32 s46, s28, 2")
    A("s_lshl_b32 s47, s35, 1")
    A("s_add_u32 s46, s46, s47")
    A("s_lshl_b32 s47, s46, 16")
    A("s_lshl_b32 s48, s43, 10")
    A("s_add_u32 s47, s47, s48")
    A("s_add_u32 s47, s47, 0x%x" % QF_OFF)
    A("s_add_u32 s48, s47, 65536")
    A("s_lshl_b32 s49, s46, 17")
    A("s_lshl_b32 s50, s43, 11")
    A("s_add_u32 s49, s49, s50")
    A("s_add_u32 s49, s49, 0x%x" % KV_OFF)
    A("s_add_u32 s50, s49, 131072")
    A("s_mov_b32 s51, 0x%x" % QSCALE_BITS)
    ACC = [80, 96, 112]
    for r in range(80, 128):
        A("v_mov_b32 v%d, 0" % r)
    A("s_mov_b32 s56, 1")
    A("s_mov_b32 s57, %d" % WSLOT)
    A("s_mov_b32 s59, 0x%x" % ((-3 * WSLOT) & 0xffffffff))
    A("s_movk_i32 s58, 0x2000")
    A("v_mov_b32 v14, 0x3f803f80")
    A("v_mov_b32 v15, 0xffff0000")
    for i in range(4):
        A("v_mov_b32 v%d, 0" % (16 + i))
    for c in range(8):
        A.wait_vm("x%d" % c)
        for d in range(4):
            r = XR + c * 4 + d
            A("v_dot2c_f32_bf16 v%d, v14, v%d" % (16 + (d & 1), r))
            A("v_dot2c_f32_bf16 v%d, v%d, v%d" % (18 + (d & 1), r, r))
    A("s_nop 2")
    A("v_add_f32 v16, v16, v17")
    A("v_add_f32 v18, v18, v19")
    for mode in ("quad_perm:[1,0,3,2]", "quad_perm:[2,3,0,1]", "row_half_mirror"):
        A("s_nop 0")
        for r in (16, 18):
            A("v_add_f32_dpp v%d, v%d, v%d %s row_mask:0xf bank_mask:0xf" % (r, r, r, mode))
    A("v_mul_f32 v16, 0x3b000000, v16")
    A("v_mul_f32 v18, 0x3b000000, v18")
    A("v_fma_f32 v18, -v16, v16, v18")
    A("v_max_f32 v18, 0, v18")
    A("v_cvt_pk_bf16_f32 v17, v16, v18")
    A("v_lshlrev_b32 v16, 16, v17")
    A("v_and_b32 v18, v15, v17")
    A("v_add_f32 v18, 0x3727c5ac, v18")
    A("v_cvt_pk_bf16_f32 v18, v18, v18")
    A("v_and_b32 v18, v15, v18")
    A("v_sqrt_f32 v18, v18")
    A("s_nop 0")
    A("v_cvt_pk_bf16_f32 v18, v18, v18")
    A("v_and_b32 v18, v15, v18")
    A("v_rcp_f32 v20, v18")
    A("s_nop 0")
    A("v_mul_f32 v21, -v16, v20")
    if asmlib.STAMP:
        A("s_memrealtime s[62:63]")
        A("s_memtime s[64:65]")
    for c in range(8):
        b = XR + c * 4
        T = 64 + 8 * (c & 1)
        for d in range(4):
            A("v_lshlrev_b32 v%d, 16, v%d" % (T + 2 * d, b + d))
            A("v_and_b32 v%d, v15, v%d" % (T + 2 * d + 1, b + d))
        for d in range(8):
            A("v_fma_f32 v%d, v%d, v20, v21" % (T + d, T + d))
        for d in range(4):
            A("v_cvt_pk_bf16_f32 v%d, v%d, v%d" % (b + d, T + 2 * d, T + 2 * d + 1))
        A("ds_write_b128 v4, %s offset:%d" % (vr(b, 4), c * 8192))
    if asmlib.STAMP:
        A("s_memrealtime s[66:67]")
        A("s_memtime s[68:69]")
    A("s_waitcnt lgkmcnt(0)")
    A("s_barrier")
    if asmlib.STAMP:
        A("s_memrealtime s[70:71]")
        A("s_memtime s[72:73]")
        A("s_waitcnt lgkmcnt(0)")
    Lmm = A.label("k1mm")
    A("s_cmp_lt_u32 s24, 4")
    A("s_cbranch_scc1 %s" % Lmm)
    A("buffer_store_dwordx4 %s, v10, s[20:23], s52 offen%s" % (vr(XR, 4), st_flag))
    for i in range(7):
        A("s_barrier")
    A("s_endpgm")
    A("%s:" % Lmm)
    for i in range(4):
        A("v_mov_b32 v%d, v%d" % (132 + i, XR + i))
    BUF = [16, 32, 48, 64]
    A("s_setprio 3")

    def reads(r, part):
        b = BUF[r]
        if part == 0:
            A("ds_read_b128 %s, v%d" % (vr(b, 4), 5 + r))
        for j in range(2):
            A("ds_read_b64_tr_b16 %s, v9 offset:%d" % (vr(b + 4 + 4 * part + 2 * j, 2), r * 6144 + part * 1024 + j * 512))
    for r in range(2):
        for part in range(3):
            reads(r, part)
    Lloop = A.label("k1loop")
    A(".p2align 6")
    A("%s:" % Lloop)
    filler = {(0, 0): "s_and_b32 s53, s56, 3", (0, 1): "s_cselect_b32 s54, s57, s59", (0, 2): "v_add_u32 v5, s58, v5",
              (1, 0): "s_add_u32 s56, s56, 1", (1, 1): "v_add_u32 v6, s58, v6", (1, 2): "v_add_u32 v7, s58, v7",
              (2, 0): "v_add_u32 v8, s58, v8", (2, 1): "s_nop 0", (2, 2): "s_nop 0", (3, 0): "s_nop 0", (3, 1): "s_nop 0", (3, 2): "s_cmp_lg_u32 s56, 9"}
    for r in range(4):
        b = BUF[r]
        ms = [mfma(ACC[0], b + 4, b, ACC[0]), mfma(ACC[1], b + 8, b, ACC[1]), mfma(ACC[2], b, b + 12, ACC[2])]
        for G in range(3):
            A(filler[(r, G)])
            A("s_waitcnt lgkmcnt(%d)" % (11 if G == 0 else 12))
            A(ms[G])
            if r == 2 and G == 0:
                A("s_barrier")
                A("v_add_u32 v9, s54, v9")
            reads((r + 2) & 3, G)
    A("s_cbranch_scc1 %s" % Lloop)
    if asmlib.STAMP:
        A("s_memrealtime s[74:75]")
        A("s_memtime s[76:77]")
    A("buffer_store_dwordx4 v[132:135], v10, s[20:23], s52 offen" + st_flag)
    A("s_nop 6")
    A("s_waitcnt lgkmcnt(0)")
    for t in (1, 2, 0):
        regs = ACC[t]
        if t == 0:
            for r in range(16):
                A("v_mul_f32 v%d, s51, v%d" % (ACC[0] + r, ACC[0] + r))
        for i in range(8):
            A("v_cvt_pk_bf16_f32 v%d, v%d, v%d" % (16 + t * 8 + i, regs + 2 * i, regs + 2 * i + 1))
        if t == 0:
            A("buffer_store_dwordx4 v[16:19], v11, s[20:23], s47 offen" + st_flag)
            A("buffer_store_dwordx4 v[20:23], v11, s[20:23], s48 offen" + st_flag)
        elif t == 1:
            A("buffer_store_dwordx4 v[24:27], v11, s[20:23], s49 offen" + st_flag)
            A("buffer_store_dwordx4 v[28:31], v11, s[20:23], s50 offen" + st_flag)
        else:
            A("buffer_store_dwordx4 v[32:35], v12, s[20:23], s49 offen offset:1024" + st_flag)
            A("buffer_store_dwordx4 v[36:39], v12, s[20:23], s49 offen offset:1536" + st_flag)
    if asmlib.STAMP:
        A("s_waitcnt vmcnt(0)")
        stamp(A, kidx, 5, vt=VT)
        for slot, b in ((0, 62), (1, 62), (2, 66), (3, 70), (4, 74)):
            stamp(A, kidx, slot, vt=VT, saved=b)
    A("%s:" % Lend)
    A("s_endpgm")

    A("%s:" % Lld)
    A.vm = []
    Lpf = A.label("k1pf")
    A("s_cmp_eq_u32 s24, 11")
    A("s_cbranch_scc1 %s" % Lpf)
    stamp(A, kidx, 0, vt=VT)
    A("v_lshrrev_b32 v13, 2, v1")
    A("v_and_b32 v13, 4, v13")
    A("v_xor_b32 v13, v12, v13")
    A("v_mul_u32_u24 v3, 3072, v11")
    A("v_lshl_add_u32 v3, v13, 4, v3")
    A("s_sub_u32 s29, s24, 8")
    A("s_lshl_b32 s33, s29, 10")
    A("s_lshl_b32 s32, s28, 7")
    A("s_add_u32 s32, s32, s33")
    A("s_add_u32 s33, s33, %d" % WBASE)

    def wdma(c):
        A("s_add_u32 s34, s55, %d" % c)
        A("s_and_b32 s34, s34, 7")
        A("s_mul_i32 s34, s34, %d" % (4 * 49152))
        for i in range(8):
            A("s_add_u32 m0, s33, %d" % ((c & 3) * WSLOT + i * 3072))
            A("s_add_u32 s34, s34, %s" % ("s32" if i == 0 else "24576"))
            A.vmem("buffer_load_dwordx4 v3, s[16:19], s34 offen%s lds" % K1NT, "w%d" % c)
    if K1PRE == 2:
        wdma(0)
    if K1PRE:
        A("s_barrier")
    for c in range(1 if K1PRE == 2 else 0, K1LEAD):
        wdma(c)
    nxt = K1LEAD
    for c in range(8):
        A.wait_vm("w%d" % c)
        if c in (0, 1, 4, 7):
            stamp(A, kidx, {0: 2, 1: 3, 4: 4, 7: 5}[c], vt=VT)
        A("s_barrier")
        if nxt < 8 and nxt <= max(3, c + 2):
            wdma(nxt)
            nxt += 1
    assert nxt == 8
    A("s_endpgm")
    A("%s:" % Lpf)
    if K1TOUCH:
        A("v_lshrrev_b32 v13, 5, v1")
        A("v_bfe_u32 v14, v1, 2, 3")
        A("v_and_b32 v15, 3, v1")
        A("v_min_u32 v15, 2, v15")
        A("v_mul_u32_u24 v5, 3072, v14")
        A("v_lshl_add_u32 v5, v15, 10, v5")
        A("s_and_b32 s37, s26, 7")
        A("s_mul_i32 s37, s37, 24576")
        A("s_lshl_b32 s38, s28, 7")
        A("s_add_u32 s37, s37, s38")
        A("s_mov_b32 s39, %d" % (4 * 49152))
        A("v_add_u32 v13, s55, v13")
        for i in range(4):
            A("v_and_b32 v14, 7, v13")
            A("v_mul_lo_u32 v14, v14, s39")
            A("v_add_u32 v14, v14, v5")
            A("buffer_load_dword v%d, v14, s[16:19], s37 offen" % (16 + i))
            A("v_add_u32 v13, 2, v13")
    if code_bytes:
        Lc = A.label("k1code")
        A("s_cmp_ge_u32 s26, %d" % ((code_bytes + 8191) // 8192))
        A("s_cbranch_scc1 %s" % Lc)
        A("s_getpc_b64 s[38:39]")
        A("s_lshl_b32 s37, s26, 13")
        A("v_lshlrev_b32 v15, 7, v1")
        A("v_add_u32 v15, s37, v15")
        A("v_min_u32 v15, %d, v15" % code_bytes)
        A("global_load_dword v14, v15, s[38:39]")
        A("%s:" % Lc)
    Lz = A.label("k1z")
    A("s_cmp_lg_u32 s2, 0")
    A("s_cbranch_scc1 %s" % Lz)
    for i in range(4):
        A("v_mov_b32 v%d, 0" % (24 + i))
    A("v_lshlrev_b32 v6, 4, v1")
    for i in range(CNT_BYTES // 1024):
        A("s_mov_b32 s34, 0x%x" % (CNT_OFF + i * 1024))
        A("buffer_store_dwordx4 v[24:27], v6, s[20:23], s34 offen" + st_flag)
    A("%s:" % Lz)
    if PF:
        A("s_load_dwordx2 s[40:41], s[0:1], 16")
        A("s_load_dwordx4 s[44:47], s[0:1], 32")
        A("v_lshlrev_b32 v9, 7, v1")
        A("s_waitcnt lgkmcnt(0)")
        srd(A, 60, 44, W1_BYTES)
        srd(A, 64, 46, W2_BYTES)
        srd(A, 68, 40, WO_BYTES)
    for i in range(9 if K1PRE else 8):
        A("s_barrier")
        if PF and i == PFAT:
            A("s_mul_i32 s34, s2, %d" % (43 * 128))
            A("v_min_u32 v7, %d, v9" % (42 * 128))
            if PF == 1:
                A("buffer_load_dword v20, v7, s[60:63], s34 offen")
            else:
                A("s_lshl_b32 s35, s26, 13")
                for t in range(6):
                    A("s_add_u32 s36, s35, %d" % (t * 262144))
                    A("buffer_load_dword v%d, v9, s[60:63], s36 offen" % (28 + t))
            A("buffer_load_dword v21, v7, s[64:67], s34 offen")
            A("s_lshl_b32 s34, s2, 11")
            A("v_min_u32 v7, %d, v9" % (15 * 128))
            A("buffer_load_dword v22, v7, s[68:71], s34 offen")
    A("s_endpgm")
    return 136
```

```python
import asmlib
from asmlib import *
from layout import *

Q = 4; NEGM = 16; S = [32, 48]; P = 64; O = 72; KF = [88, 92]; VF = [[96, 100], [104, 108]]
def E(r, e64=False): return "v_exp_f32%s v%d, v%d" % ("_e64" if e64 else "", r, r)
def C(d, r): return "v_cvt_pk_bf16_f32 v%d, v%d, v%d" % (d, r, r + 1)

def att_tile(A, i):
    p = i & 1; s = S[p]; sp = S[p ^ 1]
    A(E(s)); A("s_waitcnt lgkmcnt(0)")
    A(C(P + 7, sp + 14))
    A(E(s + 1)); A(E(s + 2))
    A(mfma(O, VF[p ^ 1][1], P + 4, O))
    A(C(P, s))
    A(E(s + 3)); A("s_mov_b64 exec, s[40:41]")
    A("ds_read_b128 %s, v3 offset:%d" % (vr(VF[p ^ 1][0], 4), (i + 1) * 2048))
    A("ds_read_b128 %s, v3 offset:%d" % (vr(VF[p ^ 1][1], 4), (i + 1) * 2048 + 512))
    A("s_mov_b64 exec, -1"); A(E(s + 4))
    A(C(P + 1, s + 2))
    A(E(s + 5)); A(E(s + 6))
    A(mfma(sp, KF[p ^ 1], Q, NEGM))
    A(C(P + 2, s + 4))
    A(E(s + 7)); A(E(s + 8))
    A("ds_read_b128 %s, v2 offset:%d" % (vr(KF[p], 4), (i + 2) * 2048))
    A(C(P + 3, s + 6))
    A(E(s + 9)); A(E(s + 10))
    A(mfma(O, VF[p][0], P, O))
    A(C(P + 4, s + 8))
    A(E(s + 11)); A(E(s + 12))
    A(C(P + 5, s + 10))
    A(E(s + 13)); A(E(s + 14))
    A(C(P + 6, s + 12))
    A(E(s + 15, e64=True))


def rowmax16(A, dst, s, init=None):
    if init is None:
        A("v_max3_f32 v%d, v%d, v%d, v%d" % (dst, s, s + 1, s + 2))
        rest = list(range(3, 16))
    else:
        A("v_max3_f32 v%d, v%d, v%d, v%d" % (dst, s, s + 1, init))
        rest = list(range(2, 16))
    while len(rest) >= 2:
        A("v_max3_f32 v%d, v%d, v%d, v%d" % (dst, dst, s + rest[0], s + rest[1]))
        rest = rest[2:]
    if rest:
        A("v_max_f32 v%d, v%d, v%d" % (dst, dst, s + rest[0]))


def set_negm(A, m):
    A("v_mov_b32 v9, v%d" % m)
    A("s_nop 1")
    A("v_permlane32_swap_b32 v%d, v9" % m)
    A("s_nop 1")
    A("v_max_f32 v%d, v%d, v9" % (m, m))
    A("v_sub_f32 v%d, 0, v%d" % (NEGM, m))
    for r in range(1, 16):
        A("v_mov_b32 v%d, v%d" % (NEGM + r, NEGM))


WFB = [16, 24]
AF = 32
ACC = 96

def gemm_addr(A, rowstride, kind, s_ring, s_bswap):
    A("v_lshrrev_b32 v6, 3, v1")
    A("v_and_b32 v7, 7, v1")
    A("v_lshrrev_b32 v8, 2, v1")
    A("v_and_b32 v8, 4, v8")
    A("v_xor_b32 v7, v7, v8")
    A("v_mul_u32_u24 v3, %d, v6" % rowstride)
    A("v_lshl_add_u32 v3, v7, 4, v3")
    A("v_lshrrev_b32 v6, 5, v1")
    A("v_lshlrev_b32 v4, %d, v6" % (10 if kind == "x" else 9))
    A("v_bfe_u32 v7, v1, 2, 2")
    A("v_lshl_add_u32 v4, v7, 7, v4")
    A("v_lshrrev_b32 v7, 1, v7")
    if s_bswap:
        A("v_xor_b32 v7, %s, v7" % s_bswap)
    A("v_lshl_add_u32 v4, v7, 6, v4")
    A("v_bfe_u32 v7, v1, 4, 1")
    A("v_lshl_add_u32 v4, v7, 5, v4")
    A("v_and_b32 v7, 3, v1")
    A("v_lshl_add_u32 v4, v7, 3, v4")
    A("v_add_u32 v4, %s, v4" % s_ring)
    A("v_xor_b32 v5, 64, v4")


class Gemm:
    def __init__(self, A, nsteps, DW, DA, kind, rowstride, srdA, srdW, sA0, sA1, sW, s_ring, st, aflag="", rot=None, alds=False):
        self.__dict__.update(locals())
        self.jstep = 512 if kind == "x" else 1024

    def grp(self, dst, s, unit, base):
        A = self.A
        if self.rot is None:
            A("s_add_u32 s%d, s%d, %d" % (dst, base, (s // 4) * unit))
        else:
            A("s_add_u32 s%d, %s, %d" % (dst, self.rot, s // 4))
            A("s_and_b32 s%d, s%d, 7" % (dst, dst))
            A("s_mul_i32 s%d, s%d, %d" % (dst, dst, unit))
            A("s_add_u32 s%d, s%d, s%d" % (dst, dst, base))

    def issue_w(self, s, parts=(0, 1)):
        A = self.A
        if F1REP & 8:
            return
        for hh in parts:
            if s % 4 == 0 and hh == 0:
                self.grp(self.st + 1, s, 64 * self.rowstride, self.sW)
            A("s_add_u32 m0, %s, %d" % (self.s_ring, (s % self.DW) * 2048 + hh * 1024))
            A("s_add_u32 s%d, s%d, %d" % (self.st, self.st + 1, (16 * (s % 4) + 8 * hh) * self.rowstride))
            A.vmem("buffer_load_dwordx4 v3, %s, s%d offen lds" % (sr(self.srdW, 4), self.st), "w%d" % s)

    def issue_a(self, s, parts=(0, 1)):
        A = self.A
        for a in parts:
            if s % 4 == 0 and a == 0:
                self.grp(self.st + 2, s, 4096, self.sA0)
                A("s_add_u32 s%d, s%d, s%d" % (self.st + 3, self.st + 2, self.sA1))
            A.vmem("buffer_load_dwordx4 %s, v2, %s, s%d offen offset:%d%s" % (
                vr(AF + ((s % self.DA) * 2 + a) * 4, 4), sr(self.srdA, 4), self.st + 2 + a, (s % 4) * 1024, self.aflag), "a%d" % s)

    def pre(self, a=True, w=True):
        for s in range(max(self.DW, self.DA)):
            if a and s < self.DA and s < self.nsteps:
                self.issue_a(s)
            if w and s < self.DW and s < self.nsteps:
                self.issue_w(s)

    def reads(self, s, part):
        A = self.A
        if F1REP & 4:
            return
        if self.alds:
            A("ds_read_b128 %s, v14 offset:%d" % (vr(AF + ((s & 1) * 2 + part) * 4, 4), (s // 4) * 8192 + part * 4096 + (s % 4) * 1024))
        for j in range(2):
            A("ds_read_b64_tr_b16 %s, v%d offset:%d" % (vr(WFB[s & 1] + 4 * part + 2 * j, 2), 4 + part, (s % self.DW) * 2048 + j * self.jstep))

    def loop(self, hook=None):
        A = self.A
        n = self.nsteps
        DA = 2 if self.alds else self.DA
        A.wait_vm("w0")
        self.reads(0, 0)
        self.reads(0, 1)
        for s in range(n):
            A.wait_vm("a%d" % s, extra="lgkmcnt(0)")
            if hook:
                hook(s)
            for q in range(4):
                b, a = q >> 1, q & 1
                d = ACC + q * 16
                if not (F1REP & 2):
                    A(mfma(d, WFB[s & 1] + 4 * b, AF + ((s % DA) * 2 + a) * 4, "0" if s == 0 else d))
                if q < 2:
                    if s + 1 < n:
                        if q == 0:
                            A.wait_vm("w%d" % (s + 1))
                        self.reads(s + 1, q)
                    if not self.alds and s >= 1 and s - 1 + self.DA < n:
                        self.issue_a(s - 1 + self.DA, (q,))
                elif s + self.DW < n:
                    self.issue_w(s + self.DW, (q - 2,))


def lds_wait(A, vaddr, off, val, vt, st, sleep=1):
    L = A.label("lw")
    A("s_mov_b32 s%d, 0" % (st + 1))
    A("%s:" % L)
    A("ds_read_b32 v%d, v%d offset:%d" % (vt, vaddr, off))
    A("s_add_u32 s%d, s%d, 1" % (st + 1, st + 1))
    A("s_waitcnt lgkmcnt(0)")
    A("v_readfirstlane_b32 s%d, v%d" % (st, vt))
    A("s_cmp_ge_u32 s%d, %s" % (st, val))
    A("s_cbranch_scc1 %s_d" % L)
    A("s_sleep %d" % sleep)
    A("s_cmp_lt_u32 s%d, 0x200000" % (st + 1))
    A("s_cbranch_scc1 %s" % L)
    A("%s_d:" % L)


def round_bf16(A, regs, tmp, smask):
    for k in range(0, len(regs), 2):
        A("v_cvt_pk_bf16_f32 v%d, v%d, v%d" % (tmp + k // 2, regs[k], regs[k + 1]))
    for k in range(0, len(regs), 2):
        A("v_lshlrev_b32 v%d, 16, v%d" % (regs[k], tmp + k // 2))
        A("v_and_b32 v%d, %s, v%d" % (regs[k + 1], smask, tmp + k // 2))


RING = 131072
FLAG = RING + 30720

def gen_k2(A, name="k2_kernel", kidx=0, prio=(10, 14)):
    VT = (160, 161, 162)
    kernel_begin(A, name)
    Lend = A.label("k2end")
    Laux = A.label("k2aux")
    A("s_cmp_ge_u32 s2, 256")
    A("s_cbranch_scc1 %s" % Lend)
    A("s_load_dwordx2 s[8:9], s[0:1], 64")
    A("s_load_dwordx4 s[4:7], s[0:1], 32")
    A("v_and_b32 v1, 63, v0")
    A("v_lshrrev_b32 v8, 6, v0")
    A("s_and_b32 s25, s2, 7")
    A("v_readfirstlane_b32 s24, v8")
    A("s_lshr_b32 s26, s2, 3")
    A("s_lshl_b32 s27, s25, 2")
    A("s_and_b32 s28, s26, 3")
    A("s_add_u32 s27, s27, s28")
    A("s_lshr_b32 s28, s26, 2")
    A("s_waitcnt lgkmcnt(0)")
    srd(A, 20, 8, WS_BYTES)
    srd(A, 12, 4, W1_BYTES)
    srd(A, 16, 6, W2_BYTES)
    A("s_cmp_ge_u32 s24, 8")
    A("s_cbranch_scc1 %s" % Laux)
    A("s_lshl_b32 s29, s28, 3")
    A("s_add_u32 s29, s29, s24")
    A("v_lshlrev_b32 v10, 4, v1")
    A("s_lshl_b32 s30, s27, 16")
    A("s_lshl_b32 s31, s29, 10")
    A("s_add_u32 s30, s30, s31")
    A("s_add_u32 s30, s30, 0x%x" % QF_OFF)
    A.vmem("buffer_load_dwordx4 %s, v10, s[20:23], s30 offen" % vr(Q, 4), "q")
    stamp(A, kidx, 0, vt=VT)
    A("s_setprio %d" % ATTPRIO[0])
    A("s_mov_b32 s40, 0x0000ffff")
    A("s_mov_b32 s41, 0x0000ffff")
    A("v_lshrrev_b32 v8, 5, v1")
    A("v_lshlrev_b32 v11, 8, v8")
    A("v_and_b32 v8, 15, v1")
    A("v_lshl_add_u32 v11, v8, 4, v11")
    A("v_add_u32 v11, 1024, v11")
    if ZROWS:
        A("v_and_b32 v8, 27, v1")
        A("v_cmp_eq_u32 vcc, 16, v8")
        A("v_mov_b32 v8, 0x3f803f80")
        A("s_nop 1")
        A("v_cndmask_b32 v96, 0, v8, vcc")
        for r in range(97, 112):
            A("v_mov_b32 v%d, v96" % r)
    else:
        for r in range(96, 112):
            A("v_mov_b32 v%d, 0x3f803f80" % r)
    for r in range(16):
        A("v_mov_b32 v%d, 0" % (O + r))
    for r in (P + 4, P + 5, P + 6, S[1] + 14, S[1] + 15):
        A("v_mov_b32 v%d, 0" % r)
    A("v_mov_b32 v2, v10")
    A("v_mov_b32 v3, v11")
    A("s_mov_b32 s44, 0")
    A("s_mov_b32 s45, 2")
    A("v_mov_b32 v12, %d" % FLAG)
    A("v_mov_b32 v13, 1")
    A.wait_vm("q")
    A("s_barrier")
    stamp(A, kidx, 1, vt=VT)
    A("ds_read_b128 %s, v2" % vr(KF[0], 4))
    A("ds_read_b128 %s, v2 offset:2048" % vr(KF[1], 4))
    A("s_mov_b64 exec, s[40:41]")
    A("ds_read_b128 %s, v3" % vr(VF[0][0], 4))
    A("ds_read_b128 %s, v3 offset:512" % vr(VF[0][1], 4))
    A("s_mov_b64 exec, -1")
    A("s_waitcnt lgkmcnt(3)")
    A(mfma(S[0], KF[0], Q, "0"))
    A("s_nop 11")
    rowmax16(A, 8, S[0])
    set_negm(A, 8)
    A("s_nop 1")
    A(mfma(S[0], KF[0], Q, NEGM))
    A("s_nop 11")
    if NOATT:
        A("s_mov_b64 exec, 1")
        A("ds_add_u32 v12, v13 offset:4")
        A("s_endpgm")
    Lloop = A.label("attloop")
    Ldone = A.label("attdone")
    A(".p2align 6")
    A("%s:" % Lloop)
    for i in range(4):
        att_tile(A, i)
    A("v_add_u32 v2, 0x2000, v2")
    A("v_add_u32 v3, 0x2000, v3")
    A("s_add_u32 s44, s44, 1")
    A("s_cmp_lg_u32 s44, s45")
    A("s_cbranch_scc1 %s" % Lloop)
    def signal():
        A("s_mov_b64 exec, 1")
        A("ds_add_u32 v12, v13 offset:4")
        A("s_mov_b64 exec, -1")
    def kvw(v):
        return lambda: lds_wait(A, 12, 0, v, 14, 46)
    evs = {2: [lambda: lds_wait(A, 12, 20, 4, 14, 46)], 4: [signal], 7: [kvw(1)], 11: [kvw(2)]}
    evs.setdefault(prio[0], []).append(lambda: A("s_setprio %d" % ATTPRIO[1]))
    evs.setdefault(prio[1], []).append(lambda: A("s_setprio %d" % ATTPRIO[2]))
    keys = sorted(evs)
    ev = [(k, (lambda fs: (lambda: [f() for f in fs]))(evs[k]), (keys + [16])[i + 1]) for i, k in enumerate(keys)]
    for at, code, nxt in ev:
        Ln = A.label("attev")
        A("s_cmp_lg_u32 s44, %d" % at)
        A("s_cbranch_scc1 %s" % Ln)
        code()
        A("s_mov_b32 s45, %d" % nxt)
        A("s_branch %s" % Lloop)
        A("%s:" % Ln)
    A(C(P + 7, S[1] + 14))
    A("s_nop 1")
    A(mfma(O, VF[1][1], P + 4, O))
    stamp(A, kidx, 2, vt=VT)
    Lok = A.label("attok")
    A("s_nop 11")
    A("v_mul_f32 v8, 0, v%d" % O)
    for r in range(1, 8):
        A("v_fma_f32 v8, v%d, 0, v8" % (O + r))
    A("s_mov_b32 s45, 0x5f800000")
    A("v_cmp_u_f32 vcc, v8, v8")
    A("v_cmp_ngt_f32 s[46:47], s45, v%d" % (O + 8))
    A("s_nop 1")
    A("s_or_b64 s[46:47], s[46:47], vcc")
    A("s_cbranch_scc0 %s" % Lok)
    Lf1 = A.label("attf1")
    Lf2 = A.label("attf2")
    A("s_lshl_b32 s31, s27, 17")
    A("s_add_u32 s31, s31, 0x%x" % KV_OFF)
    A("s_mov_b32 s32, s31")
    A("s_mov_b32 s44, 64")
    A("v_mov_b32 v8, 0xff800000")
    A("%s:" % Lf1)
    A("buffer_load_dwordx4 %s, v10, s[20:23], s32 offen" % vr(KF[0], 4))
    A("s_add_u32 s32, s32, 2048")
    A("s_waitcnt vmcnt(0)")
    A(mfma(S[0], KF[0], Q, "0"))
    A("s_nop 11")
    rowmax16(A, 8, S[0], init=8)
    A("s_sub_u32 s44, s44, 1")
    A("s_cmp_lg_u32 s44, 0")
    A("s_cbranch_scc1 %s" % Lf1)
    set_negm(A, 8)
    for r in range(16):
        A("v_mov_b32 v%d, 0" % (O + r))
    A("s_mov_b32 s32, s31")
    A("s_mov_b32 s44, 64")
    A("%s:" % Lf2)
    A("buffer_load_dwordx4 %s, v10, s[20:23], s32 offen" % vr(KF[0], 4))
    A("s_mov_b64 exec, s[40:41]")
    A("buffer_load_dwordx4 %s, v11, s[20:23], s32 offen" % vr(VF[0][0], 4))
    A("buffer_load_dwordx4 %s, v11, s[20:23], s32 offen offset:512" % vr(VF[0][1], 4))
    A("s_mov_b64 exec, -1")
    A("s_add_u32 s32, s32, 2048")
    A("s_waitcnt vmcnt(0)")
    A(mfma(S[0], KF[0], Q, NEGM))
    A("s_nop 11")
    for r in range(16):
        A(E(S[0] + r))
    A("s_nop 0")
    for i in range(8):
        A(C(P + i, S[0] + 2 * i))
    A("s_nop 1")
    A(mfma(O, VF[0][0], P, O))
    A(mfma(O, VF[0][1], P + 4, O))
    A("s_sub_u32 s44, s44, 1")
    A("s_cmp_lg_u32 s44, 0")
    A("s_cbranch_scc1 %s" % Lf2)
    A("s_nop 11")
    A("%s:" % Lok)
    A("v_rcp_f32 v8, v%d" % (O + 8))
    A("s_lshl_b32 s30, s29, 15")
    A("s_lshl_b32 s31, s27, 10")
    A("s_add_u32 s30, s30, s31")
    A("s_add_u32 s30, s30, 0x%x" % OF_OFF)
    for r in range(8):
        A("v_mul_f32 v%d, v%d, v8" % (O + r, O + r))
    for i in range(4):
        A(C(P + i, O + 2 * i))
    A("buffer_store_dwordx4 %s, v10, s[20:23], s30 offen" % vr(P, 4))
    if asmlib.STAMP:
        A("s_waitcnt vmcnt(0)")
    stamp(A, kidx, 3, vt=VT)
    A("%s:" % Lend)
    A("s_endpgm")

    A("%s:" % Laux)
    A.vm = []
    A("s_setprio 3")
    A("s_sub_u32 s29, s24, 8")
    A("v_lshlrev_b32 v2, 4, v1")
    A("s_lshl_b32 s31, s27, 17")
    A("s_add_u32 s31, s31, 0x%x" % KV_OFF)
    A("s_lshl_b32 s32, s29, 10")
    def kvb(lo, hi, tag):
        for i in range(lo, hi):
            A("s_add_u32 m0, s32, %d" % (i * 4096))
            A("s_add_u32 s34, m0, s31")
            A.vmem("buffer_load_dwordx4 v2, s[20:23], s34 offen lds", tag)
    kvb(0, 5, "kv")
    stamp(A, kidx, 0, vt=VT)
    A("v_mov_b32 v10, %d" % FLAG)
    A("v_mov_b32 v11, 0")
    A("v_mov_b32 v12, 1")
    A("s_lshr_b32 s46, s29, 1")
    A("s_and_b32 s47, s29, 1")

    def region(dst, a, b):
        A("s_mul_i32 s%d, %s, 15360" % (dst, a))
        A("s_add_u32 s%d, s%d, %d" % (dst, dst, RING))
        A("s_lshl_b32 s49, %s, 14" % a)
        A("s_cmp_eq_u32 %s, 0" % b)
        A("s_cselect_b32 s%d, s49, s%d" % (dst, dst))

    def lds_inc(off):
        A("s_mov_b64 exec, 1")
        A("ds_add_u32 v10, v12 offset:%d" % off)
        A("s_mov_b64 exec, -1")

    def f2_setup():
        region(30, "s47", "s46")
        gemm_addr(A, 1024, "d", "s30", "s46")
        A("s_mul_i32 s33, s29, %d" % (22 * 16 * 1024))
        A("s_lshl_b32 s34, s28, 7")
        A("s_add_u32 s33, s33, s34")
        lds_wait(A, 10, 4, 8, 13, 42)
        lds_wait(A, 10, 28, 3, 13, 42)
        G2.pre(a=False)
    G2 = Gemm(A, 22, 7, 8, "d", 1024, 20, 16, 31, 32, 33, "s30", 34, aflag=" sc0 sc1")
    A("s_lshl_b32 s55, s27, 8")
    A("s_add_u32 s55, s55, 0x%x" % CNT_OFF)
    A("s_and_b32 s40, s26, 3")
    A("s_lshl_b32 s40, s40, 1")
    A("s_lshl_b32 s38, s27, 16")
    A("s_add_u32 s38, s38, 0x%x" % XN_OFF)

    def xn_block(sidx, tag):
        A("s_lshr_b32 s43, %s, 1" % sidx)
        A("s_add_u32 s43, s43, s40")
        A("s_and_b32 s43, s43, 7")
        A("s_lshl_b32 s43, s43, 12")
        A("s_and_b32 s44, %s, 1" % sidx)
        A("s_lshl_b32 s44, s44, 15")
        A("s_add_u32 s43, s43, s44")
        A("s_lshl_b32 s44, %s, 12" % sidx)
        A("s_add_u32 m0, s44, 65536")
        A("s_add_u32 s43, s43, s38")
        for u in range(4):
            A.vmem("buffer_load_dwordx4 v2, s[20:23], s43 offen offset:%d lds" % (u * 1024), tag)
    Lw3 = A.label("aux3")
    Lf2 = A.label("auxf2")
    A("s_cmp_eq_u32 s29, 3")
    A("s_cbranch_scc1 %s" % Lw3)
    A("s_mul_i32 s30, s29, 10240")
    A("s_add_u32 s30, s30, %d" % RING)
    A("s_mul_i32 s39, s28, 3")
    A("s_add_u32 s39, s39, s29")
    gemm_addr(A, 2752, "x", "s30", None)
    A("v_add_u32 v14, 65536, v2")
    A("s_lshl_b32 s33, s39, 7")
    G1 = Gemm(A, 32, 5, 0, "x", 2752, 20, 12, 31, 32, 33, "s30", 34, rot="s40", alds=True)
    A.wait_vm("kv")
    A("s_barrier")
    stamp(A, kidx, 1, vt=VT)
    kvb(5, 16, "xn1")
    if not NOFFN:
        xn_block("s29", "xn1")
        G1.pre(a=False)
    A.wait_vm("xn1")
    lds_inc(20)
    if NOFFN:
        A("s_endpgm")
    A("s_add_u32 s41, s29, 4")
    Lnof1 = A.label("nof1")
    Lf1sig = A.label("f1sig")
    A("s_cmp_ge_u32 s39, 22")
    A("s_cbranch_scc1 %s" % Lnof1)
    lds_wait(A, 10, 20, 4, 13, 42)
    A("s_setprio %d" % AUXPRIO)
    stamp(A, kidx, 2, vt=VT)

    def f1hook(s):
        if s < 4:
            xn_block("s41", "xn2")
            A("s_add_u32 s41, s41, 3")
        if s == 6:
            A.wait_vm("xn2")
            lds_inc(32)
        if s == 7:
            lds_wait(A, 10, 32, 3, 13, 42)
        if s == 16:
            lds_inc(24)
    G1.loop(f1hook)
    A("s_setprio 3")
    stamp(A, kidx, 3, vt=VT)
    A("s_mul_i32 s31, s27, %d" % (2 * HF_MB))
    A("s_lshl_b32 s32, s39, 12")
    A("s_add_u32 s31, s31, s32")
    A("s_add_u32 s31, s31, 0x%x" % HF_OFF)
    A("s_add_u32 s32, s31, %d" % HF_MB)
    A("s_nop 7")
    for b in range(2):
        for a in range(2):
            d = ACC + (b * 2 + a) * 16
            o = AF + (b * 2 + a) * 8
            for i in range(8):
                A(C(o + i, d + 2 * i))
            for i in range(8):
                A("v_pk_max_i16 v%d, v%d, 0" % (o + i, o + i))
            for j in range(2):
                A("buffer_store_dwordx4 %s, v2, s[20:23], s%d offen offset:%d sc0 sc1" % (vr(o + 4 * j, 4), 31 + a, (2 * b + j) * 1024))
    A("s_branch %s" % Lf1sig)
    A("%s:" % Lnof1)
    for t in range(4):
        xn_block("s41", "xn2")
        A("s_add_u32 s41, s41, 3")
    A("s_waitcnt vmcnt(0)")
    lds_inc(32)
    lds_inc(24)
    A("%s:" % Lf1sig)
    lds_inc(28)
    A.vm = ["h"]
    f2_setup()
    A.wait_vm("h")
    A("s_mov_b64 exec, 1")
    A("ds_add_rtn_u32 v13, v10, v12 offset:8")
    A("s_waitcnt lgkmcnt(0)")
    A("v_readfirstlane_b32 s42, v13")
    A("s_lshl_b32 s43, s28, 2")
    A("v_mov_b32 v13, s43")
    Lnp = A.label("nopub")
    A("s_cmp_lg_u32 s42, 2")
    A("s_cbranch_scc1 %s" % Lnp)
    A("buffer_store_dword v12, v13, s[20:23], s55 offen sc0 sc1")
    A("%s:" % Lnp)
    A("s_mov_b64 exec, -1")
    stamp(A, kidx, 4, vt=VT)
    A("s_cmp_lg_u32 s29, 0")
    A("s_cbranch_scc1 %s" % Lf2)
    A("v_and_b32 v13, 7, v1")
    A("v_lshlrev_b32 v13, 2, v13")
    Lp = A.label("poll")
    A("s_mov_b32 s42, 0")
    A("%s:" % Lp)
    A("buffer_load_dword v14, v13, s[20:23], s55 offen sc0 sc1")
    A("s_add_u32 s42, s42, 1")
    A("s_waitcnt vmcnt(0)")
    A("v_cmp_ne_u32 vcc, 1, v14")
    A("s_nop 4")
    A("s_cbranch_vccz %s_d" % Lp)
    A("s_sleep 1")
    A("s_cmp_lt_u32 s42, 0x40000")
    A("s_cbranch_scc1 %s" % Lp)
    A("%s_d:" % Lp)
    A("ds_write_b32 v10, v12 offset:12")
    A("s_branch %s" % Lf2)
    A("%s:" % Lw3)
    A("v_lshlrev_b32 v13, 2, v1")
    A("v_add_u32 v13, v10, v13")
    A("ds_write_b32 v13, v11")
    A.vm = ["kv"]
    A.wait_vm("kv", extra="lgkmcnt(0)")
    A("s_barrier")
    stamp(A, kidx, 1, vt=VT)
    kvb(5, 16, "xn1")
    if not NOFFN:
        xn_block("s29", "xn1")
    A.wait_vm("xn1")
    lds_inc(20)
    A("s_mov_b32 s32, %d" % (64 * 1024))

    def kvrun(end, cnt, val):
        Lk = A.label("kvl")
        A("%s:" % Lk)
        A("s_mov_b32 m0, s32")
        A("s_add_u32 s34, s32, s31")
        A("s_add_u32 s32, s32, 4096")
        for u in range(4):
            A("buffer_load_dwordx4 v2, s[20:23], s34 offen offset:%d lds" % (u * 1024))
        A("s_cmp_lg_u32 s32, %d" % (end * 1024))
        A("s_cbranch_scc1 %s" % Lk)
        A("v_mov_b32 v13, %d" % val)
        A("s_waitcnt vmcnt(%d)" % cnt)
        A("ds_write_b32 v10, v13")
    stamp(A, kidx, 2, vt=VT)
    if not NOFFN:
        lds_wait(A, 10, 24, 3, 13, 42)
    kvrun(96, 0, 1)
    stamp(A, kidx, 3, vt=VT)
    if TOUCH and not NOFFN:
        A("v_lshlrev_b32 v9, 7, v1")
        A("s_lshl_b32 s35, s26, 13")
        for i in range(6):
            A("s_add_u32 s36, s35, %d" % (i * 262144))
            A("buffer_load_dword v%d, v9, s[16:19], s36 offen" % (16 + i))
            A("s_waitcnt vmcnt(1)")
    if not NOFFN:
        lds_wait(A, 10, 28, 3, 13, 42)
    kvrun(128, 0, 2)
    stamp(A, kidx, 4, vt=VT)
    if NOFFN:
        A("s_endpgm")
    A.vm = []
    f2_setup()
    A("%s:" % Lf2)
    A("s_xor_b32 s50, s47, 1")
    A("s_xor_b32 s51, s46, 1")
    region(52, "s50", "s46")
    region(53, "s47", "s51")
    region(54, "s50", "s51")
    A("s_mul_i32 s31, s27, %d" % (2 * HF_MB))
    A("s_add_u32 s31, s31, 0x%x" % HF_OFF)
    A("s_lshl_b32 s49, s28, 2")
    A("s_add_u32 s49, s49, s29")
    A("s_mul_i32 s49, s49, %d" % (44 * 128))
    A("s_add_u32 s49, s49, s31")
    A("s_mul_i32 s32, s29, %d" % (22 * 1024))
    A("s_add_u32 s31, s31, s32")
    A("s_mul_i32 s38, s47, %d" % HF_MB)
    A("s_add_u32 s31, s31, s38")
    A("s_lshl_b32 s38, s38, 1")
    A("s_sub_u32 s32, %d, s38" % HF_MB)
    A("v_min_u32 v9, 43, v1")
    A("v_lshlrev_b32 v9, 7, v9")
    lds_wait(A, 10, 12, 1, 13, 42)
    stamp(A, kidx, 5, vt=VT)
    if TOUCH:
        A.vmem("buffer_load_dword v13, v9, s[20:23], s49 offen sc0 sc1", "t")
    G2.pre(w=False)
    A("s_setprio %d" % AUXPRIO)
    G2.loop()
    A("s_setprio 3")
    stamp(A, kidx, 6, vt=VT)
    A("v_add_u32 v6, s30, v2")
    A("v_add_u32 v7, s52, v2")
    A("v_add_u32 v8, s53, v2")
    A("v_add_u32 v9, s54, v2")
    A("s_nop 7")
    for j in (1, 2, 3):
        for g in range(4):
            A("ds_write_b128 v6, %s offset:%d" % (vr(ACC + j * 16 + 4 * g, 4), (j - 1) * 4096 + g * 1024))
    A("s_waitcnt lgkmcnt(0)")
    A("s_mov_b64 exec, 1")
    A("ds_add_u32 v10, v12 offset:16")
    A("s_mov_b64 exec, -1")
    lds_wait(A, 10, 16, 4, 13, 42)
    for j in (1, 2, 3):
        for g in range(4):
            A("ds_read_b128 %s, v%d offset:%d" % (vr(ACC + j * 16 + 4 * g, 4), 6 + j, (j - 1) * 4096 + g * 1024))
    A("s_waitcnt lgkmcnt(0)")
    for r in range(16):
        A("v_add_f32 v%d, v%d, v%d" % (ACC + r, ACC + r, ACC + 16 + r))
        A("v_add_f32 v%d, v%d, v%d" % (ACC + 32 + r, ACC + 32 + r, ACC + 48 + r))
    for r in range(16):
        A("v_add_f32 v%d, v%d, v%d" % (ACC + r, ACC + r, ACC + 32 + r))
    A("s_mov_b32 s41, 0xffff0000")
    regs = list(range(ACC, ACC + 16))
    round_bf16(A, regs, 16, "s41")
    for r in regs:
        A("v_mul_f32 v%d, 0x%x, v%d" % (r + 16, f32bits(-LOG2E), r))
    for r in regs:
        A("v_exp_f32 v%d, v%d" % (r + 16, r + 16))
    for r in regs:
        A("v_add_f32 v%d, 1.0, v%d" % (r + 16, r + 16))
    for r in regs:
        A("v_rcp_f32 v%d, v%d" % (r + 16, r + 16))
    for r in regs:
        A("v_mul_f32 v%d, v%d, v%d" % (r, r, r + 16))
    for k in range(8):
        A(C(16 + k, ACC + 2 * k))
    A("s_lshl_b32 s31, s27, 16")
    A("s_lshl_b32 s32, s28, 13")
    A("s_add_u32 s31, s31, s32")
    A("s_lshl_b32 s32, s29, 11")
    A("s_add_u32 s31, s31, s32")
    A("s_add_u32 s31, s31, 0x%x" % G_OFF)
    A("buffer_store_dwordx4 v[16:19], v2, s[20:23], s31 offen")
    A("buffer_store_dwordx4 v[20:23], v2, s[20:23], s31 offen offset:1024")
    if asmlib.STAMP:
        A("s_waitcnt vmcnt(0)")
    stamp(A, kidx, 7, vt=VT)
    A("s_endpgm")
    return 164


def gen_k3(A, name="k3_kernel", kidx=0):
    VT = (176, 177, 178)
    kernel_begin(A, name)
    Lend = A.label("k3end")
    A("s_cmp_ge_u32 s2, 256")
    A("s_cbranch_scc1 %s" % Lend)
    A("s_load_dwordx2 s[4:5], s[0:1], 16")
    A("s_load_dwordx2 s[6:7], s[0:1], 0")
    A("s_load_dwordx2 s[8:9], s[0:1], 64")
    A("s_load_dwordx2 s[10:11], s[0:1], 48")
    A("v_and_b32 v1, 63, v0")
    A("v_lshrrev_b32 v8, 6, v0")
    A("s_and_b32 s25, s2, 7")
    A("v_readfirstlane_b32 s24, v8")
    A("s_lshr_b32 s26, s2, 3")
    A("s_lshl_b32 s27, s25, 2")
    A("s_and_b32 s28, s26, 3")
    A("s_add_u32 s27, s27, s28")
    A("s_lshr_b32 s28, s26, 2")
    A("v_lshlrev_b32 v2, 4, v1")
    A("s_lshl_b32 s30, s24, 14")
    A("s_lshr_b32 s46, s24, 1")
    A("s_and_b32 s47, s24, 1")
    gemm_addr(A, 1024, "d", "s30", "s46")
    A("s_waitcnt lgkmcnt(0)")
    srd(A, 12, 6, X_BYTES)
    srd(A, 16, 4, WO_BYTES)
    srd(A, 20, 8, WS_BYTES)
    srd(A, 36, 10, X_BYTES)
    A("s_lshl_b32 s31, s27, 16")
    A("s_lshl_b32 s32, s24, 13")
    A("s_add_u32 s31, s31, s32")
    A("s_add_u32 s31, s31, 0x%x" % OF_OFF)
    A("s_lshl_b32 s48, s47, 15")
    A("s_add_u32 s31, s31, s48")
    A("s_lshl_b32 s32, s48, 1")
    A("s_sub_u32 s32, 32768, s32")
    A("s_lshl_b32 s33, s24, 17")
    A("s_lshl_b32 s34, s28, 7")
    A("s_add_u32 s33, s33, s34")
    G = Gemm(A, 8, 8, 8, "d", 1024, 20, 16, 31, 32, 33, "s30", 50)
    G.pre()
    stamp(A, kidx, 0, vt=VT)
    A("v_and_b32 v6, 31, v1")
    A("v_lshrrev_b32 v7, 5, v1")
    A("v_lshlrev_b32 v10, 10, v6")
    A("v_lshl_add_u32 v10, v7, 4, v10")
    A("s_lshl_b32 s42, s27, 16")
    A("s_add_u32 s42, s42, s48")
    A("s_lshl_b32 s43, s28, 7")
    A("s_add_u32 s42, s42, s43")
    A("s_lshl_b32 s43, s46, 6")
    A("s_add_u32 s42, s42, s43")
    A("s_lshl_b32 s44, s27, 16")
    A("s_lshl_b32 s45, s28, 13")
    A("s_add_u32 s44, s44, s45")
    A("s_lshl_b32 s45, s24, 11")
    A("s_add_u32 s44, s44, s45")
    A("s_add_u32 s44, s44, 0x%x" % G_OFF)
    A.vmem("buffer_load_dwordx4 v[160:163], v2, s[20:23], s44 offen", "g")
    A.vmem("buffer_load_dwordx4 v[164:167], v2, s[20:23], s44 offen offset:1024", "g")
    A.vmem("buffer_load_dwordx4 v[168:171], v10, s[12:15], s42 offen", "g")
    A.vmem("buffer_load_dwordx4 v[172:175], v10, s[12:15], s42 offen offset:32", "g")
    G.loop()
    stamp(A, kidx, 2, vt=VT)
    A("v_add_u32 v6, s30, v2")
    A("s_nop 10")
    for j in (1, 2, 3):
        for g in range(4):
            A("ds_write_b128 v6, %s offset:%d" % (vr(ACC + j * 16 + 4 * g, 4), j * 4096 + g * 1024))
    A("v_xor_b32 v7, 0x4000, v6")
    A("v_xor_b32 v8, 0x8000, v6")
    A("v_xor_b32 v9, 0xc000, v6")
    A("s_waitcnt lgkmcnt(0)")
    A("s_barrier")
    for j in (1, 2, 3):
        for g in range(4):
            A("ds_read_b128 %s, v%d offset:%d" % (vr(ACC + j * 16 + 4 * g, 4), 6 + j, j * 4096 + g * 1024))
    A("s_mov_b32 s41, 0xffff0000")
    A.wait_vm("g")
    for k in range(8):
        A("v_lshlrev_b32 v%d, 16, v%d" % (32 + 2 * k, 160 + k))
        A("v_and_b32 v%d, s41, v%d" % (33 + 2 * k, 160 + k))
    for k in range(8):
        A("v_lshlrev_b32 v%d, 16, v%d" % (48 + 2 * k, 168 + k))
        A("v_and_b32 v%d, s41, v%d" % (49 + 2 * k, 168 + k))
    A("s_waitcnt lgkmcnt(0)")
    for r in range(16):
        A("v_add_f32 v%d, v%d, v%d" % (ACC + r, ACC + r, ACC + 16 + r))
        A("v_add_f32 v%d, v%d, v%d" % (ACC + 32 + r, ACC + 32 + r, ACC + 48 + r))
    for r in range(16):
        A("v_add_f32 v%d, v%d, v%d" % (ACC + r, ACC + r, ACC + 32 + r))
    regs = list(range(ACC, ACC + 16))
    round_bf16(A, regs, 16, "s41")
    for r in range(16):
        A("v_mul_f32 v%d, v%d, v%d" % (ACC + r, ACC + r, 32 + r))
    for k in range(8):
        A(C(16 + k, ACC + 2 * k))
    A("s_nop 1")
    for k in (0, 1, 4, 5):
        A("v_permlane32_swap_b32 v%d, v%d" % (16 + k, 18 + k))
    A("s_nop 0")
    for k in range(8):
        A("v_lshlrev_b32 v%d, 16, v%d" % (32 + 2 * k, 16 + k))
        A("v_and_b32 v%d, s41, v%d" % (33 + 2 * k, 16 + k))
    for r in range(16):
        A("v_add_f32 v%d, v%d, v%d" % (32 + r, 32 + r, 48 + r))
    for k in range(8):
        A(C(16 + k, 32 + 2 * k))
    A("buffer_store_dwordx4 v[16:19], v10, s[36:39], s42 offen")
    A("buffer_store_dwordx4 v[20:23], v10, s[36:39], s42 offen offset:32")
    if asmlib.STAMP:
        A("s_waitcnt vmcnt(0)")
    stamp(A, kidx, 3, vt=VT)
    A("%s:" % Lend)
    A("s_endpgm")
    return 180
```

```python
import struct
X_BYTES = 2048 * 512 * 2
WQKV_BYTES = 512 * 1536 * 2
WO_BYTES = 512 * 512 * 2
W1_BYTES = 512 * 1376 * 2
W2_BYTES = 1376 * 512 * 2
WS_BYTES = 0x2000000
MB = 1 << 20
QF_OFF = 0
KV_OFF = 2 * MB
XN_OFF = 6 * MB
HF_OFF = 8 * MB
OF_OFF = 14 * MB
G_OFF = 16 * MB
def f32bits(x):
    return struct.unpack("<I", struct.pack("<f", x))[0]
LOG2E = 1.4426950408889634
QSCALE_BITS = f32bits(0.25 * LOG2E)
HF_MB = 88 * 1024
CNT_OFF = 20 * MB
import os
TOUCH = int(os.environ.get('TOUCH', '1'))
NOFFN = int(os.environ.get('NOFFN', '0'))
AUXPRIO = int(os.environ.get('AUXPRIO', '0'))
ATTPRIO = [int(c) for c in os.environ.get('ATTPRIO', '210')]
K1TOUCH = int(os.environ.get('K1TOUCH', '0'))
K1X = int(os.environ.get('K1X', '0'))
NOATT = int(os.environ.get('NOATT', '0'))
ZROWS = int(os.environ.get('ZROWS', '1'))
ROT = int(os.environ.get('ROT', '1'))
K1NT = os.environ.get('K1NT', '')
CNT_BYTES = 8192
K1LEAD = int(os.environ.get('K1LEAD', '3'))
K1THR = int(os.environ.get('K1THR', '0'))
K1PRE = int(os.environ.get('K1PRE', '0'))
F1REP = int(os.environ.get('F1REP', '0'))
PF = int(os.environ.get('PF', '0'))
PFAT = int(os.environ.get('PFAT', '3'))
BADMAP = int(os.environ.get('BADMAP', '0'))
```

```python
import sys
import asmlib
from asmlib import *
if "--stamp" in sys.argv:
    asmlib.STAMP = True
    sys.argv.remove("--stamp")
import k1, k2
NAME = "recurrent_scan__softmax_full_mha__dense_activation_relu__prompt"
hdr = open("cdna_kernels/%s.s.ref" % NAME).read().split("; Override launch")[0]
import os
CODE = int(os.environ.get('CODE', '0'))
A = Asm()
ks = []
ks.append(("k1_kernel", k1.gen_k1(A, kidx=0, code_bytes=CODE, st_flag=os.environ.get('ST', ' sc0 sc1')), 256, 768, k1.K1_LDS))
ks.append(("k2_kernel", k2.gen_k2(A, kidx=1), 256, 768, 163840))
ks.append(("k3_kernel", k2.gen_k3(A, kidx=2), 256, 256, 65536))
out = hdr
for n, v, g, b, l in ks * int(os.environ.get('TWICE', '1')):
    out += "; @launch kernel=%s grid=(%d,1,1) block=(%d,1,1) lds=%d\n" % (n, g, b, l)
out += '.amdgcn_target "amdgcn-amd-amdhsa--gfx950"\n.text\n' + A.text() + 'L_code_end:\n'
out += '.section .rodata,"a"\n'
for n, v, g, b, l in ks:
    out += descriptor(n, v)
dst = sys.argv[1] if len(sys.argv) > 1 else "cdna_kernels/%s.s" % NAME
open(dst, "w").write(out)
print("wrote", dst, len(out))
```

```python
import asmlib
from asmlib import *
from layout import *

WBASE = 65536
WSLOT = 24576
K1_LDS = 163840

def gen_k1(A, name="k1_kernel", kidx=0, st_flag="", code_bytes=0):
    VT = (128, 129, 130)
    kernel_begin(A, name)
    Lend = A.label("k1end")
    Lld = A.label("k1ld")
    A("s_cmp_ge_u32 s2, 256")
    A("s_cbranch_scc1 %s" % Lend)
    pad_begin(A, "k1")
    A("s_load_dwordx4 s[4:7], s[0:1], 0")
    A("s_load_dwordx2 s[8:9], s[0:1], 64")
    A("v_and_b32 v1, 63, v0")
    A("v_lshrrev_b32 v11, 6, v0")
    A("s_lshr_b32 s25, s2, 5" if BADMAP else "s_and_b32 s25, s2, 7")
    A("v_readfirstlane_b32 s24, v11")
    A("s_and_b32 s26, s2, 31" if BADMAP else "s_lshr_b32 s26, s2, 3")
    A("s_and_b32 s27, s25, 3")
    A("s_lshl_b32 s27, s27, 3")
    A("s_and_b32 s28, s26, 7")
    A("s_add_u32 s27, s27, s28")
    A("s_lshr_b32 s28, s25, 2")
    A("s_lshl_b32 s28, s28, 2")
    A("s_lshr_b32 s29, s26, 3")
    A("s_add_u32 s28, s28, s29")
    A("v_lshrrev_b32 v11, 3, v1")
    A("v_and_b32 v12, 7, v1")
    A("v_lshlrev_b32 v2, 10, v11")
    A("v_lshl_add_u32 v2, v12, 4, v2")
    A("s_lshl_b32 s55, s29, 1")
    A("s_lshr_b32 s54, s25, 2")
    A("s_add_u32 s55, s55, s54")
    if ROT == 1:
        A("s_add_u32 s55, s55, s26")
    A("s_and_b32 s55, s55, 7")
    A("s_waitcnt lgkmcnt(0)")
    srd(A, 12, 4, X_BYTES)
    srd(A, 16, 6, WQKV_BYTES)
    srd(A, 20, 8, WS_BYTES)
    A("s_cmp_ge_u32 s24, 8")
    A("s_cbranch_scc1 %s" % Lld)
    A("s_lshl_b32 s30, s27, 16")
    A("s_lshl_b32 s31, s24, 13")
    A("s_add_u32 s30, s30, s31")
    XR = 32
    for c in range(8):
        A("s_add_u32 s31, s55, %d" % c)
        A("s_and_b32 s31, s31, 7")
        A("s_lshl_b32 s31, s31, 7")
        A("s_add_u32 s31, s31, s30")
        A.vmem("buffer_load_dwordx4 %s, v2, s[12:15], s31 offen%s" % (vr(XR + c * 4, 4), K1NT), "x%d" % c)
    if K1PRE:
        A("s_barrier")
    A("v_xor_b32 v13, v11, v12")
    A("v_lshlrev_b32 v4, 9, v12")
    A("v_lshl_add_u32 v10, v11, 4, v4")
    A("v_lshl_add_u32 v4, v13, 4, v4")
    A("s_lshr_b32 s35, s24, 2")
    A("s_and_b32 s36, s24, 3")
    A("s_lshl_b32 s37, s35, 12")
    A("s_lshl_b32 s38, s36, 7")
    A("s_add_u32 s37, s37, s38")
    A("v_add_u32 v4, s37, v4")
    A("s_lshl_b32 s52, s27, 1")
    A("s_add_u32 s52, s52, s35")
    A("s_lshl_b32 s52, s52, 15")
    A("s_lshl_b32 s53, s55, 12")
    A("s_add_u32 s52, s52, s53")
    A("s_add_u32 s52, s52, s38")
    A("s_add_u32 s52, s52, 0x%x" % XN_OFF)
    A("s_bfe_u32 s35, s24, 0x10001")
    A("s_and_b32 s36, s24, 1")
    A("v_and_b32 v13, 31, v1")
    A("v_lshrrev_b32 v14, 5, v1")
    A("s_lshl_b32 s37, s36, 12")
    for v in range(4):
        A("v_add_u32 v15, %d, v14" % (2 * v))
        A("v_xor_b32 v16, v13, v15")
        A("v_lshlrev_b32 v16, 4, v16")
        A("v_lshl_add_u32 v16, v15, 9, v16")
        A("v_add_u32 v%d, s37, v16" % (5 + v))
    A("v_mul_u32_u24 v9, 3072, v14")
    A("v_bfe_u32 v15, v1, 2, 2")
    A("v_lshl_add_u32 v9, v15, 7, v9")
    A("v_lshrrev_b32 v15, 1, v15")
    A("v_xor_b32 v15, s35, v15")
    A("v_lshl_add_u32 v9, v15, 6, v9")
    A("v_bfe_u32 v15, v1, 4, 1")
    A("v_lshl_add_u32 v9, v15, 5, v9")
    A("v_and_b32 v15, 3, v1")
    A("v_lshl_add_u32 v9, v15, 3, v9")
    A("v_add_u32 v9, %d, v9" % WBASE)
    A("v_lshlrev_b32 v11, 4, v1")
    A("v_bfe_u32 v15, v1, 4, 1")
    A("v_lshlrev_b32 v12, 17, v15")
    A("v_lshl_add_u32 v12, v14, 8, v12")
    A("v_and_b32 v15, 15, v1")
    A("v_lshl_add_u32 v12, v15, 4, v12")
    A("s_lshl_b32 s43, s27, 1")
    A("s_add_u32 s43, s43, s36")
    A("s_lshl_b32 s46, s28, 2")
    A("s_lshl_b32 s47, s35, 1")
    A("s_add_u32 s46, s46, s47")
    A("s_lshl_b32 s47, s46, 16")
    A("s_lshl_b32 s48, s43, 10")
    A("s_add_u32 s47, s47, s48")
    A("s_add_u32 s47, s47, 0x%x" % QF_OFF)
    A("s_add_u32 s48, s47, 65536")
    A("s_lshl_b32 s49, s46, 17")
    A("s_lshl_b32 s50, s43, 11")
    A("s_add_u32 s49, s49, s50")
    A("s_add_u32 s49, s49, 0x%x" % KV_OFF)
    A("s_add_u32 s50, s49, 131072")
    A("s_mov_b32 s51, 0x%x" % QSCALE_BITS)
    ACC = [80, 96, 112]
    for r in range(80, 128):
        A("v_mov_b32 v%d, 0" % r)
    A("s_mov_b32 s56, 1")
    A("s_mov_b32 s57, %d" % WSLOT)
    A("s_mov_b32 s59, 0x%x" % ((-3 * WSLOT) & 0xffffffff))
    A("s_movk_i32 s58, 0x2000")
    A("v_mov_b32 v14, 0x3f803f80")
    A("v_mov_b32 v15, 0xffff0000")
    for i in range(4):
        A("v_mov_b32 v%d, 0" % (16 + i))
    for c in range(8):
        A.wait_vm("x%d" % c)
        for d in range(4):
            r = XR + c * 4 + d
            A("v_dot2c_f32_bf16 v%d, v14, v%d" % (16 + (d & 1), r))
            A("v_dot2c_f32_bf16 v%d, v%d, v%d" % (18 + (d & 1), r, r))
    A("s_nop 2")
    A("v_add_f32 v16, v16, v17")
    A("v_add_f32 v18, v18, v19")
    for mode in ("quad_perm:[1,0,3,2]", "quad_perm:[2,3,0,1]", "row_half_mirror"):
        A("s_nop 0")
        for r in (16, 18):
            A("v_add_f32_dpp v%d, v%d, v%d %s row_mask:0xf bank_mask:0xf" % (r, r, r, mode))
    A("v_mul_f32 v16, 0x3b000000, v16")
    A("v_mul_f32 v18, 0x3b000000, v18")
    A("v_fma_f32 v18, -v16, v16, v18")
    A("v_max_f32 v18, 0, v18")
    A("v_cvt_pk_bf16_f32 v17, v16, v18")
    A("v_lshlrev_b32 v16, 16, v17")
    A("v_and_b32 v18, v15, v17")
    A("v_add_f32 v18, 0x3727c5ac, v18")
    A("v_cvt_pk_bf16_f32 v18, v18, v18")
    A("v_and_b32 v18, v15, v18")
    A("v_sqrt_f32 v18, v18")
    A("s_nop 0")
    A("v_cvt_pk_bf16_f32 v18, v18, v18")
    A("v_and_b32 v18, v15, v18")
    A("v_rcp_f32 v20, v18")
    A("s_nop 0")
    A("v_mul_f32 v21, -v16, v20")
    if asmlib.STAMP:
        A("s_memrealtime s[62:63]")
        A("s_memtime s[64:65]")
    for c in range(8):
        b = XR + c * 4
        T = 64 + 8 * (c & 1)
        for d in range(4):
            A("v_lshlrev_b32 v%d, 16, v%d" % (T + 2 * d, b + d))
            A("v_and_b32 v%d, v15, v%d" % (T + 2 * d + 1, b + d))
        for d in range(8):
            A("v_fma_f32 v%d, v%d, v20, v21" % (T + d, T + d))
        for d in range(4):
            A("v_cvt_pk_bf16_f32 v%d, v%d, v%d" % (b + d, T + 2 * d, T + 2 * d + 1))
        A("ds_write_b128 v4, %s offset:%d" % (vr(b, 4), c * 8192))
    if asmlib.STAMP:
        A("s_memrealtime s[66:67]")
        A("s_memtime s[68:69]")
    A("s_waitcnt lgkmcnt(0)")
    A("s_barrier")
    if asmlib.STAMP:
        A("s_memrealtime s[70:71]")
        A("s_memtime s[72:73]")
        A("s_waitcnt lgkmcnt(0)")
    Lmm = A.label("k1mm")
    A("s_cmp_lt_u32 s24, 4")
    A("s_cbranch_scc1 %s" % Lmm)
    A("buffer_store_dwordx4 %s, v10, s[20:23], s52 offen%s" % (vr(XR, 4), st_flag))
    for i in range(7):
        A("s_barrier")
    A("s_endpgm")
    A("%s:" % Lmm)
    for i in range(4):
        A("v_mov_b32 v%d, v%d" % (132 + i, XR + i))
    BUF = [16, 32, 48, 64]
    A("s_setprio 3")

    def reads(r, part):
        b = BUF[r]
        if part == 0:
            A("ds_read_b128 %s, v%d" % (vr(b, 4), 5 + r))
        for j in range(2):
            A("ds_read_b64_tr_b16 %s, v9 offset:%d" % (vr(b + 4 + 4 * part + 2 * j, 2), r * 6144 + part * 1024 + j * 512))
    for r in range(2):
        for part in range(3):
            reads(r, part)
    Lloop = A.label("k1loop")
    A(".p2align 6")
    A("%s:" % Lloop)
    filler = {(0, 0): "s_and_b32 s53, s56, 3", (0, 1): "s_cselect_b32 s54, s57, s59", (0, 2): "v_add_u32 v5, s58, v5",
              (1, 0): "s_add_u32 s56, s56, 1", (1, 1): "v_add_u32 v6, s58, v6", (1, 2): "v_add_u32 v7, s58, v7",
              (2, 0): "v_add_u32 v8, s58, v8", (2, 1): "s_nop 0", (2, 2): "s_nop 0", (3, 0): "s_nop 0", (3, 1): "s_nop 0", (3, 2): "s_cmp_lg_u32 s56, 9"}
    for r in range(4):
        b = BUF[r]
        ms = [mfma(ACC[0], b + 4, b, ACC[0]), mfma(ACC[1], b + 8, b, ACC[1]), mfma(ACC[2], b, b + 12, ACC[2])]
        for G in range(3):
            A(filler[(r, G)])
            A("s_waitcnt lgkmcnt(%d)" % (11 if G == 0 else 12))
            A(ms[G])
            if r == 2 and G == 0:
                A("s_barrier")
                A("v_add_u32 v9, s54, v9")
            reads((r + 2) & 3, G)
    A("s_cbranch_scc1 %s" % Lloop)
    if asmlib.STAMP:
        A("s_memrealtime s[74:75]")
        A("s_memtime s[76:77]")
    A("buffer_store_dwordx4 v[132:135], v10, s[20:23], s52 offen" + st_flag)
    A("s_nop 6")
    A("s_waitcnt lgkmcnt(0)")
    for t in (1, 2, 0):
        regs = ACC[t]
        if t == 0:
            for r in range(16):
                A("v_mul_f32 v%d, s51, v%d" % (ACC[0] + r, ACC[0] + r))
        for i in range(8):
            A("v_cvt_pk_bf16_f32 v%d, v%d, v%d" % (16 + t * 8 + i, regs + 2 * i, regs + 2 * i + 1))
        if t == 0:
            A("buffer_store_dwordx4 v[16:19], v11, s[20:23], s47 offen" + st_flag)
            A("buffer_store_dwordx4 v[20:23], v11, s[20:23], s48 offen" + st_flag)
        elif t == 1:
            A("buffer_store_dwordx4 v[24:27], v11, s[20:23], s49 offen" + st_flag)
            A("buffer_store_dwordx4 v[28:31], v11, s[20:23], s50 offen" + st_flag)
        else:
            A("buffer_store_dwordx4 v[32:35], v12, s[20:23], s49 offen offset:1024" + st_flag)
            A("buffer_store_dwordx4 v[36:39], v12, s[20:23], s49 offen offset:1536" + st_flag)
    if asmlib.STAMP:
        A("s_waitcnt vmcnt(0)")
        stamp(A, kidx, 5, vt=VT)
        for slot, b in ((0, 62), (1, 62), (2, 66), (3, 70), (4, 74)):
            stamp(A, kidx, slot, vt=VT, saved=b)
    pad_end(A, "k1")
    A("%s:" % Lend)
    A("s_endpgm")

    A("%s:" % Lld)
    A.vm = []
    Lpf = A.label("k1pf")
    A("s_cmp_eq_u32 s24, 11")
    A("s_cbranch_scc1 %s" % Lpf)
    stamp(A, kidx, 0, vt=VT)
    A("v_lshrrev_b32 v13, 2, v1")
    A("v_and_b32 v13, 4, v13")
    A("v_xor_b32 v13, v12, v13")
    A("v_mul_u32_u24 v3, 3072, v11")
    A("v_lshl_add_u32 v3, v13, 4, v3")
    A("s_sub_u32 s29, s24, 8")
    A("s_lshl_b32 s33, s29, 10")
    A("s_lshl_b32 s32, s28, 7")
    A("s_add_u32 s32, s32, s33")
    A("s_add_u32 s33, s33, %d" % WBASE)

    def wdma(c):
        A("s_add_u32 s34, s55, %d" % c)
        A("s_and_b32 s34, s34, 7")
        A("s_mul_i32 s34, s34, %d" % (4 * 49152))
        for i in range(8):
            A("s_add_u32 m0, s33, %d" % ((c & 3) * WSLOT + i * 3072))
            A("s_add_u32 s34, s34, %s" % ("s32" if i == 0 else "24576"))
            A.vmem("buffer_load_dwordx4 v3, s[16:19], s34 offen%s lds" % K1NT, "w%d" % c)
    if K1PRE == 2:
        wdma(0)
    if K1PRE:
        A("s_barrier")
    for c in range(1 if K1PRE == 2 else 0, K1LEAD):
        wdma(c)
    nxt = K1LEAD
    for c in range(8):
        A.wait_vm("w%d" % c)
        if c in (0, 1, 4, 7):
            stamp(A, kidx, {0: 2, 1: 3, 4: 4, 7: 5}[c], vt=VT)
        A("s_barrier")
        if nxt < 8 and nxt <= max(3, c + 2):
            wdma(nxt)
            nxt += 1
    assert nxt == 8
    A("s_endpgm")
    A("%s:" % Lpf)
    if K1TOUCH:
        A("v_lshrrev_b32 v13, 5, v1")
        A("v_bfe_u32 v14, v1, 2, 3")
        A("v_and_b32 v15, 3, v1")
        A("v_min_u32 v15, 2, v15")
        A("v_mul_u32_u24 v5, 3072, v14")
        A("v_lshl_add_u32 v5, v15, 10, v5")
        A("s_and_b32 s37, s26, 7")
        A("s_mul_i32 s37, s37, 24576")
        A("s_lshl_b32 s38, s28, 7")
        A("s_add_u32 s37, s37, s38")
        A("s_mov_b32 s39, %d" % (4 * 49152))
        A("v_add_u32 v13, s55, v13")
        for i in range(4):
            A("v_and_b32 v14, 7, v13")
            A("v_mul_lo_u32 v14, v14, s39")
            A("v_add_u32 v14, v14, v5")
            A("buffer_load_dword v%d, v14, s[16:19], s37 offen" % (16 + i))
            A("v_add_u32 v13, 2, v13")
    if code_bytes:
        Lc = A.label("k1code")
        A("s_cmp_ge_u32 s26, (L_code_end - L_code_pc + 8191) / 8192")
        A("s_cbranch_scc1 %s" % Lc)
        A("s_getpc_b64 s[38:39]")
        A("L_code_pc:")
        A("s_lshl_b32 s37, s26, 13")
        A("v_lshlrev_b32 v15, 7, v1")
        A("v_add_u32 v15, s37, v15")
        A("v_min_u32 v15, L_code_end - L_code_pc - 4, v15")
        A("global_load_dword v14, v15, s[38:39]")
        A("%s:" % Lc)
    Lz = A.label("k1z")
    A("s_cmp_lg_u32 s2, 0")
    A("s_cbranch_scc1 %s" % Lz)
    for i in range(4):
        A("v_mov_b32 v%d, 0" % (24 + i))
    A("v_lshlrev_b32 v6, 4, v1")
    for i in range(CNT_BYTES // 1024):
        A("s_mov_b32 s34, 0x%x" % (CNT_OFF + i * 1024))
        A("buffer_store_dwordx4 v[24:27], v6, s[20:23], s34 offen" + st_flag)
    A("%s:" % Lz)
    if PF:
        A("s_load_dwordx2 s[40:41], s[0:1], 16")
        A("s_load_dwordx4 s[44:47], s[0:1], 32")
        A("v_lshlrev_b32 v9, 7, v1")
        A("s_waitcnt lgkmcnt(0)")
        srd(A, 60, 44, W1_BYTES)
        srd(A, 64, 46, W2_BYTES)
        srd(A, 68, 40, WO_BYTES)
    for i in range(9 if K1PRE else 8):
        A("s_barrier")
        if PF and i == PFAT:
            A("s_mul_i32 s34, s2, %d" % (43 * 128))
            A("v_min_u32 v7, %d, v9" % (42 * 128))
            if PF == 1:
                A("buffer_load_dword v20, v7, s[60:63], s34 offen")
            else:
                A("s_lshl_b32 s35, s26, 13")
                for t in range(6):
                    A("s_add_u32 s36, s35, %d" % (t * 262144))
                    A("buffer_load_dword v%d, v9, s[60:63], s36 offen" % (28 + t))
            A("buffer_load_dword v21, v7, s[64:67], s34 offen")
            A("s_lshl_b32 s34, s2, 11")
            A("v_min_u32 v7, %d, v9" % (15 * 128))
            A("buffer_load_dword v22, v7, s[68:71], s34 offen")
    A("s_endpgm")
    return 136
```

```python
import asmlib
from asmlib import *
from layout import *

Q = 4; NEGM = 16; S = [32, 48]; P = 64; O = 72; KF = [88, 92]; VF = [[96, 100], [104, 108]]
def E(r, e64=False): return "v_exp_f32%s v%d, v%d" % ("_e64" if e64 else "", r, r)
def C(d, r): return "v_cvt_pk_bf16_f32 v%d, v%d, v%d" % (d, r, r + 1)

def att_tile(A, i):
    p = i & 1; s = S[p]; sp = S[p ^ 1]
    A(E(s)); A("s_waitcnt lgkmcnt(0)")
    A(C(P + 7, sp + 14))
    A(E(s + 1)); A(E(s + 2))
    A(mfma(O, VF[p ^ 1][1], P + 4, O))
    A(C(P, s))
    A(E(s + 3)); A("s_mov_b64 exec, s[40:41]")
    A("ds_read_b128 %s, v3 offset:%d" % (vr(VF[p ^ 1][0], 4), (i + 1) * 2048))
    A("ds_read_b128 %s, v3 offset:%d" % (vr(VF[p ^ 1][1], 4), (i + 1) * 2048 + 512))
    A("s_mov_b64 exec, -1"); A(E(s + 4))
    A(C(P + 1, s + 2))
    A(E(s + 5)); A(E(s + 6))
    A(mfma(sp, KF[p ^ 1], Q, NEGM))
    A(C(P + 2, s + 4))
    A(E(s + 7)); A(E(s + 8))
    A("ds_read_b128 %s, v2 offset:%d" % (vr(KF[p], 4), (i + 2) * 2048))
    A(C(P + 3, s + 6))
    A(E(s + 9)); A(E(s + 10))
    A(mfma(O, VF[p][0], P, O))
    A(C(P + 4, s + 8))
    A(E(s + 11)); A(E(s + 12))
    A(C(P + 5, s + 10))
    A(E(s + 13)); A(E(s + 14))
    A(C(P + 6, s + 12))
    A(E(s + 15, e64=True))


def rowmax16(A, dst, s, init=None):
    if init is None:
        A("v_max3_f32 v%d, v%d, v%d, v%d" % (dst, s, s + 1, s + 2))
        rest = list(range(3, 16))
    else:
        A("v_max3_f32 v%d, v%d, v%d, v%d" % (dst, s, s + 1, init))
        rest = list(range(2, 16))
    while len(rest) >= 2:
        A("v_max3_f32 v%d, v%d, v%d, v%d" % (dst, dst, s + rest[0], s + rest[1]))
        rest = rest[2:]
    if rest:
        A("v_max_f32 v%d, v%d, v%d" % (dst, dst, s + rest[0]))


def set_negm(A, m):
    A("v_mov_b32 v9, v%d" % m)
    A("s_nop 1")
    A("v_permlane32_swap_b32 v%d, v9" % m)
    A("s_nop 1")
    A("v_max_f32 v%d, v%d, v9" % (m, m))
    A("v_sub_f32 v%d, 0, v%d" % (NEGM, m))
    for r in range(1, 16):
        A("v_mov_b32 v%d, v%d" % (NEGM + r, NEGM))


WFB = [16, 24]
AF = 32
ACC = 96

def gemm_addr(A, rowstride, kind, s_ring, s_bswap):
    A("v_lshrrev_b32 v6, 3, v1")
    A("v_and_b32 v7, 7, v1")
    A("v_lshrrev_b32 v8, 2, v1")
    A("v_and_b32 v8, 4, v8")
    A("v_xor_b32 v7, v7, v8")
    A("v_mul_u32_u24 v3, %d, v6" % rowstride)
    A("v_lshl_add_u32 v3, v7, 4, v3")
    A("v_lshrrev_b32 v6, 5, v1")
    A("v_lshlrev_b32 v4, %d, v6" % (10 if kind == "x" else 9))
    A("v_bfe_u32 v7, v1, 2, 2")
    A("v_lshl_add_u32 v4, v7, 7, v4")
    A("v_lshrrev_b32 v7, 1, v7")
    if s_bswap:
        A("v_xor_b32 v7, %s, v7" % s_bswap)
    A("v_lshl_add_u32 v4, v7, 6, v4")
    A("v_bfe_u32 v7, v1, 4, 1")
    A("v_lshl_add_u32 v4, v7, 5, v4")
    A("v_and_b32 v7, 3, v1")
    A("v_lshl_add_u32 v4, v7, 3, v4")
    A("v_add_u32 v4, %s, v4" % s_ring)
    A("v_xor_b32 v5, 64, v4")


class Gemm:
    def __init__(self, A, nsteps, DW, DA, kind, rowstride, srdA, srdW, sA0, sA1, sW, s_ring, st, aflag="", rot=None, alds=False):
        self.__dict__.update(locals())
        self.jstep = 512 if kind == "x" else 1024

    def grp(self, dst, s, unit, base):
        A = self.A
        if self.rot is None:
            A("s_add_u32 s%d, s%d, %d" % (dst, base, (s // 4) * unit))
        else:
            A("s_add_u32 s%d, %s, %d" % (dst, self.rot, s // 4))
            A("s_and_b32 s%d, s%d, 7" % (dst, dst))
            A("s_mul_i32 s%d, s%d, %d" % (dst, dst, unit))
            A("s_add_u32 s%d, s%d, s%d" % (dst, dst, base))

    def issue_w(self, s, parts=(0, 1)):
        A = self.A
        if F1REP & 8:
            return
        for hh in parts:
            if s % 4 == 0 and hh == 0:
                self.grp(self.st + 1, s, 64 * self.rowstride, self.sW)
            A("s_add_u32 m0, %s, %d" % (self.s_ring, (s % self.DW) * 2048 + hh * 1024))
            A("s_add_u32 s%d, s%d, %d" % (self.st, self.st + 1, (16 * (s % 4) + 8 * hh) * self.rowstride))
            A.vmem("buffer_load_dwordx4 v3, %s, s%d offen lds" % (sr(self.srdW, 4), self.st), "w%d" % s)

    def issue_a(self, s, parts=(0, 1)):
        A = self.A
        for a in parts:
            if s % 4 == 0 and a == 0:
                self.grp(self.st + 2, s, 4096, self.sA0)
                A("s_add_u32 s%d, s%d, s%d" % (self.st + 3, self.st + 2, self.sA1))
            A.vmem("buffer_load_dwordx4 %s, v2, %s, s%d offen offset:%d%s" % (
                vr(AF + ((s % self.DA) * 2 + a) * 4, 4), sr(self.srdA, 4), self.st + 2 + a, (s % 4) * 1024, self.aflag), "a%d" % s)

    def pre(self, a=True, w=True):
        for s in range(max(self.DW, self.DA)):
            if a and s < self.DA and s < self.nsteps:
                self.issue_a(s)
            if w and s < self.DW and s < self.nsteps:
                self.issue_w(s)

    def reads(self, s, part):
        A = self.A
        if F1REP & 4:
            return
        if self.alds:
            A("ds_read_b128 %s, v14 offset:%d" % (vr(AF + ((s & 1) * 2 + part) * 4, 4), (s // 4) * 8192 + part * 4096 + (s % 4) * 1024))
        for j in range(2):
            A("ds_read_b64_tr_b16 %s, v%d offset:%d" % (vr(WFB[s & 1] + 4 * part + 2 * j, 2), 4 + part, (s % self.DW) * 2048 + j * self.jstep))

    def loop(self, hook=None):
        A = self.A
        n = self.nsteps
        DA = 2 if self.alds else self.DA
        A.wait_vm("w0")
        self.reads(0, 0)
        self.reads(0, 1)
        for s in range(n):
            A.wait_vm("a%d" % s, extra="lgkmcnt(0)")
            if hook:
                hook(s)
            for q in range(4):
                b, a = q >> 1, q & 1
                d = ACC + q * 16
                if not (F1REP & 2):
                    A(mfma(d, WFB[s & 1] + 4 * b, AF + ((s % DA) * 2 + a) * 4, "0" if s == 0 else d))
                if q < 2:
                    if s + 1 < n:
                        if q == 0:
                            A.wait_vm("w%d" % (s + 1))
                        self.reads(s + 1, q)
                    if not self.alds and s >= 1 and s - 1 + self.DA < n:
                        self.issue_a(s - 1 + self.DA, (q,))
                elif s + self.DW < n:
                    self.issue_w(s + self.DW, (q - 2,))


def lds_wait(A, vaddr, off, val, vt, st, sleep=1):
    L = A.label("lw")
    A("s_mov_b32 s%d, 0" % (st + 1))
    A("%s:" % L)
    A("ds_read_b32 v%d, v%d offset:%d" % (vt, vaddr, off))
    A("s_add_u32 s%d, s%d, 1" % (st + 1, st + 1))
    A("s_waitcnt lgkmcnt(0)")
    A("v_readfirstlane_b32 s%d, v%d" % (st, vt))
    A("s_cmp_ge_u32 s%d, %s" % (st, val))
    A("s_cbranch_scc1 %s_d" % L)
    A("s_sleep %d" % sleep)
    A("s_cmp_lt_u32 s%d, 0x200000" % (st + 1))
    A("s_cbranch_scc1 %s" % L)
    A("%s_d:" % L)


def round_bf16(A, regs, tmp, smask):
    for k in range(0, len(regs), 2):
        A("v_cvt_pk_bf16_f32 v%d, v%d, v%d" % (tmp + k // 2, regs[k], regs[k + 1]))
    for k in range(0, len(regs), 2):
        A("v_lshlrev_b32 v%d, 16, v%d" % (regs[k], tmp + k // 2))
        A("v_and_b32 v%d, %s, v%d" % (regs[k + 1], smask, tmp + k // 2))


RING = 131072
FLAG = RING + 30720

def gen_k2(A, name="k2_kernel", kidx=0, prio=(10, 14)):
    VT = (160, 161, 162)
    kernel_begin(A, name)
    Lend = A.label("k2end")
    Laux = A.label("k2aux")
    A("s_cmp_ge_u32 s2, 256")
    A("s_cbranch_scc1 %s" % Lend)
    A("s_load_dwordx2 s[8:9], s[0:1], 64")
    A("s_load_dwordx4 s[4:7], s[0:1], 32")
    A("v_and_b32 v1, 63, v0")
    A("v_lshrrev_b32 v8, 6, v0")
    A("s_lshr_b32 s25, s2, 5" if BADMAP else "s_and_b32 s25, s2, 7")
    A("v_readfirstlane_b32 s24, v8")
    A("s_and_b32 s26, s2, 31" if BADMAP else "s_lshr_b32 s26, s2, 3")
    A("s_lshl_b32 s27, s25, 2")
    A("s_and_b32 s28, s26, 3")
    A("s_add_u32 s27, s27, s28")
    A("s_lshr_b32 s28, s26, 2")
    A("s_waitcnt lgkmcnt(0)")
    srd(A, 20, 8, WS_BYTES)
    srd(A, 12, 4, W1_BYTES)
    srd(A, 16, 6, W2_BYTES)
    A("s_cmp_ge_u32 s24, 8")
    A("s_cbranch_scc1 %s" % Laux)
    A("s_lshl_b32 s29, s28, 3")
    A("s_add_u32 s29, s29, s24")
    A("v_lshlrev_b32 v10, 4, v1")
    A("s_lshl_b32 s30, s27, 16")
    A("s_lshl_b32 s31, s29, 10")
    A("s_add_u32 s30, s30, s31")
    A("s_add_u32 s30, s30, 0x%x" % QF_OFF)
    A.vmem("buffer_load_dwordx4 %s, v10, s[20:23], s30 offen" % vr(Q, 4), "q")
    stamp(A, kidx, 0, vt=VT)
    A("s_setprio %d" % ATTPRIO[0])
    A("s_mov_b32 s40, 0x0000ffff")
    A("s_mov_b32 s41, 0x0000ffff")
    A("v_lshrrev_b32 v8, 5, v1")
    A("v_lshlrev_b32 v11, 8, v8")
    A("v_and_b32 v8, 15, v1")
    A("v_lshl_add_u32 v11, v8, 4, v11")
    A("v_add_u32 v11, 1024, v11")
    if ZROWS:
        A("v_and_b32 v8, 27, v1")
        A("v_cmp_eq_u32 vcc, 16, v8")
        A("v_mov_b32 v8, 0x3f803f80")
        A("s_nop 1")
        A("v_cndmask_b32 v96, 0, v8, vcc")
        for r in range(97, 112):
            A("v_mov_b32 v%d, v96" % r)
    else:
        for r in range(96, 112):
            A("v_mov_b32 v%d, 0x3f803f80" % r)
    for r in range(16):
        A("v_mov_b32 v%d, 0" % (O + r))
    for r in (P + 4, P + 5, P + 6, S[1] + 14, S[1] + 15):
        A("v_mov_b32 v%d, 0" % r)
    A("v_mov_b32 v2, v10")
    A("v_mov_b32 v3, v11")
    A("s_mov_b32 s44, 0")
    A("s_mov_b32 s45, 2")
    A("v_mov_b32 v12, %d" % FLAG)
    A("v_mov_b32 v13, 1")
    A.wait_vm("q")
    A("s_barrier")
    stamp(A, kidx, 1, vt=VT)
    A("ds_read_b128 %s, v2" % vr(KF[0], 4))
    A("ds_read_b128 %s, v2 offset:2048" % vr(KF[1], 4))
    A("s_mov_b64 exec, s[40:41]")
    A("ds_read_b128 %s, v3" % vr(VF[0][0], 4))
    A("ds_read_b128 %s, v3 offset:512" % vr(VF[0][1], 4))
    A("s_mov_b64 exec, -1")
    A("s_waitcnt lgkmcnt(3)")
    A(mfma(S[0], KF[0], Q, "0"))
    A("s_nop 11")
    rowmax16(A, 8, S[0])
    set_negm(A, 8)
    A("s_nop 1")
    A(mfma(S[0], KF[0], Q, NEGM))
    A("s_nop 11")
    if NOATT:
        A("s_mov_b64 exec, 1")
        A("ds_add_u32 v12, v13 offset:4")
        A("s_endpgm")
    Lloop = A.label("attloop")
    Ldone = A.label("attdone")
    A(".p2align 6")
    A("%s:" % Lloop)
    for i in range(4):
        att_tile(A, i)
    A("v_add_u32 v2, 0x2000, v2")
    A("v_add_u32 v3, 0x2000, v3")
    A("s_add_u32 s44, s44, 1")
    A("s_cmp_lg_u32 s44, s45")
    A("s_cbranch_scc1 %s" % Lloop)
    def signal():
        A("s_mov_b64 exec, 1")
        A("ds_add_u32 v12, v13 offset:4")
        A("s_mov_b64 exec, -1")
    def kvw(v):
        return lambda: lds_wait(A, 12, 0, v, 14, 46)
    evs = {2: [lambda: lds_wait(A, 12, 20, 4, 14, 46)], 4: [signal], 7: [kvw(1)], 11: [kvw(2)]}
    evs.setdefault(prio[0], []).append(lambda: A("s_setprio %d" % ATTPRIO[1]))
    evs.setdefault(prio[1], []).append(lambda: A("s_setprio %d" % ATTPRIO[2]))
    keys = sorted(evs)
    ev = [(k, (lambda fs: (lambda: [f() for f in fs]))(evs[k]), (keys + [16])[i + 1]) for i, k in enumerate(keys)]
    for at, code, nxt in ev:
        Ln = A.label("attev")
        A("s_cmp_lg_u32 s44, %d" % at)
        A("s_cbranch_scc1 %s" % Ln)
        code()
        A("s_mov_b32 s45, %d" % nxt)
        A("s_branch %s" % Lloop)
        A("%s:" % Ln)
    A(C(P + 7, S[1] + 14))
    A("s_nop 1")
    A(mfma(O, VF[1][1], P + 4, O))
    stamp(A, kidx, 2, vt=VT)
    Lok = A.label("attok")
    A("s_nop 11")
    A("v_mul_f32 v8, 0, v%d" % O)
    for r in range(1, 8):
        A("v_fma_f32 v8, v%d, 0, v8" % (O + r))
    A("s_mov_b32 s45, 0x5f800000")
    A("v_cmp_u_f32 vcc, v8, v8")
    A("v_cmp_ngt_f32 s[46:47], s45, v%d" % (O + 8))
    A("s_nop 1")
    A("s_or_b64 s[46:47], s[46:47], vcc")
    A("s_cbranch_scc0 %s" % Lok)
    Lf1 = A.label("attf1")
    Lf2 = A.label("attf2")
    A("s_lshl_b32 s31, s27, 17")
    A("s_add_u32 s31, s31, 0x%x" % KV_OFF)
    A("s_mov_b32 s32, s31")
    A("s_mov_b32 s44, 64")
    A("v_mov_b32 v8, 0xff800000")
    A("%s:" % Lf1)
    A("buffer_load_dwordx4 %s, v10, s[20:23], s32 offen" % vr(KF[0], 4))
    A("s_add_u32 s32, s32, 2048")
    A("s_waitcnt vmcnt(0)")
    A(mfma(S[0], KF[0], Q, "0"))
    A("s_nop 11")
    rowmax16(A, 8, S[0], init=8)
    A("s_sub_u32 s44, s44, 1")
    A("s_cmp_lg_u32 s44, 0")
    A("s_cbranch_scc1 %s" % Lf1)
    set_negm(A, 8)
    for r in range(16):
        A("v_mov_b32 v%d, 0" % (O + r))
    A("s_mov_b32 s32, s31")
    A("s_mov_b32 s44, 64")
    A("%s:" % Lf2)
    A("buffer_load_dwordx4 %s, v10, s[20:23], s32 offen" % vr(KF[0], 4))
    A("s_mov_b64 exec, s[40:41]")
    A("buffer_load_dwordx4 %s, v11, s[20:23], s32 offen" % vr(VF[0][0], 4))
    A("buffer_load_dwordx4 %s, v11, s[20:23], s32 offen offset:512" % vr(VF[0][1], 4))
    A("s_mov_b64 exec, -1")
    A("s_add_u32 s32, s32, 2048")
    A("s_waitcnt vmcnt(0)")
    A(mfma(S[0], KF[0], Q, NEGM))
    A("s_nop 11")
    for r in range(16):
        A(E(S[0] + r))
    A("s_nop 0")
    for i in range(8):
        A(C(P + i, S[0] + 2 * i))
    A("s_nop 1")
    A(mfma(O, VF[0][0], P, O))
    A(mfma(O, VF[0][1], P + 4, O))
    A("s_sub_u32 s44, s44, 1")
    A("s_cmp_lg_u32 s44, 0")
    A("s_cbranch_scc1 %s" % Lf2)
    A("s_nop 11")
    A("%s:" % Lok)
    A("v_rcp_f32 v8, v%d" % (O + 8))
    A("s_lshl_b32 s30, s29, 15")
    A("s_lshl_b32 s31, s27, 10")
    A("s_add_u32 s30, s30, s31")
    A("s_add_u32 s30, s30, 0x%x" % OF_OFF)
    for r in range(8):
        A("v_mul_f32 v%d, v%d, v8" % (O + r, O + r))
    for i in range(4):
        A(C(P + i, O + 2 * i))
    A("buffer_store_dwordx4 %s, v10, s[20:23], s30 offen" % vr(P, 4))
    if asmlib.STAMP:
        A("s_waitcnt vmcnt(0)")
    stamp(A, kidx, 3, vt=VT)
    A("%s:" % Lend)
    A("s_endpgm")

    A("%s:" % Laux)
    A.vm = []
    A("s_setprio 3")
    A("s_sub_u32 s29, s24, 8")
    A("v_lshlrev_b32 v2, 4, v1")
    A("s_lshl_b32 s31, s27, 17")
    A("s_add_u32 s31, s31, 0x%x" % KV_OFF)
    A("s_lshl_b32 s32, s29, 10")
    def kvb(lo, hi, tag):
        for i in range(lo, hi):
            A("s_add_u32 m0, s32, %d" % (i * 4096))
            A("s_add_u32 s34, m0, s31")
            A.vmem("buffer_load_dwordx4 v2, s[20:23], s34 offen lds", tag)
    kvb(0, 5, "kv")
    stamp(A, kidx, 0, vt=VT)
    A("v_mov_b32 v10, %d" % FLAG)
    A("v_mov_b32 v11, 0")
    A("v_mov_b32 v12, 1")
    A("s_lshr_b32 s46, s29, 1")
    A("s_and_b32 s47, s29, 1")

    def region(dst, a, b):
        A("s_mul_i32 s%d, %s, 15360" % (dst, a))
        A("s_add_u32 s%d, s%d, %d" % (dst, dst, RING))
        A("s_lshl_b32 s49, %s, 14" % a)
        A("s_cmp_eq_u32 %s, 0" % b)
        A("s_cselect_b32 s%d, s49, s%d" % (dst, dst))

    def lds_inc(off):
        A("s_mov_b64 exec, 1")
        A("ds_add_u32 v10, v12 offset:%d" % off)
        A("s_mov_b64 exec, -1")

    def f2_setup():
        region(30, "s47", "s46")
        gemm_addr(A, 1024, "d", "s30", "s46")
        A("s_mul_i32 s33, s29, %d" % (22 * 16 * 1024))
        A("s_lshl_b32 s34, s28, 7")
        A("s_add_u32 s33, s33, s34")
        lds_wait(A, 10, 4, 8, 13, 42)
        lds_wait(A, 10, 28, 3, 13, 42)
        G2.pre(a=False)
    G2 = Gemm(A, 22, 7, 8, "d", 1024, 20, 16, 31, 32, 33, "s30", 34, aflag=" sc0 sc1")
    A("s_lshl_b32 s55, s27, 8")
    A("s_add_u32 s55, s55, 0x%x" % CNT_OFF)
    A("s_and_b32 s40, s26, 3")
    A("s_lshl_b32 s40, s40, 1")
    A("s_lshl_b32 s38, s27, 16")
    A("s_add_u32 s38, s38, 0x%x" % XN_OFF)

    def xn_block(sidx, tag):
        A("s_lshr_b32 s43, %s, 1" % sidx)
        A("s_add_u32 s43, s43, s40")
        A("s_and_b32 s43, s43, 7")
        A("s_lshl_b32 s43, s43, 12")
        A("s_and_b32 s44, %s, 1" % sidx)
        A("s_lshl_b32 s44, s44, 15")
        A("s_add_u32 s43, s43, s44")
        A("s_lshl_b32 s44, %s, 12" % sidx)
        A("s_add_u32 m0, s44, 65536")
        A("s_add_u32 s43, s43, s38")
        for u in range(4):
            A.vmem("buffer_load_dwordx4 v2, s[20:23], s43 offen offset:%d lds" % (u * 1024), tag)
    Lw3 = A.label("aux3")
    Lf2 = A.label("auxf2")
    A("s_cmp_eq_u32 s29, 3")
    A("s_cbranch_scc1 %s" % Lw3)
    A("s_mul_i32 s30, s29, 10240")
    A("s_add_u32 s30, s30, %d" % RING)
    A("s_mul_i32 s39, s28, 3")
    A("s_add_u32 s39, s39, s29")
    gemm_addr(A, 2752, "x", "s30", None)
    A("v_add_u32 v14, 65536, v2")
    A("s_lshl_b32 s33, s39, 7")
    G1 = Gemm(A, 32, 5, 0, "x", 2752, 20, 12, 31, 32, 33, "s30", 34, rot="s40", alds=True)
    A.wait_vm("kv")
    A("s_barrier")
    stamp(A, kidx, 1, vt=VT)
    kvb(5, 16, "xn1")
    if not NOFFN:
        xn_block("s29", "xn1")
        G1.pre(a=False)
    A.wait_vm("xn1")
    lds_inc(20)
    if NOFFN:
        A("s_endpgm")
    A("s_add_u32 s41, s29, 4")
    Lnof1 = A.label("nof1")
    Lf1sig = A.label("f1sig")
    A("s_cmp_ge_u32 s39, 22")
    A("s_cbranch_scc1 %s" % Lnof1)
    lds_wait(A, 10, 20, 4, 13, 42)
    A("s_setprio %d" % AUXPRIO)
    stamp(A, kidx, 2, vt=VT)

    def f1hook(s):
        if s < 4:
            xn_block("s41", "xn2")
            A("s_add_u32 s41, s41, 3")
        if s == 6:
            A.wait_vm("xn2")
            lds_inc(32)
        if s == 7:
            lds_wait(A, 10, 32, 3, 13, 42)
        if s == 16:
            lds_inc(24)
    G1.loop(f1hook)
    A("s_setprio 3")
    stamp(A, kidx, 3, vt=VT)
    A("s_mul_i32 s31, s27, %d" % (2 * HF_MB))
    A("s_lshl_b32 s32, s39, 12")
    A("s_add_u32 s31, s31, s32")
    A("s_add_u32 s31, s31, 0x%x" % HF_OFF)
    A("s_add_u32 s32, s31, %d" % HF_MB)
    A("s_nop 7")
    for b in range(2):
        for a in range(2):
            d = ACC + (b * 2 + a) * 16
            o = AF + (b * 2 + a) * 8
            for i in range(8):
                A(C(o + i, d + 2 * i))
            for i in range(8):
                A("v_pk_max_i16 v%d, v%d, 0" % (o + i, o + i))
            for j in range(2):
                A("buffer_store_dwordx4 %s, v2, s[20:23], s%d offen offset:%d sc0 sc1" % (vr(o + 4 * j, 4), 31 + a, (2 * b + j) * 1024))
    A("s_branch %s" % Lf1sig)
    A("%s:" % Lnof1)
    for t in range(4):
        xn_block("s41", "xn2")
        A("s_add_u32 s41, s41, 3")
    A("s_waitcnt vmcnt(0)")
    lds_inc(32)
    lds_inc(24)
    A("%s:" % Lf1sig)
    lds_inc(28)
    A.vm = ["h"]
    f2_setup()
    A.wait_vm("h")
    A("s_mov_b64 exec, 1")
    A("ds_add_rtn_u32 v13, v10, v12 offset:8")
    A("s_waitcnt lgkmcnt(0)")
    A("v_readfirstlane_b32 s42, v13")
    A("s_lshl_b32 s43, s28, 2")
    A("v_mov_b32 v13, s43")
    Lnp = A.label("nopub")
    A("s_cmp_lg_u32 s42, 2")
    A("s_cbranch_scc1 %s" % Lnp)
    A("buffer_store_dword v12, v13, s[20:23], s55 offen sc0 sc1")
    A("%s:" % Lnp)
    A("s_mov_b64 exec, -1")
    stamp(A, kidx, 4, vt=VT)
    A("s_cmp_lg_u32 s29, 0")
    A("s_cbranch_scc1 %s" % Lf2)
    A("v_and_b32 v13, 7, v1")
    A("v_lshlrev_b32 v13, 2, v13")
    Lp = A.label("poll")
    A("s_mov_b32 s42, 0")
    A("%s:" % Lp)
    A("buffer_load_dword v14, v13, s[20:23], s55 offen sc0 sc1")
    A("s_add_u32 s42, s42, 1")
    A("s_waitcnt vmcnt(0)")
    A("v_cmp_ne_u32 vcc, 1, v14")
    A("s_nop 4")
    A("s_cbranch_vccz %s_d" % Lp)
    A("s_sleep 1")
    A("s_cmp_lt_u32 s42, 0x40000")
    A("s_cbranch_scc1 %s" % Lp)
    A("%s_d:" % Lp)
    A("ds_write_b32 v10, v12 offset:12")
    A("s_branch %s" % Lf2)
    A("%s:" % Lw3)
    A("v_lshlrev_b32 v13, 2, v1")
    A("v_add_u32 v13, v10, v13")
    A("ds_write_b32 v13, v11")
    A.vm = ["kv"]
    A.wait_vm("kv", extra="lgkmcnt(0)")
    A("s_barrier")
    stamp(A, kidx, 1, vt=VT)
    kvb(5, 16, "xn1")
    if not NOFFN:
        xn_block("s29", "xn1")
    A.wait_vm("xn1")
    lds_inc(20)
    A("s_mov_b32 s32, %d" % (64 * 1024))

    def kvrun(end, cnt, val):
        Lk = A.label("kvl")
        A("%s:" % Lk)
        A("s_mov_b32 m0, s32")
        A("s_add_u32 s34, s32, s31")
        A("s_add_u32 s32, s32, 4096")
        for u in range(4):
            A("buffer_load_dwordx4 v2, s[20:23], s34 offen offset:%d lds" % (u * 1024))
        A("s_cmp_lg_u32 s32, %d" % (end * 1024))
        A("s_cbranch_scc1 %s" % Lk)
        A("v_mov_b32 v13, %d" % val)
        A("s_waitcnt vmcnt(%d)" % cnt)
        A("ds_write_b32 v10, v13")
    stamp(A, kidx, 2, vt=VT)
    if not NOFFN:
        lds_wait(A, 10, 24, 3, 13, 42)
    kvrun(96, 0, 1)
    stamp(A, kidx, 3, vt=VT)
    if TOUCH and not NOFFN:
        A("v_lshlrev_b32 v9, 7, v1")
        A("s_lshl_b32 s35, s26, 13")
        for i in range(6):
            A("s_add_u32 s36, s35, %d" % (i * 262144))
            A("buffer_load_dword v%d, v9, s[16:19], s36 offen" % (16 + i))
            A("s_waitcnt vmcnt(1)")
    if not NOFFN:
        lds_wait(A, 10, 28, 3, 13, 42)
    kvrun(128, 0, 2)
    stamp(A, kidx, 4, vt=VT)
    if NOFFN:
        A("s_endpgm")
    A.vm = []
    f2_setup()
    A("%s:" % Lf2)
    A("s_xor_b32 s50, s47, 1")
    A("s_xor_b32 s51, s46, 1")
    region(52, "s50", "s46")
    region(53, "s47", "s51")
    region(54, "s50", "s51")
    A("s_mul_i32 s31, s27, %d" % (2 * HF_MB))
    A("s_add_u32 s31, s31, 0x%x" % HF_OFF)
    A("s_lshl_b32 s49, s28, 2")
    A("s_add_u32 s49, s49, s29")
    A("s_mul_i32 s49, s49, %d" % (44 * 128))
    A("s_add_u32 s49, s49, s31")
    A("s_mul_i32 s32, s29, %d" % (22 * 1024))
    A("s_add_u32 s31, s31, s32")
    A("s_mul_i32 s38, s47, %d" % HF_MB)
    A("s_add_u32 s31, s31, s38")
    A("s_lshl_b32 s38, s38, 1")
    A("s_sub_u32 s32, %d, s38" % HF_MB)
    A("v_min_u32 v9, 43, v1")
    A("v_lshlrev_b32 v9, 7, v9")
    lds_wait(A, 10, 12, 1, 13, 42)
    stamp(A, kidx, 5, vt=VT)
    if TOUCH:
        A.vmem("buffer_load_dword v13, v9, s[20:23], s49 offen sc0 sc1", "t")
    G2.pre(w=False)
    A("s_setprio %d" % AUXPRIO)
    G2.loop()
    A("s_setprio 3")
    stamp(A, kidx, 6, vt=VT)
    A("v_add_u32 v6, s30, v2")
    A("v_add_u32 v7, s52, v2")
    A("v_add_u32 v8, s53, v2")
    A("v_add_u32 v9, s54, v2")
    A("s_nop 7")
    for j in (1, 2, 3):
        for g in range(4):
            A("ds_write_b128 v6, %s offset:%d" % (vr(ACC + j * 16 + 4 * g, 4), (j - 1) * 4096 + g * 1024))
    A("s_waitcnt lgkmcnt(0)")
    A("s_mov_b64 exec, 1")
    A("ds_add_u32 v10, v12 offset:16")
    A("s_mov_b64 exec, -1")
    lds_wait(A, 10, 16, 4, 13, 42)
    for j in (1, 2, 3):
        for g in range(4):
            A("ds_read_b128 %s, v%d offset:%d" % (vr(ACC + j * 16 + 4 * g, 4), 6 + j, (j - 1) * 4096 + g * 1024))
    A("s_waitcnt lgkmcnt(0)")
    for r in range(16):
        A("v_add_f32 v%d, v%d, v%d" % (ACC + r, ACC + r, ACC + 16 + r))
        A("v_add_f32 v%d, v%d, v%d" % (ACC + 32 + r, ACC + 32 + r, ACC + 48 + r))
    for r in range(16):
        A("v_add_f32 v%d, v%d, v%d" % (ACC + r, ACC + r, ACC + 32 + r))
    A("s_mov_b32 s41, 0xffff0000")
    regs = list(range(ACC, ACC + 16))
    round_bf16(A, regs, 16, "s41")
    for r in regs:
        A("v_mul_f32 v%d, 0x%x, v%d" % (r + 16, f32bits(-LOG2E), r))
    for r in regs:
        A("v_exp_f32 v%d, v%d" % (r + 16, r + 16))
    for r in regs:
        A("v_add_f32 v%d, 1.0, v%d" % (r + 16, r + 16))
    for r in regs:
        A("v_rcp_f32 v%d, v%d" % (r + 16, r + 16))
    for r in regs:
        A("v_mul_f32 v%d, v%d, v%d" % (r, r, r + 16))
    for k in range(8):
        A(C(16 + k, ACC + 2 * k))
    A("s_lshl_b32 s31, s27, 16")
    A("s_lshl_b32 s32, s28, 13")
    A("s_add_u32 s31, s31, s32")
    A("s_lshl_b32 s32, s29, 11")
    A("s_add_u32 s31, s31, s32")
    A("s_add_u32 s31, s31, 0x%x" % G_OFF)
    A("buffer_store_dwordx4 v[16:19], v2, s[20:23], s31 offen")
    A("buffer_store_dwordx4 v[20:23], v2, s[20:23], s31 offen offset:1024")
    if asmlib.STAMP:
        A("s_waitcnt vmcnt(0)")
    stamp(A, kidx, 7, vt=VT)
    A("s_endpgm")
    return 164


def gen_k3(A, name="k3_kernel", kidx=0):
    VT = (176, 177, 178)
    kernel_begin(A, name)
    Lend = A.label("k3end")
    A("s_cmp_ge_u32 s2, 256")
    A("s_cbranch_scc1 %s" % Lend)
    A("s_load_dwordx2 s[4:5], s[0:1], 16")
    A("s_load_dwordx2 s[6:7], s[0:1], 0")
    A("s_load_dwordx2 s[8:9], s[0:1], 64")
    A("s_load_dwordx2 s[10:11], s[0:1], 48")
    A("v_and_b32 v1, 63, v0")
    A("v_lshrrev_b32 v8, 6, v0")
    A("s_lshr_b32 s25, s2, 5" if BADMAP else "s_and_b32 s25, s2, 7")
    A("v_readfirstlane_b32 s24, v8")
    A("s_and_b32 s26, s2, 31" if BADMAP else "s_lshr_b32 s26, s2, 3")
    A("s_lshl_b32 s27, s25, 2")
    A("s_and_b32 s28, s26, 3")
    A("s_add_u32 s27, s27, s28")
    A("s_lshr_b32 s28, s26, 2")
    A("v_lshlrev_b32 v2, 4, v1")
    A("s_lshl_b32 s30, s24, 14")
    A("s_lshr_b32 s46, s24, 1")
    A("s_and_b32 s47, s24, 1")
    gemm_addr(A, 1024, "d", "s30", "s46")
    A("s_waitcnt lgkmcnt(0)")
    srd(A, 12, 6, X_BYTES)
    srd(A, 16, 4, WO_BYTES)
    srd(A, 20, 8, WS_BYTES)
    srd(A, 36, 10, X_BYTES)
    A("s_lshl_b32 s31, s27, 16")
    A("s_lshl_b32 s32, s24, 13")
    A("s_add_u32 s31, s31, s32")
    A("s_add_u32 s31, s31, 0x%x" % OF_OFF)
    A("s_lshl_b32 s48, s47, 15")
    A("s_add_u32 s31, s31, s48")
    A("s_lshl_b32 s32, s48, 1")
    A("s_sub_u32 s32, 32768, s32")
    A("s_lshl_b32 s33, s24, 17")
    A("s_lshl_b32 s34, s28, 7")
    A("s_add_u32 s33, s33, s34")
    G = Gemm(A, 8, 8, 8, "d", 1024, 20, 16, 31, 32, 33, "s30", 50)
    G.pre()
    stamp(A, kidx, 0, vt=VT)
    A("v_and_b32 v6, 31, v1")
    A("v_lshrrev_b32 v7, 5, v1")
    A("v_lshlrev_b32 v10, 10, v6")
    A("v_lshl_add_u32 v10, v7, 4, v10")
    A("s_lshl_b32 s42, s27, 16")
    A("s_add_u32 s42, s42, s48")
    A("s_lshl_b32 s43, s28, 7")
    A("s_add_u32 s42, s42, s43")
    A("s_lshl_b32 s43, s46, 6")
    A("s_add_u32 s42, s42, s43")
    A("s_lshl_b32 s44, s27, 16")
    A("s_lshl_b32 s45, s28, 13")
    A("s_add_u32 s44, s44, s45")
    A("s_lshl_b32 s45, s24, 11")
    A("s_add_u32 s44, s44, s45")
    A("s_add_u32 s44, s44, 0x%x" % G_OFF)
    A.vmem("buffer_load_dwordx4 v[160:163], v2, s[20:23], s44 offen", "g")
    A.vmem("buffer_load_dwordx4 v[164:167], v2, s[20:23], s44 offen offset:1024", "g")
    A.vmem("buffer_load_dwordx4 v[168:171], v10, s[12:15], s42 offen", "g")
    A.vmem("buffer_load_dwordx4 v[172:175], v10, s[12:15], s42 offen offset:32", "g")
    G.loop()
    stamp(A, kidx, 2, vt=VT)
    A("v_add_u32 v6, s30, v2")
    A("s_nop 10")
    for j in (1, 2, 3):
        for g in range(4):
            A("ds_write_b128 v6, %s offset:%d" % (vr(ACC + j * 16 + 4 * g, 4), j * 4096 + g * 1024))
    A("v_xor_b32 v7, 0x4000, v6")
    A("v_xor_b32 v8, 0x8000, v6")
    A("v_xor_b32 v9, 0xc000, v6")
    A("s_waitcnt lgkmcnt(0)")
    A("s_barrier")
    for j in (1, 2, 3):
        for g in range(4):
            A("ds_read_b128 %s, v%d offset:%d" % (vr(ACC + j * 16 + 4 * g, 4), 6 + j, j * 4096 + g * 1024))
    A("s_mov_b32 s41, 0xffff0000")
    A.wait_vm("g")
    for k in range(8):
        A("v_lshlrev_b32 v%d, 16, v%d" % (32 + 2 * k, 160 + k))
        A("v_and_b32 v%d, s41, v%d" % (33 + 2 * k, 160 + k))
    for k in range(8):
        A("v_lshlrev_b32 v%d, 16, v%d" % (48 + 2 * k, 168 + k))
        A("v_and_b32 v%d, s41, v%d" % (49 + 2 * k, 168 + k))
    A("s_waitcnt lgkmcnt(0)")
    for r in range(16):
        A("v_add_f32 v%d, v%d, v%d" % (ACC + r, ACC + r, ACC + 16 + r))
        A("v_add_f32 v%d, v%d, v%d" % (ACC + 32 + r, ACC + 32 + r, ACC + 48 + r))
    for r in range(16):
        A("v_add_f32 v%d, v%d, v%d" % (ACC + r, ACC + r, ACC + 32 + r))
    regs = list(range(ACC, ACC + 16))
    round_bf16(A, regs, 16, "s41")
    for r in range(16):
        A("v_mul_f32 v%d, v%d, v%d" % (ACC + r, ACC + r, 32 + r))
    for k in range(8):
        A(C(16 + k, ACC + 2 * k))
    A("s_nop 1")
    for k in (0, 1, 4, 5):
        A("v_permlane32_swap_b32 v%d, v%d" % (16 + k, 18 + k))
    A("s_nop 0")
    for k in range(8):
        A("v_lshlrev_b32 v%d, 16, v%d" % (32 + 2 * k, 16 + k))
        A("v_and_b32 v%d, s41, v%d" % (33 + 2 * k, 16 + k))
    for r in range(16):
        A("v_add_f32 v%d, v%d, v%d" % (32 + r, 32 + r, 48 + r))
    for k in range(8):
        A(C(16 + k, 32 + 2 * k))
    A("buffer_store_dwordx4 v[16:19], v10, s[36:39], s42 offen")
    A("buffer_store_dwordx4 v[20:23], v10, s[36:39], s42 offen offset:32")
    if asmlib.STAMP:
        A("s_waitcnt vmcnt(0)")
    stamp(A, kidx, 3, vt=VT)
    A("%s:" % Lend)
    A("s_endpgm")
    return 180
```

```python
import sys
import asmlib
from asmlib import *
if "--stamp" in sys.argv:
    asmlib.STAMP = True
    sys.argv.remove("--stamp")
import k1, k2
NAME = "recurrent_scan__softmax_full_mha__dense_activation_relu__prompt"
hdr = open("cdna_kernels/%s.s.ref" % NAME).read().split("; Override launch")[0]
import os
CODE = int(os.environ.get('CODE', '1'))
A = Asm()
ks = []
ks.append(("k1_kernel", k1.gen_k1(A, kidx=0, code_bytes=CODE, st_flag=os.environ.get('ST', ' sc0 sc1')), 256, 768, k1.K1_LDS))
ks.append(("k2_kernel", k2.gen_k2(A, kidx=1), 256, 768, 163840))
order = os.environ.get('ORDER', '')
if order:
    kernel_begin(A, "nop_kernel"); A("s_endpgm")
    ks.append(("nop_kernel", 8, 256, 256, 0))
out = hdr
for n, v, g, b, l in ([ks[int(c)] for c in order] if order else ks):
    out += "; @launch kernel=%s grid=(%d,1,1) block=(%d,1,1) lds=%d\n" % (n, g, b, l)
out += '.amdgcn_target "amdgcn-amd-amdhsa--gfx950"\n.text\n' + A.text() + 'L_code_end:\n'
out += '.section .rodata,"a"\n'
for n, v, g, b, l in ks:
    out += descriptor(n, v)
dst = sys.argv[1] if len(sys.argv) > 1 else "cdna_kernels/%s.s" % NAME
open(dst, "w").write(out)
print("wrote", dst, len(out))
```

```python
class Asm:
    def __init__(self):
        self.lines = []
        self.vm = []
        self.lg = []
        self.uid = 0

    def __call__(self, s=""):
        for ln in s.split("\n"):
            ln = ln.strip()
            if not ln:
                continue
            if ln.endswith(":") or ln.startswith("."):
                self.lines.append(ln)
            else:
                self.lines.append("    " + ln)

    def c(self, s):
        self.lines.append("    ; " + s)

    def label(self, base):
        self.uid += 1
        return "L_%s_%d" % (base, self.uid)

    def vmem(self, s, tag):
        self(s)
        self.vm.append(tag)

    def wait_vm(self, *tags, extra=""):
        last = -1
        for i, t in enumerate(self.vm):
            if t in tags:
                last = i
        if last < 0:
            if extra:
                self("s_waitcnt " + extra)
            return
        n = len(self.vm) - 1 - last
        assert n <= 63
        self("s_waitcnt vmcnt(%d) %s" % (n, extra))
        self.vm = self.vm[last + 1:]

    def lds(self, s, tag):
        self(s)
        self.lg.append(tag)

    def wait_lds(self, *tags):
        last = -1
        for i, t in enumerate(self.lg):
            if t in tags:
                last = i
        if last < 0:
            return
        n = len(self.lg) - 1 - last
        if n > 15:
            last = len(self.lg) - 1 - 15
            n = 15
        self("s_waitcnt lgkmcnt(%d)" % n)
        self.lg = self.lg[last + 1:]

    def text(self):
        return "\n".join(self.lines) + "\n"


def vr(b, n=1):
    return "v%d" % b if n == 1 else "v[%d:%d]" % (b, b + n - 1)


def sr(b, n=1):
    return "s%d" % b if n == 1 else "s[%d:%d]" % (b, b + n - 1)


def mfma(d, a, b, c):
    cs = c if isinstance(c, str) else vr(c, 16)
    return "v_mfma_f32_32x32x16_bf16 %s, %s, %s, %s" % (vr(d, 16), vr(a, 4), vr(b, 4), cs)


def srd(A, d, base, nbytes):
    A("s_mov_b32 s%d, s%d" % (d, base))
    A("s_mov_b32 s%d, s%d" % (d + 1, base + 1))
    A("s_mov_b32 s%d, 0x%x" % (d + 2, nbytes))
    A("s_mov_b32 s%d, 0x00020000" % (d + 3))


def kernel_begin(A, name):
    A.lines.append(".globl %s" % name)
    A.lines.append(".p2align 8")
    A.lines.append(".type %s,@function" % name)
    A.lines.append("%s:" % name)
    A.vm = []


def descriptor(name, nvgpr, nsgpr=96):
    acc = (nvgpr + 3) // 4 * 4
    return """.p2align 6
.amdhsa_kernel %s
  .amdhsa_next_free_vgpr %d
  .amdhsa_next_free_sgpr %d
  .amdhsa_accum_offset %d
  .amdhsa_group_segment_fixed_size 0
  .amdhsa_kernarg_size 72
  .amdhsa_user_sgpr_count 2
  .amdhsa_user_sgpr_kernarg_segment_ptr 1
  .amdhsa_system_sgpr_workgroup_id_x 1
.end_amdhsa_kernel
""" % (name, nvgpr, nsgpr, min(acc, 256))


STAMP = False
TS_OFF = 24 << 20
def stamp(A, kidx, slot, srd_ws=20, wave="s24", t=88, vt=(250, 251, 252), saved=None):
    import asmlib
    if not asmlib.STAMP:
        return
    if saved is None:
        A("s_memrealtime s[%d:%d]" % (t, t + 1))
        A("s_memtime s[%d:%d]" % (t + 2, t + 3))
    else:
        A("s_waitcnt lgkmcnt(0)")
        A("s_mov_b32 s%d, s%d" % (t, saved))
        A("s_mov_b32 s%d, s%d" % (t + 2, saved + 2))
    A("s_lshl_b32 s%d, s2, 4" % (t + 4))
    A("s_add_u32 s%d, s%d, %s" % (t + 4, t + 4, wave))
    A("s_lshl_b32 s%d, s%d, 7" % (t + 4, t + 4))
    A("s_add_u32 s%d, s%d, 0x%x" % (t + 4, t + 4, TS_OFF + kidx * 256 * 16 * 128 + slot * 8))
    A("s_waitcnt lgkmcnt(0)")
    A.lg = []
    A("v_mov_b32 v%d, s%d" % (vt[0], t))
    A("v_mov_b32 v%d, s%d" % (vt[1], t + 2))
    A("v_mov_b32 v%d, 0" % vt[2])
    A.vmem("buffer_store_dwordx2 v[%d:%d], v%d, s[%d:%d], s%d offen" % (vt[0], vt[1], vt[2], srd_ws, srd_ws + 3, t + 4), "stamp")


import os
PADK = os.environ.get("PADK", "")
PADT = int(os.environ.get("PADT", "0"))
def pad_begin(A, name):
    if PADK.startswith(name):
        A("s_memrealtime s[80:81]")
def pad_end(A, name):
    import asmlib
    if name == asmlib.PADK:
        L = A.label("pad")
        A("%s:" % L)
        A("s_memrealtime s[82:83]")
        A("s_waitcnt lgkmcnt(0)")
        A("s_sub_u32 s82, s82, s80")
        A("s_cmp_lt_u32 s82, %d" % PADT)
        A("s_cbranch_scc1 %s" % L)
```

```python
import asmlib
from asmlib import *
from layout import *

Q = 4; NEGM = 16; S = [32, 48]; P = 64; O = 72; KF = [88, 92]; VF = [[96, 100], [104, 108]]
def E(r, e64=False): return "v_exp_f32%s v%d, v%d" % ("_e64" if e64 else "", r, r)
def C(d, r): return "v_cvt_pk_bf16_f32 v%d, v%d, v%d" % (d, r, r + 1)

def att_tile(A, i):
    p = i & 1; s = S[p]; sp = S[p ^ 1]
    A(E(s)); A("s_waitcnt lgkmcnt(0)")
    A(C(P + 7, sp + 14))
    A(E(s + 1)); A(E(s + 2))
    A(mfma(O, VF[p ^ 1][1], P + 4, O))
    A(C(P, s))
    A(E(s + 3)); A("s_mov_b64 exec, s[40:41]")
    A("ds_read_b128 %s, v3 offset:%d" % (vr(VF[p ^ 1][0], 4), (i + 1) * 2048))
    A("ds_read_b128 %s, v3 offset:%d" % (vr(VF[p ^ 1][1], 4), (i + 1) * 2048 + 512))
    A("s_mov_b64 exec, -1"); A(E(s + 4))
    A(C(P + 1, s + 2))
    A(E(s + 5)); A(E(s + 6))
    A(mfma(sp, KF[p ^ 1], Q, NEGM))
    A(C(P + 2, s + 4))
    A(E(s + 7)); A(E(s + 8))
    A("ds_read_b128 %s, v2 offset:%d" % (vr(KF[p], 4), (i + 2) * 2048))
    A(C(P + 3, s + 6))
    A(E(s + 9)); A(E(s + 10))
    A(mfma(O, VF[p][0], P, O))
    A(C(P + 4, s + 8))
    A(E(s + 11)); A(E(s + 12))
    A(C(P + 5, s + 10))
    A(E(s + 13)); A(E(s + 14))
    A(C(P + 6, s + 12))
    A(E(s + 15, e64=True))


def rowmax16(A, dst, s, init=None):
    if init is None:
        A("v_max3_f32 v%d, v%d, v%d, v%d" % (dst, s, s + 1, s + 2))
        rest = list(range(3, 16))
    else:
        A("v_max3_f32 v%d, v%d, v%d, v%d" % (dst, s, s + 1, init))
        rest = list(range(2, 16))
    while len(rest) >= 2:
        A("v_max3_f32 v%d, v%d, v%d, v%d" % (dst, dst, s + rest[0], s + rest[1]))
        rest = rest[2:]
    if rest:
        A("v_max_f32 v%d, v%d, v%d" % (dst, dst, s + rest[0]))


def set_negm(A, m):
    A("v_mov_b32 v9, v%d" % m)
    A("s_nop 1")
    A("v_permlane32_swap_b32 v%d, v9" % m)
    A("s_nop 1")
    A("v_max_f32 v%d, v%d, v9" % (m, m))
    A("v_sub_f32 v%d, 0, v%d" % (NEGM, m))
    for r in range(1, 16):
        A("v_mov_b32 v%d, v%d" % (NEGM + r, NEGM))


WFB = [16, 24]
AF = 32
ACC = 96

def gemm_addr(A, rowstride, kind, s_ring, s_bswap):
    A("v_lshrrev_b32 v6, 3, v1")
    A("v_and_b32 v7, 7, v1")
    A("v_lshrrev_b32 v8, 2, v1")
    A("v_and_b32 v8, 4, v8")
    A("v_xor_b32 v7, v7, v8")
    A("v_mul_u32_u24 v3, %d, v6" % rowstride)
    A("v_lshl_add_u32 v3, v7, 4, v3")
    A("v_lshrrev_b32 v6, 5, v1")
    A("v_lshlrev_b32 v4, %d, v6" % (10 if kind == "x" else 9))
    A("v_bfe_u32 v7, v1, 2, 2")
    A("v_lshl_add_u32 v4, v7, 7, v4")
    A("v_lshrrev_b32 v7, 1, v7")
    if s_bswap:
        A("v_xor_b32 v7, %s, v7" % s_bswap)
    A("v_lshl_add_u32 v4, v7, 6, v4")
    A("v_bfe_u32 v7, v1, 4, 1")
    A("v_lshl_add_u32 v4, v7, 5, v4")
    A("v_and_b32 v7, 3, v1")
    A("v_lshl_add_u32 v4, v7, 3, v4")
    A("v_add_u32 v4, %s, v4" % s_ring)
    A("v_xor_b32 v5, 64, v4")


class Gemm:
    def __init__(self, A, nsteps, DW, DA, kind, rowstride, srdA, srdW, sA0, sA1, sW, s_ring, st, aflag="", rot=None, alds=False):
        self.__dict__.update(locals())
        self.jstep = 512 if kind == "x" else 1024

    def grp(self, dst, s, unit, base):
        A = self.A
        if self.rot is None:
            A("s_add_u32 s%d, s%d, %d" % (dst, base, (s // 4) * unit))
        else:
            A("s_add_u32 s%d, %s, %d" % (dst, self.rot, s // 4))
            A("s_and_b32 s%d, s%d, 7" % (dst, dst))
            A("s_mul_i32 s%d, s%d, %d" % (dst, dst, unit))
            A("s_add_u32 s%d, s%d, s%d" % (dst, dst, base))

    def issue_w(self, s, parts=(0, 1)):
        A = self.A
        if F1REP & 8:
            return
        for hh in parts:
            if s % 4 == 0 and hh == 0:
                self.grp(self.st + 1, s, 64 * self.rowstride, self.sW)
            A("s_add_u32 m0, %s, %d" % (self.s_ring, (s % self.DW) * 2048 + hh * 1024))
            A("s_add_u32 s%d, s%d, %d" % (self.st, self.st + 1, (16 * (s % 4) + 8 * hh) * self.rowstride))
            A.vmem("buffer_load_dwordx4 v3, %s, s%d offen lds" % (sr(self.srdW, 4), self.st), "w%d" % s)

    def issue_a(self, s, parts=(0, 1)):
        A = self.A
        for a in parts:
            if s % 4 == 0 and a == 0:
                self.grp(self.st + 2, s, 4096, self.sA0)
                A("s_add_u32 s%d, s%d, s%d" % (self.st + 3, self.st + 2, self.sA1))
            A.vmem("buffer_load_dwordx4 %s, v2, %s, s%d offen offset:%d%s" % (
                vr(AF + ((s % self.DA) * 2 + a) * 4, 4), sr(self.srdA, 4), self.st + 2 + a, (s % 4) * 1024, self.aflag), "a%d" % s)

    def pre(self, a=True, w=True):
        for s in range(max(self.DW, self.DA)):
            if a and s < self.DA and s < self.nsteps:
                self.issue_a(s)
            if w and s < self.DW and s < self.nsteps:
                self.issue_w(s)

    def reads(self, s, part):
        A = self.A
        if F1REP & 4:
            return
        if self.alds:
            A("ds_read_b128 %s, v14 offset:%d" % (vr(AF + ((s & 1) * 2 + part) * 4, 4), (s // 4) * 8192 + part * 4096 + (s % 4) * 1024))
        for j in range(2):
            A("ds_read_b64_tr_b16 %s, v%d offset:%d" % (vr(WFB[s & 1] + 4 * part + 2 * j, 2), 4 + part, (s % self.DW) * 2048 + j * self.jstep))

    def loop(self, hook=None):
        A = self.A
        n = self.nsteps
        DA = 2 if self.alds else self.DA
        A.wait_vm("w0")
        self.reads(0, 0)
        self.reads(0, 1)
        for s in range(n):
            A.wait_vm("a%d" % s, extra="lgkmcnt(0)")
            if hook:
                hook(s)
            for q in range(4):
                b, a = q >> 1, q & 1
                d = ACC + q * 16
                if not (F1REP & 2):
                    A(mfma(d, WFB[s & 1] + 4 * b, AF + ((s % DA) * 2 + a) * 4, "0" if s == 0 else d))
                if q < 2:
                    if s + 1 < n:
                        if q == 0:
                            A.wait_vm("w%d" % (s + 1))
                        self.reads(s + 1, q)
                    if not self.alds and s >= 1 and s - 1 + self.DA < n:
                        self.issue_a(s - 1 + self.DA, (q,))
                elif s + self.DW < n:
                    self.issue_w(s + self.DW, (q - 2,))


def lds_wait(A, vaddr, off, val, vt, st, sleep=1):
    L = A.label("lw")
    A("s_mov_b32 s%d, 0" % (st + 1))
    A("%s:" % L)
    A("ds_read_b32 v%d, v%d offset:%d" % (vt, vaddr, off))
    A("s_add_u32 s%d, s%d, 1" % (st + 1, st + 1))
    A("s_waitcnt lgkmcnt(0)")
    A("v_readfirstlane_b32 s%d, v%d" % (st, vt))
    A("s_cmp_ge_u32 s%d, %s" % (st, val))
    A("s_cbranch_scc1 %s_d" % L)
    A("s_sleep %d" % sleep)
    A("s_cmp_lt_u32 s%d, 0x200000" % (st + 1))
    A("s_cbranch_scc1 %s" % L)
    A("%s_d:" % L)


def round_bf16(A, regs, tmp, smask):
    for k in range(0, len(regs), 2):
        A("v_cvt_pk_bf16_f32 v%d, v%d, v%d" % (tmp + k // 2, regs[k], regs[k + 1]))
    for k in range(0, len(regs), 2):
        A("v_lshlrev_b32 v%d, 16, v%d" % (regs[k], tmp + k // 2))
        A("v_and_b32 v%d, %s, v%d" % (regs[k + 1], smask, tmp + k // 2))


RING = 131072
FLAG = RING + 30720

def gen_k2(A, name="k2_kernel", kidx=0, prio=(10, 14)):
    VT = (160, 161, 162)
    kernel_begin(A, name)
    Lend = A.label("k2end")
    Laux = A.label("k2aux")
    A("s_cmp_ge_u32 s2, 256")
    A("s_cbranch_scc1 %s" % Lend)
    pad_begin(A, "k2")
    A("s_load_dwordx2 s[8:9], s[0:1], 64")
    A("s_load_dwordx4 s[4:7], s[0:1], 32")
    A("v_and_b32 v1, 63, v0")
    A("v_lshrrev_b32 v8, 6, v0")
    A("s_lshr_b32 s25, s2, 5" if BADMAP else "s_and_b32 s25, s2, 7")
    A("v_readfirstlane_b32 s24, v8")
    A("s_and_b32 s26, s2, 31" if BADMAP else "s_lshr_b32 s26, s2, 3")
    A("s_lshl_b32 s27, s25, 2")
    A("s_and_b32 s28, s26, 3")
    A("s_add_u32 s27, s27, s28")
    A("s_lshr_b32 s28, s26, 2")
    A("s_waitcnt lgkmcnt(0)")
    srd(A, 20, 8, WS_BYTES)
    srd(A, 12, 4, W1_BYTES)
    srd(A, 16, 6, W2_BYTES)
    A("s_cmp_ge_u32 s24, 8")
    A("s_cbranch_scc1 %s" % Laux)
    A("s_lshl_b32 s29, s28, 3")
    A("s_add_u32 s29, s29, s24")
    A("v_lshlrev_b32 v10, 4, v1")
    A("s_lshl_b32 s30, s27, 16")
    A("s_lshl_b32 s31, s29, 10")
    A("s_add_u32 s30, s30, s31")
    A("s_add_u32 s30, s30, 0x%x" % QF_OFF)
    A.vmem("buffer_load_dwordx4 %s, v10, s[20:23], s30 offen" % vr(Q, 4), "q")
    stamp(A, kidx, 0, vt=VT)
    A("s_setprio %d" % ATTPRIO[0])
    A("s_mov_b32 s40, 0x0000ffff")
    A("s_mov_b32 s41, 0x0000ffff")
    A("v_lshrrev_b32 v8, 5, v1")
    A("v_lshlrev_b32 v11, 8, v8")
    A("v_and_b32 v8, 15, v1")
    A("v_lshl_add_u32 v11, v8, 4, v11")
    A("v_add_u32 v11, 1024, v11")
    if ZROWS:
        A("v_and_b32 v8, 27, v1")
        A("v_cmp_eq_u32 vcc, 16, v8")
        A("v_mov_b32 v8, 0x3f803f80")
        A("s_nop 1")
        A("v_cndmask_b32 v96, 0, v8, vcc")
        for r in range(97, 112):
            A("v_mov_b32 v%d, v96" % r)
    else:
        for r in range(96, 112):
            A("v_mov_b32 v%d, 0x3f803f80" % r)
    for r in range(16):
        A("v_mov_b32 v%d, 0" % (O + r))
    for r in (P + 4, P + 5, P + 6, S[1] + 14, S[1] + 15):
        A("v_mov_b32 v%d, 0" % r)
    A("v_mov_b32 v2, v10")
    A("v_mov_b32 v3, v11")
    A("s_mov_b32 s44, 0")
    A("s_mov_b32 s45, 2")
    A("v_mov_b32 v12, %d" % FLAG)
    A("v_mov_b32 v13, 1")
    A.wait_vm("q")
    A("s_barrier")
    stamp(A, kidx, 1, vt=VT)
    A("ds_read_b128 %s, v2" % vr(KF[0], 4))
    A("ds_read_b128 %s, v2 offset:2048" % vr(KF[1], 4))
    A("s_mov_b64 exec, s[40:41]")
    A("ds_read_b128 %s, v3" % vr(VF[0][0], 4))
    A("ds_read_b128 %s, v3 offset:512" % vr(VF[0][1], 4))
    A("s_mov_b64 exec, -1")
    A("s_waitcnt lgkmcnt(3)")
    A(mfma(S[0], KF[0], Q, "0"))
    A("s_nop 11")
    rowmax16(A, 8, S[0])
    set_negm(A, 8)
    A("s_nop 1")
    A(mfma(S[0], KF[0], Q, NEGM))
    A("s_nop 11")
    if NOATT:
        A("s_mov_b64 exec, 1")
        A("ds_add_u32 v12, v13 offset:4")
        A("s_endpgm")
    Lloop = A.label("attloop")
    Ldone = A.label("attdone")
    A(".p2align 6")
    A("%s:" % Lloop)
    for i in range(4):
        att_tile(A, i)
    A("v_add_u32 v2, 0x2000, v2")
    A("v_add_u32 v3, 0x2000, v3")
    A("s_add_u32 s44, s44, 1")
    A("s_cmp_lg_u32 s44, s45")
    A("s_cbranch_scc1 %s" % Lloop)
    def signal():
        A("s_mov_b64 exec, 1")
        A("ds_add_u32 v12, v13 offset:4")
        A("s_mov_b64 exec, -1")
    def kvw(v):
        return lambda: lds_wait(A, 12, 0, v, 14, 46)
    evs = {2: [lambda: lds_wait(A, 12, 20, 4, 14, 46)], 4: [signal], 7: [kvw(1)], 11: [kvw(2)]}
    evs.setdefault(prio[0], []).append(lambda: A("s_setprio %d" % ATTPRIO[1]))
    evs.setdefault(prio[1], []).append(lambda: A("s_setprio %d" % ATTPRIO[2]))
    keys = sorted(evs)
    ev = [(k, (lambda fs: (lambda: [f() for f in fs]))(evs[k]), (keys + [16])[i + 1]) for i, k in enumerate(keys)]
    for at, code, nxt in ev:
        Ln = A.label("attev")
        A("s_cmp_lg_u32 s44, %d" % at)
        A("s_cbranch_scc1 %s" % Ln)
        code()
        A("s_mov_b32 s45, %d" % nxt)
        A("s_branch %s" % Lloop)
        A("%s:" % Ln)
    A(C(P + 7, S[1] + 14))
    A("s_nop 1")
    A(mfma(O, VF[1][1], P + 4, O))
    stamp(A, kidx, 2, vt=VT)
    Lok = A.label("attok")
    A("s_nop 11")
    A("v_mul_f32 v8, 0, v%d" % O)
    for r in range(1, 8):
        A("v_fma_f32 v8, v%d, 0, v8" % (O + r))
    A("s_mov_b32 s45, 0x5f800000")
    A("v_cmp_u_f32 vcc, v8, v8")
    A("v_cmp_ngt_f32 s[46:47], s45, v%d" % (O + 8))
    A("s_nop 1")
    A("s_or_b64 s[46:47], s[46:47], vcc")
    A("s_cbranch_scc0 %s" % Lok)
    Lf1 = A.label("attf1")
    Lf2 = A.label("attf2")
    A("s_lshl_b32 s31, s27, 17")
    A("s_add_u32 s31, s31, 0x%x" % KV_OFF)
    A("s_mov_b32 s32, s31")
    A("s_mov_b32 s44, 64")
    A("v_mov_b32 v8, 0xff800000")
    A("%s:" % Lf1)
    A("buffer_load_dwordx4 %s, v10, s[20:23], s32 offen" % vr(KF[0], 4))
    A("s_add_u32 s32, s32, 2048")
    A("s_waitcnt vmcnt(0)")
    A(mfma(S[0], KF[0], Q, "0"))
    A("s_nop 11")
    rowmax16(A, 8, S[0], init=8)
    A("s_sub_u32 s44, s44, 1")
    A("s_cmp_lg_u32 s44, 0")
    A("s_cbranch_scc1 %s" % Lf1)
    set_negm(A, 8)
    for r in range(16):
        A("v_mov_b32 v%d, 0" % (O + r))
    A("s_mov_b32 s32, s31")
    A("s_mov_b32 s44, 64")
    A("%s:" % Lf2)
    A("buffer_load_dwordx4 %s, v10, s[20:23], s32 offen" % vr(KF[0], 4))
    A("s_mov_b64 exec, s[40:41]")
    A("buffer_load_dwordx4 %s, v11, s[20:23], s32 offen" % vr(VF[0][0], 4))
    A("buffer_load_dwordx4 %s, v11, s[20:23], s32 offen offset:512" % vr(VF[0][1], 4))
    A("s_mov_b64 exec, -1")
    A("s_add_u32 s32, s32, 2048")
    A("s_waitcnt vmcnt(0)")
    A(mfma(S[0], KF[0], Q, NEGM))
    A("s_nop 11")
    for r in range(16):
        A(E(S[0] + r))
    A("s_nop 0")
    for i in range(8):
        A(C(P + i, S[0] + 2 * i))
    A("s_nop 1")
    A(mfma(O, VF[0][0], P, O))
    A(mfma(O, VF[0][1], P + 4, O))
    A("s_sub_u32 s44, s44, 1")
    A("s_cmp_lg_u32 s44, 0")
    A("s_cbranch_scc1 %s" % Lf2)
    A("s_nop 11")
    A("%s:" % Lok)
    A("v_rcp_f32 v8, v%d" % (O + 8))
    A("s_lshl_b32 s30, s29, 15")
    A("s_lshl_b32 s31, s27, 10")
    A("s_add_u32 s30, s30, s31")
    A("s_add_u32 s30, s30, 0x%x" % OF_OFF)
    for r in range(8):
        A("v_mul_f32 v%d, v%d, v8" % (O + r, O + r))
    for i in range(4):
        A(C(P + i, O + 2 * i))
    A("buffer_store_dwordx4 %s, v10, s[20:23], s30 offen" % vr(P, 4))
    if asmlib.STAMP:
        A("s_waitcnt vmcnt(0)")
    stamp(A, kidx, 3, vt=VT)
    pad_end(A, "k2")
    A("%s:" % Lend)
    A("s_endpgm")

    A("%s:" % Laux)
    A.vm = []
    A("s_setprio 3")
    A("s_sub_u32 s29, s24, 8")
    A("v_lshlrev_b32 v2, 4, v1")
    A("s_lshl_b32 s31, s27, 17")
    A("s_add_u32 s31, s31, 0x%x" % KV_OFF)
    A("s_lshl_b32 s32, s29, 10")
    def kvb(lo, hi, tag):
        for i in range(lo, hi):
            A("s_add_u32 m0, s32, %d" % (i * 4096))
            A("s_add_u32 s34, m0, s31")
            A.vmem("buffer_load_dwordx4 v2, s[20:23], s34 offen lds", tag)
    kvb(0, 5, "kv")
    stamp(A, kidx, 0, vt=VT)
    A("v_mov_b32 v10, %d" % FLAG)
    A("v_mov_b32 v11, 0")
    A("v_mov_b32 v12, 1")
    A("s_lshr_b32 s46, s29, 1")
    A("s_and_b32 s47, s29, 1")

    def region(dst, a, b):
        A("s_mul_i32 s%d, %s, 15360" % (dst, a))
        A("s_add_u32 s%d, s%d, %d" % (dst, dst, RING))
        A("s_lshl_b32 s49, %s, 14" % a)
        A("s_cmp_eq_u32 %s, 0" % b)
        A("s_cselect_b32 s%d, s49, s%d" % (dst, dst))

    def lds_inc(off):
        A("s_mov_b64 exec, 1")
        A("ds_add_u32 v10, v12 offset:%d" % off)
        A("s_mov_b64 exec, -1")

    def f2_setup():
        region(30, "s47", "s46")
        gemm_addr(A, 1024, "d", "s30", "s46")
        A("s_mul_i32 s33, s29, %d" % (22 * 16 * 1024))
        A("s_lshl_b32 s34, s28, 7")
        A("s_add_u32 s33, s33, s34")
        lds_wait(A, 10, 4, 8, 13, 42)
        lds_wait(A, 10, 28, 3, 13, 42)
        G2.pre(a=False)
    G2 = Gemm(A, 22, 7, 8, "d", 1024, 20, 16, 31, 32, 33, "s30", 34, aflag=" sc0 sc1")
    A("s_lshl_b32 s55, s27, 8")
    A("s_add_u32 s55, s55, 0x%x" % CNT_OFF)
    A("s_and_b32 s40, s26, 3")
    A("s_lshl_b32 s40, s40, 1")
    A("s_lshl_b32 s38, s27, 16")
    A("s_add_u32 s38, s38, 0x%x" % XN_OFF)

    def xn_block(sidx, tag):
        A("s_lshr_b32 s43, %s, 1" % sidx)
        A("s_add_u32 s43, s43, s40")
        A("s_and_b32 s43, s43, 7")
        A("s_lshl_b32 s43, s43, 12")
        A("s_and_b32 s44, %s, 1" % sidx)
        A("s_lshl_b32 s44, s44, 15")
        A("s_add_u32 s43, s43, s44")
        A("s_lshl_b32 s44, %s, 12" % sidx)
        A("s_add_u32 m0, s44, 65536")
        A("s_add_u32 s43, s43, s38")
        for u in range(4):
            A.vmem("buffer_load_dwordx4 v2, s[20:23], s43 offen offset:%d lds" % (u * 1024), tag)
    Lw3 = A.label("aux3")
    Lf2 = A.label("auxf2")
    A("s_cmp_eq_u32 s29, 3")
    A("s_cbranch_scc1 %s" % Lw3)
    A("s_mul_i32 s30, s29, 10240")
    A("s_add_u32 s30, s30, %d" % RING)
    A("s_mul_i32 s39, s28, 3")
    A("s_add_u32 s39, s39, s29")
    gemm_addr(A, 2752, "x", "s30", None)
    A("v_add_u32 v14, 65536, v2")
    A("s_lshl_b32 s33, s39, 7")
    G1 = Gemm(A, 32, 5, 0, "x", 2752, 20, 12, 31, 32, 33, "s30", 34, rot="s40", alds=True)
    A.wait_vm("kv")
    A("s_barrier")
    stamp(A, kidx, 1, vt=VT)
    kvb(5, 16, "xn1")
    if not NOFFN:
        xn_block("s29", "xn1")
        G1.pre(a=False)
    A.wait_vm("xn1")
    lds_inc(20)
    if NOFFN:
        A("s_endpgm")
    A("s_add_u32 s41, s29, 4")
    Lnof1 = A.label("nof1")
    Lf1sig = A.label("f1sig")
    A("s_cmp_ge_u32 s39, 22")
    A("s_cbranch_scc1 %s" % Lnof1)
    lds_wait(A, 10, 20, 4, 13, 42)
    A("s_setprio %d" % AUXPRIO)
    stamp(A, kidx, 2, vt=VT)

    def f1hook(s):
        if s < 4:
            xn_block("s41", "xn2")
            A("s_add_u32 s41, s41, 3")
        if s == 6:
            A.wait_vm("xn2")
            lds_inc(32)
        if s == 7:
            lds_wait(A, 10, 32, 3, 13, 42)
        if s == 16:
            lds_inc(24)
    G1.loop(f1hook)
    A("s_setprio 3")
    stamp(A, kidx, 3, vt=VT)
    A("s_mul_i32 s31, s27, %d" % (2 * HF_MB))
    A("s_lshl_b32 s32, s39, 12")
    A("s_add_u32 s31, s31, s32")
    A("s_add_u32 s31, s31, 0x%x" % HF_OFF)
    A("s_add_u32 s32, s31, %d" % HF_MB)
    A("s_nop 7")
    for b in range(2):
        for a in range(2):
            d = ACC + (b * 2 + a) * 16
            o = AF + (b * 2 + a) * 8
            for i in range(8):
                A(C(o + i, d + 2 * i))
            for i in range(8):
                A("v_pk_max_i16 v%d, v%d, 0" % (o + i, o + i))
            for j in range(2):
                A("buffer_store_dwordx4 %s, v2, s[20:23], s%d offen offset:%d sc0 sc1" % (vr(o + 4 * j, 4), 31 + a, (2 * b + j) * 1024))
    A("s_branch %s" % Lf1sig)
    A("%s:" % Lnof1)
    for t in range(4):
        xn_block("s41", "xn2")
        A("s_add_u32 s41, s41, 3")
    A("s_waitcnt vmcnt(0)")
    lds_inc(32)
    lds_inc(24)
    A("%s:" % Lf1sig)
    lds_inc(28)
    A.vm = ["h"]
    f2_setup()
    A.wait_vm("h")
    A("s_mov_b64 exec, 1")
    A("ds_add_rtn_u32 v13, v10, v12 offset:8")
    A("s_waitcnt lgkmcnt(0)")
    A("v_readfirstlane_b32 s42, v13")
    A("s_lshl_b32 s43, s28, 2")
    A("v_mov_b32 v13, s43")
    Lnp = A.label("nopub")
    A("s_cmp_lg_u32 s42, 2")
    A("s_cbranch_scc1 %s" % Lnp)
    A("buffer_store_dword v12, v13, s[20:23], s55 offen sc0 sc1")
    A("%s:" % Lnp)
    A("s_mov_b64 exec, -1")
    stamp(A, kidx, 4, vt=VT)
    A("s_cmp_lg_u32 s29, 0")
    A("s_cbranch_scc1 %s" % Lf2)
    A("v_and_b32 v13, 7, v1")
    A("v_lshlrev_b32 v13, 2, v13")
    Lp = A.label("poll")
    A("s_mov_b32 s42, 0")
    A("%s:" % Lp)
    A("buffer_load_dword v14, v13, s[20:23], s55 offen sc0 sc1")
    A("s_add_u32 s42, s42, 1")
    A("s_waitcnt vmcnt(0)")
    A("v_cmp_ne_u32 vcc, 1, v14")
    A("s_nop 4")
    A("s_cbranch_vccz %s_d" % Lp)
    A("s_sleep 1")
    A("s_cmp_lt_u32 s42, 0x40000")
    A("s_cbranch_scc1 %s" % Lp)
    A("%s_d:" % Lp)
    A("ds_write_b32 v10, v12 offset:12")
    A("s_branch %s" % Lf2)
    A("%s:" % Lw3)
    A("v_lshlrev_b32 v13, 2, v1")
    A("v_add_u32 v13, v10, v13")
    A("ds_write_b32 v13, v11")
    A.vm = ["kv"]
    A.wait_vm("kv", extra="lgkmcnt(0)")
    A("s_barrier")
    stamp(A, kidx, 1, vt=VT)
    kvb(5, 16, "xn1")
    if not NOFFN:
        xn_block("s29", "xn1")
    A.wait_vm("xn1")
    lds_inc(20)
    A("s_mov_b32 s32, %d" % (64 * 1024))

    def kvrun(end, cnt, val):
        Lk = A.label("kvl")
        A("%s:" % Lk)
        A("s_mov_b32 m0, s32")
        A("s_add_u32 s34, s32, s31")
        A("s_add_u32 s32, s32, 4096")
        for u in range(4):
            A("buffer_load_dwordx4 v2, s[20:23], s34 offen offset:%d lds" % (u * 1024))
        A("s_cmp_lg_u32 s32, %d" % (end * 1024))
        A("s_cbranch_scc1 %s" % Lk)
        A("v_mov_b32 v13, %d" % val)
        A("s_waitcnt vmcnt(%d)" % cnt)
        A("ds_write_b32 v10, v13")
    stamp(A, kidx, 2, vt=VT)
    if not NOFFN:
        lds_wait(A, 10, 24, 3, 13, 42)
    kvrun(96, 0, 1)
    stamp(A, kidx, 3, vt=VT)
    if TOUCH and not NOFFN:
        A("v_lshlrev_b32 v9, 7, v1")
        A("s_lshl_b32 s35, s26, 13")
        for i in range(6):
            A("s_add_u32 s36, s35, %d" % (i * 262144))
            A("buffer_load_dword v%d, v9, s[16:19], s36 offen" % (16 + i))
            A("s_waitcnt vmcnt(1)")
    if not NOFFN:
        lds_wait(A, 10, 28, 3, 13, 42)
    kvrun(128, 0, 2)
    stamp(A, kidx, 4, vt=VT)
    if NOFFN:
        A("s_endpgm")
    A.vm = []
    f2_setup()
    A("%s:" % Lf2)
    A("s_xor_b32 s50, s47, 1")
    A("s_xor_b32 s51, s46, 1")
    region(52, "s50", "s46")
    region(53, "s47", "s51")
    region(54, "s50", "s51")
    A("s_mul_i32 s31, s27, %d" % (2 * HF_MB))
    A("s_add_u32 s31, s31, 0x%x" % HF_OFF)
    A("s_lshl_b32 s49, s28, 2")
    A("s_add_u32 s49, s49, s29")
    A("s_mul_i32 s49, s49, %d" % (44 * 128))
    A("s_add_u32 s49, s49, s31")
    A("s_mul_i32 s32, s29, %d" % (22 * 1024))
    A("s_add_u32 s31, s31, s32")
    A("s_mul_i32 s38, s47, %d" % HF_MB)
    A("s_add_u32 s31, s31, s38")
    A("s_lshl_b32 s38, s38, 1")
    A("s_sub_u32 s32, %d, s38" % HF_MB)
    A("v_min_u32 v9, 43, v1")
    A("v_lshlrev_b32 v9, 7, v9")
    lds_wait(A, 10, 12, 1, 13, 42)
    stamp(A, kidx, 5, vt=VT)
    if TOUCH:
        A.vmem("buffer_load_dword v13, v9, s[20:23], s49 offen sc0 sc1", "t")
    G2.pre(w=False)
    A("s_setprio %d" % AUXPRIO)
    G2.loop()
    A("s_setprio 3")
    stamp(A, kidx, 6, vt=VT)
    A("v_add_u32 v6, s30, v2")
    A("v_add_u32 v7, s52, v2")
    A("v_add_u32 v8, s53, v2")
    A("v_add_u32 v9, s54, v2")
    A("s_nop 7")
    for j in (1, 2, 3):
        for g in range(4):
            A("ds_write_b128 v6, %s offset:%d" % (vr(ACC + j * 16 + 4 * g, 4), (j - 1) * 4096 + g * 1024))
    A("s_waitcnt lgkmcnt(0)")
    A("s_mov_b64 exec, 1")
    A("ds_add_u32 v10, v12 offset:16")
    A("s_mov_b64 exec, -1")
    lds_wait(A, 10, 16, 4, 13, 42)
    for j in (1, 2, 3):
        for g in range(4):
            A("ds_read_b128 %s, v%d offset:%d" % (vr(ACC + j * 16 + 4 * g, 4), 6 + j, (j - 1) * 4096 + g * 1024))
    A("s_waitcnt lgkmcnt(0)")
    for r in range(16):
        A("v_add_f32 v%d, v%d, v%d" % (ACC + r, ACC + r, ACC + 16 + r))
        A("v_add_f32 v%d, v%d, v%d" % (ACC + 32 + r, ACC + 32 + r, ACC + 48 + r))
    for r in range(16):
        A("v_add_f32 v%d, v%d, v%d" % (ACC + r, ACC + r, ACC + 32 + r))
    A("s_mov_b32 s41, 0xffff0000")
    regs = list(range(ACC, ACC + 16))
    round_bf16(A, regs, 16, "s41")
    for r in regs:
        A("v_mul_f32 v%d, 0x%x, v%d" % (r + 16, f32bits(-LOG2E), r))
    for r in regs:
        A("v_exp_f32 v%d, v%d" % (r + 16, r + 16))
    for r in regs:
        A("v_add_f32 v%d, 1.0, v%d" % (r + 16, r + 16))
    for r in regs:
        A("v_rcp_f32 v%d, v%d" % (r + 16, r + 16))
    for r in regs:
        A("v_mul_f32 v%d, v%d, v%d" % (r, r, r + 16))
    for k in range(8):
        A(C(16 + k, ACC + 2 * k))
    A("s_lshl_b32 s31, s27, 16")
    A("s_lshl_b32 s32, s28, 13")
    A("s_add_u32 s31, s31, s32")
    A("s_lshl_b32 s32, s29, 11")
    A("s_add_u32 s31, s31, s32")
    A("s_add_u32 s31, s31, 0x%x" % G_OFF)
    A("buffer_store_dwordx4 v[16:19], v2, s[20:23], s31 offen")
    A("buffer_store_dwordx4 v[20:23], v2, s[20:23], s31 offen offset:1024")
    if asmlib.STAMP:
        A("s_waitcnt vmcnt(0)")
    stamp(A, kidx, 7, vt=VT)
    A("s_endpgm")
    return 164


def gen_k3(A, name="k3_kernel", kidx=0):
    VT = (176, 177, 178)
    kernel_begin(A, name)
    Lend = A.label("k3end")
    A("s_cmp_ge_u32 s2, 256")
    A("s_cbranch_scc1 %s" % Lend)
    pad_begin(A, "k3")
    A("s_load_dwordx2 s[4:5], s[0:1], 16")
    A("s_load_dwordx2 s[6:7], s[0:1], 0")
    A("s_load_dwordx2 s[8:9], s[0:1], 64")
    A("s_load_dwordx2 s[10:11], s[0:1], 48")
    A("v_and_b32 v1, 63, v0")
    A("v_lshrrev_b32 v8, 6, v0")
    A("s_lshr_b32 s25, s2, 5" if BADMAP else "s_and_b32 s25, s2, 7")
    A("v_readfirstlane_b32 s24, v8")
    A("s_and_b32 s26, s2, 31" if BADMAP else "s_lshr_b32 s26, s2, 3")
    A("s_lshl_b32 s27, s25, 2")
    A("s_and_b32 s28, s26, 3")
    A("s_add_u32 s27, s27, s28")
    A("s_lshr_b32 s28, s26, 2")
    A("v_lshlrev_b32 v2, 4, v1")
    A("s_lshl_b32 s30, s24, 14")
    A("s_lshr_b32 s46, s24, 1")
    A("s_and_b32 s47, s24, 1")
    gemm_addr(A, 1024, "d", "s30", "s46")
    A("s_waitcnt lgkmcnt(0)")
    srd(A, 12, 6, X_BYTES)
    srd(A, 16, 4, WO_BYTES)
    srd(A, 20, 8, WS_BYTES)
    srd(A, 36, 10, X_BYTES)
    A("s_lshl_b32 s31, s27, 16")
    A("s_lshl_b32 s32, s24, 13")
    A("s_add_u32 s31, s31, s32")
    A("s_add_u32 s31, s31, 0x%x" % OF_OFF)
    A("s_lshl_b32 s48, s47, 15")
    A("s_add_u32 s31, s31, s48")
    A("s_lshl_b32 s32, s48, 1")
    A("s_sub_u32 s32, 32768, s32")
    A("s_lshl_b32 s33, s24, 17")
    A("s_lshl_b32 s34, s28, 7")
    A("s_add_u32 s33, s33, s34")
    G = Gemm(A, 8, 8, 8, "d", 1024, 20, 16, 31, 32, 33, "s30", 50)
    G.pre()
    stamp(A, kidx, 0, vt=VT)
    A("v_and_b32 v6, 31, v1")
    A("v_lshrrev_b32 v7, 5, v1")
    A("v_lshlrev_b32 v10, 10, v6")
    A("v_lshl_add_u32 v10, v7, 4, v10")
    A("s_lshl_b32 s42, s27, 16")
    A("s_add_u32 s42, s42, s48")
    A("s_lshl_b32 s43, s28, 7")
    A("s_add_u32 s42, s42, s43")
    A("s_lshl_b32 s43, s46, 6")
    A("s_add_u32 s42, s42, s43")
    A("s_lshl_b32 s44, s27, 16")
    A("s_lshl_b32 s45, s28, 13")
    A("s_add_u32 s44, s44, s45")
    A("s_lshl_b32 s45, s24, 11")
    A("s_add_u32 s44, s44, s45")
    A("s_add_u32 s44, s44, 0x%x" % G_OFF)
    A.vmem("buffer_load_dwordx4 v[160:163], v2, s[20:23], s44 offen", "g")
    A.vmem("buffer_load_dwordx4 v[164:167], v2, s[20:23], s44 offen offset:1024", "g")
    A.vmem("buffer_load_dwordx4 v[168:171], v10, s[12:15], s42 offen", "g")
    A.vmem("buffer_load_dwordx4 v[172:175], v10, s[12:15], s42 offen offset:32", "g")
    G.loop()
    stamp(A, kidx, 2, vt=VT)
    A("v_add_u32 v6, s30, v2")
    A("s_nop 10")
    for j in (1, 2, 3):
        for g in range(4):
            A("ds_write_b128 v6, %s offset:%d" % (vr(ACC + j * 16 + 4 * g, 4), j * 4096 + g * 1024))
    A("v_xor_b32 v7, 0x4000, v6")
    A("v_xor_b32 v8, 0x8000, v6")
    A("v_xor_b32 v9, 0xc000, v6")
    A("s_waitcnt lgkmcnt(0)")
    A("s_barrier")
    for j in (1, 2, 3):
        for g in range(4):
            A("ds_read_b128 %s, v%d offset:%d" % (vr(ACC + j * 16 + 4 * g, 4), 6 + j, j * 4096 + g * 1024))
    A("s_mov_b32 s41, 0xffff0000")
    A.wait_vm("g")
    for k in range(8):
        A("v_lshlrev_b32 v%d, 16, v%d" % (32 + 2 * k, 160 + k))
        A("v_and_b32 v%d, s41, v%d" % (33 + 2 * k, 160 + k))
    for k in range(8):
        A("v_lshlrev_b32 v%d, 16, v%d" % (48 + 2 * k, 168 + k))
        A("v_and_b32 v%d, s41, v%d" % (49 + 2 * k, 168 + k))
    A("s_waitcnt lgkmcnt(0)")
    for r in range(16):
        A("v_add_f32 v%d, v%d, v%d" % (ACC + r, ACC + r, ACC + 16 + r))
        A("v_add_f32 v%d, v%d, v%d" % (ACC + 32 + r, ACC + 32 + r, ACC + 48 + r))
    for r in range(16):
        A("v_add_f32 v%d, v%d, v%d" % (ACC + r, ACC + r, ACC + 32 + r))
    regs = list(range(ACC, ACC + 16))
    round_bf16(A, regs, 16, "s41")
    for r in range(16):
        A("v_mul_f32 v%d, v%d, v%d" % (ACC + r, ACC + r, 32 + r))
    for k in range(8):
        A(C(16 + k, ACC + 2 * k))
    A("s_nop 1")
    for k in (0, 1, 4, 5):
        A("v_permlane32_swap_b32 v%d, v%d" % (16 + k, 18 + k))
    A("s_nop 0")
    for k in range(8):
        A("v_lshlrev_b32 v%d, 16, v%d" % (32 + 2 * k, 16 + k))
        A("v_and_b32 v%d, s41, v%d" % (33 + 2 * k, 16 + k))
    for r in range(16):
        A("v_add_f32 v%d, v%d, v%d" % (32 + r, 32 + r, 48 + r))
    for k in range(8):
        A(C(16 + k, 32 + 2 * k))
    A("buffer_store_dwordx4 v[16:19], v10, s[36:39], s42 offen")
    A("buffer_store_dwordx4 v[20:23], v10, s[36:39], s42 offen offset:32")
    if asmlib.STAMP:
        A("s_waitcnt vmcnt(0)")
    stamp(A, kidx, 3, vt=VT)
    pad_end(A, "k3")
    A("%s:" % Lend)
    A("s_endpgm")
    return 180
```

```python
import asmlib
from asmlib import *
from layout import *

WBASE = 65536
WSLOT = 24576
K1_LDS = 163840

def gen_k1(A, name="k1_kernel", kidx=0, st_flag="", code_bytes=0):
    VT = (128, 129, 130)
    kernel_begin(A, name)
    Lend = A.label("k1end")
    Lld = A.label("k1ld")
    A("s_cmp_ge_u32 s2, 256")
    A("s_cbranch_scc1 %s" % Lend)
    pad_begin(A, "k1")
    A("s_load_dwordx4 s[4:7], s[0:1], 0")
    A("s_load_dwordx2 s[8:9], s[0:1], 64")
    A("v_and_b32 v1, 63, v0")
    A("v_lshrrev_b32 v11, 6, v0")
    A("s_lshr_b32 s25, s2, 5" if BADMAP else "s_and_b32 s25, s2, 7")
    A("v_readfirstlane_b32 s24, v11")
    A("s_and_b32 s26, s2, 31" if BADMAP else "s_lshr_b32 s26, s2, 3")
    A("s_and_b32 s27, s25, 3")
    A("s_lshl_b32 s27, s27, 3")
    A("s_and_b32 s28, s26, 7")
    A("s_add_u32 s27, s27, s28")
    A("s_lshr_b32 s28, s25, 2")
    A("s_lshl_b32 s28, s28, 2")
    A("s_lshr_b32 s29, s26, 3")
    A("s_add_u32 s28, s28, s29")
    A("v_lshrrev_b32 v11, 3, v1")
    A("v_and_b32 v12, 7, v1")
    A("v_lshlrev_b32 v2, 10, v11")
    A("v_lshl_add_u32 v2, v12, 4, v2")
    A("s_lshl_b32 s55, s29, 1")
    A("s_lshr_b32 s54, s25, 2")
    A("s_add_u32 s55, s55, s54")
    if ROT == 1:
        A("s_add_u32 s55, s55, s26")
    A("s_and_b32 s55, s55, 7")
    A("s_waitcnt lgkmcnt(0)")
    srd(A, 12, 4, X_BYTES)
    srd(A, 16, 6, WQKV_BYTES)
    srd(A, 20, 8, WS_BYTES)
    A("s_cmp_ge_u32 s24, 8")
    A("s_cbranch_scc1 %s" % Lld)
    A("s_lshl_b32 s30, s27, 16")
    A("s_lshl_b32 s31, s24, 13")
    A("s_add_u32 s30, s30, s31")
    XR = 32
    for c in range(8):
        A("s_add_u32 s31, s55, %d" % c)
        A("s_and_b32 s31, s31, 7")
        A("s_lshl_b32 s31, s31, 7")
        A("s_add_u32 s31, s31, s30")
        A.vmem("buffer_load_dwordx4 %s, v2, s[12:15], s31 offen%s" % (vr(XR + c * 4, 4), K1NT), "x%d" % c)
    if K1PRE:
        A("s_barrier")
    A("v_xor_b32 v13, v11, v12")
    A("v_lshlrev_b32 v4, 9, v12")
    A("v_lshl_add_u32 v10, v11, 4, v4")
    A("v_lshl_add_u32 v4, v13, 4, v4")
    A("s_lshr_b32 s35, s24, 2")
    A("s_and_b32 s36, s24, 3")
    A("s_lshl_b32 s37, s35, 12")
    A("s_lshl_b32 s38, s36, 7")
    A("s_add_u32 s37, s37, s38")
    A("v_add_u32 v4, s37, v4")
    A("s_lshl_b32 s52, s27, 1")
    A("s_add_u32 s52, s52, s35")
    A("s_lshl_b32 s52, s52, 15")
    A("s_lshl_b32 s53, s55, 12")
    A("s_add_u32 s52, s52, s53")
    A("s_add_u32 s52, s52, s38")
    A("s_add_u32 s52, s52, 0x%x" % XN_OFF)
    A("s_bfe_u32 s35, s24, 0x10001")
    A("s_and_b32 s36, s24, 1")
    A("v_and_b32 v13, 31, v1")
    A("v_lshrrev_b32 v14, 5, v1")
    A("s_lshl_b32 s37, s36, 12")
    for v in range(4):
        A("v_add_u32 v15, %d, v14" % (2 * v))
        A("v_xor_b32 v16, v13, v15")
        A("v_lshlrev_b32 v16, 4, v16")
        A("v_lshl_add_u32 v16, v15, 9, v16")
        A("v_add_u32 v%d, s37, v16" % (5 + v))
    A("v_mul_u32_u24 v9, 3072, v14")
    A("v_bfe_u32 v15, v1, 2, 2")
    A("v_lshl_add_u32 v9, v15, 7, v9")
    A("v_lshrrev_b32 v15, 1, v15")
    A("v_xor_b32 v15, s35, v15")
    A("v_lshl_add_u32 v9, v15, 6, v9")
    A("v_bfe_u32 v15, v1, 4, 1")
    A("v_lshl_add_u32 v9, v15, 5, v9")
    A("v_and_b32 v15, 3, v1")
    A("v_lshl_add_u32 v9, v15, 3, v9")
    A("v_add_u32 v9, %d, v9" % WBASE)
    A("v_lshlrev_b32 v11, 4, v1")
    A("v_bfe_u32 v15, v1, 4, 1")
    A("v_lshlrev_b32 v12, 17, v15")
    A("v_lshl_add_u32 v12, v14, 8, v12")
    A("v_and_b32 v15, 15, v1")
    A("v_lshl_add_u32 v12, v15, 4, v12")
    A("s_lshl_b32 s43, s27, 1")
    A("s_add_u32 s43, s43, s36")
    A("s_lshl_b32 s46, s28, 2")
    A("s_lshl_b32 s47, s35, 1")
    A("s_add_u32 s46, s46, s47")
    A("s_lshl_b32 s47, s46, 16")
    A("s_lshl_b32 s48, s43, 10")
    A("s_add_u32 s47, s47, s48")
    A("s_add_u32 s47, s47, 0x%x" % QF_OFF)
    A("s_add_u32 s48, s47, 65536")
    A("s_lshl_b32 s49, s46, 17")
    A("s_lshl_b32 s50, s43, 11")
    A("s_add_u32 s49, s49, s50")
    A("s_add_u32 s49, s49, 0x%x" % KV_OFF)
    A("s_add_u32 s50, s49, 131072")
    A("s_mov_b32 s51, 0x%x" % QSCALE_BITS)
    ACC = [80, 96, 112]
    for r in range(80, 128):
        A("v_mov_b32 v%d, 0" % r)
    A("s_mov_b32 s56, 1")
    A("s_mov_b32 s57, %d" % WSLOT)
    A("s_mov_b32 s59, 0x%x" % ((-3 * WSLOT) & 0xffffffff))
    A("s_movk_i32 s58, 0x2000")
    A("v_mov_b32 v14, 0x3f803f80")
    A("v_mov_b32 v15, 0xffff0000")
    for i in range(4):
        A("v_mov_b32 v%d, 0" % (16 + i))
    for c in range(8):
        A.wait_vm("x%d" % c)
        for d in range(4):
            r = XR + c * 4 + d
            A("v_dot2c_f32_bf16 v%d, v14, v%d" % (16 + (d & 1), r))
            A("v_dot2c_f32_bf16 v%d, v%d, v%d" % (18 + (d & 1), r, r))
    A("s_nop 2")
    A("v_add_f32 v16, v16, v17")
    A("v_add_f32 v18, v18, v19")
    for mode in ("quad_perm:[1,0,3,2]", "quad_perm:[2,3,0,1]", "row_half_mirror"):
        A("s_nop 0")
        for r in (16, 18):
            A("v_add_f32_dpp v%d, v%d, v%d %s row_mask:0xf bank_mask:0xf" % (r, r, r, mode))
    A("v_mul_f32 v16, 0x3b000000, v16")
    A("v_mul_f32 v18, 0x3b000000, v18")
    A("v_fma_f32 v18, -v16, v16, v18")
    A("v_max_f32 v18, 0, v18")
    A("v_cvt_pk_bf16_f32 v17, v16, v18")
    A("v_lshlrev_b32 v16, 16, v17")
    A("v_and_b32 v18, v15, v17")
    A("v_add_f32 v18, 0x3727c5ac, v18")
    A("v_cvt_pk_bf16_f32 v18, v18, v18")
    A("v_and_b32 v18, v15, v18")
    A("v_sqrt_f32 v18, v18")
    A("s_nop 0")
    A("v_cvt_pk_bf16_f32 v18, v18, v18")
    A("v_and_b32 v18, v15, v18")
    A("v_rcp_f32 v20, v18")
    A("s_nop 0")
    A("v_mul_f32 v21, -v16, v20")
    if asmlib.STAMP:
        A("s_memrealtime s[62:63]")
        A("s_memtime s[64:65]")
    for c in range(8):
        b = XR + c * 4
        T = 64 + 8 * (c & 1)
        for d in range(4):
            A("v_lshlrev_b32 v%d, 16, v%d" % (T + 2 * d, b + d))
            A("v_and_b32 v%d, v15, v%d" % (T + 2 * d + 1, b + d))
        for d in range(8):
            A("v_fma_f32 v%d, v%d, v20, v21" % (T + d, T + d))
        for d in range(4):
            A("v_cvt_pk_bf16_f32 v%d, v%d, v%d" % (b + d, T + 2 * d, T + 2 * d + 1))
        A("ds_write_b128 v4, %s offset:%d" % (vr(b, 4), c * 8192))
    if asmlib.STAMP:
        A("s_memrealtime s[66:67]")
        A("s_memtime s[68:69]")
    A("s_waitcnt lgkmcnt(0)")
    A("s_barrier")
    if asmlib.STAMP:
        A("s_memrealtime s[70:71]")
        A("s_memtime s[72:73]")
        A("s_waitcnt lgkmcnt(0)")
    Lmm = A.label("k1mm")
    A("s_cmp_lt_u32 s24, 4")
    A("s_cbranch_scc1 %s" % Lmm)
    A("buffer_store_dwordx4 %s, v10, s[20:23], s52 offen%s" % (vr(XR, 4), st_flag))
    for i in range(4):
        A("v_mov_b32 v%d, -1" % (16 + i))
    A("s_lshl_b32 s34, s2, 13")
    A("s_lshl_b32 s35, s24, 11")
    A("s_add_u32 s34, s34, s35")
    A("s_add_u32 s34, s34, 0x%x" % (OF_OFF - 8192))
    A("buffer_store_dwordx4 v[16:19], v11, s[20:23], s34 offen" + st_flag)
    A("buffer_store_dwordx4 v[16:19], v11, s[20:23], s34 offen offset:1024" + st_flag)
    for i in range(7):
        A("s_barrier")
    A("s_endpgm")
    A("%s:" % Lmm)
    for i in range(4):
        A("v_mov_b32 v%d, v%d" % (132 + i, XR + i))
    BUF = [16, 32, 48, 64]
    A("s_setprio 3")

    def reads(r, part):
        b = BUF[r]
        if part == 0:
            A("ds_read_b128 %s, v%d" % (vr(b, 4), 5 + r))
        for j in range(2):
            A("ds_read_b64_tr_b16 %s, v9 offset:%d" % (vr(b + 4 + 4 * part + 2 * j, 2), r * 6144 + part * 1024 + j * 512))
    for r in range(2):
        for part in range(3):
            reads(r, part)
    Lloop = A.label("k1loop")
    A(".p2align 6")
    A("%s:" % Lloop)
    filler = {(0, 0): "s_and_b32 s53, s56, 3", (0, 1): "s_cselect_b32 s54, s57, s59", (0, 2): "v_add_u32 v5, s58, v5",
              (1, 0): "s_add_u32 s56, s56, 1", (1, 1): "v_add_u32 v6, s58, v6", (1, 2): "v_add_u32 v7, s58, v7",
              (2, 0): "v_add_u32 v8, s58, v8", (2, 1): "s_nop 0", (2, 2): "s_nop 0", (3, 0): "s_nop 0", (3, 1): "s_nop 0", (3, 2): "s_cmp_lg_u32 s56, 9"}
    for r in range(4):
        b = BUF[r]
        ms = [mfma(ACC[0], b + 4, b, ACC[0]), mfma(ACC[1], b + 8, b, ACC[1]), mfma(ACC[2], b, b + 12, ACC[2])]
        for G in range(3):
            A(filler[(r, G)])
            A("s_waitcnt lgkmcnt(%d)" % (11 if G == 0 else 12))
            A(ms[G])
            if r == 2 and G == 0:
                A("s_barrier")
                A("v_add_u32 v9, s54, v9")
            reads((r + 2) & 3, G)
    A("s_cbranch_scc1 %s" % Lloop)
    if asmlib.STAMP:
        A("s_memrealtime s[74:75]")
        A("s_memtime s[76:77]")
    A("buffer_store_dwordx4 v[132:135], v10, s[20:23], s52 offen" + st_flag)
    A("s_nop 6")
    A("s_waitcnt lgkmcnt(0)")
    for t in (1, 2, 0):
        regs = ACC[t]
        if t == 0:
            for r in range(16):
                A("v_mul_f32 v%d, s51, v%d" % (ACC[0] + r, ACC[0] + r))
        for i in range(8):
            A("v_cvt_pk_bf16_f32 v%d, v%d, v%d" % (16 + t * 8 + i, regs + 2 * i, regs + 2 * i + 1))
        if t == 0:
            A("buffer_store_dwordx4 v[16:19], v11, s[20:23], s47 offen" + st_flag)
            A("buffer_store_dwordx4 v[20:23], v11, s[20:23], s48 offen" + st_flag)
        elif t == 1:
            A("buffer_store_dwordx4 v[24:27], v11, s[20:23], s49 offen" + st_flag)
            A("buffer_store_dwordx4 v[28:31], v11, s[20:23], s50 offen" + st_flag)
        else:
            A("buffer_store_dwordx4 v[32:35], v12, s[20:23], s49 offen offset:1024" + st_flag)
            A("buffer_store_dwordx4 v[36:39], v12, s[20:23], s49 offen offset:1536" + st_flag)
    if asmlib.STAMP:
        A("s_waitcnt vmcnt(0)")
        stamp(A, kidx, 5, vt=VT)
        for slot, b in ((0, 62), (1, 62), (2, 66), (3, 70), (4, 74)):
            stamp(A, kidx, slot, vt=VT, saved=b)
    pad_end(A, "k1")
    A("%s:" % Lend)
    A("s_endpgm")

    A("%s:" % Lld)
    A.vm = []
    Lpf = A.label("k1pf")
    A("s_cmp_eq_u32 s24, 11")
    A("s_cbranch_scc1 %s" % Lpf)
    stamp(A, kidx, 0, vt=VT)
    A("v_lshrrev_b32 v13, 2, v1")
    A("v_and_b32 v13, 4, v13")
    A("v_xor_b32 v13, v12, v13")
    A("v_mul_u32_u24 v3, 3072, v11")
    A("v_lshl_add_u32 v3, v13, 4, v3")
    A("s_sub_u32 s29, s24, 8")
    A("s_lshl_b32 s33, s29, 10")
    A("s_lshl_b32 s32, s28, 7")
    A("s_add_u32 s32, s32, s33")
    A("s_add_u32 s33, s33, %d" % WBASE)

    def wdma(c):
        A("s_add_u32 s34, s55, %d" % c)
        A("s_and_b32 s34, s34, 7")
        A("s_mul_i32 s34, s34, %d" % (4 * 49152))
        for i in range(8):
            A("s_add_u32 m0, s33, %d" % ((c & 3) * WSLOT + i * 3072))
            A("s_add_u32 s34, s34, %s" % ("s32" if i == 0 else "24576"))
            A.vmem("buffer_load_dwordx4 v3, s[16:19], s34 offen%s lds" % K1NT, "w%d" % c)
    if K1PRE == 2:
        wdma(0)
    if K1PRE:
        A("s_barrier")
    for c in range(1 if K1PRE == 2 else 0, K1LEAD):
        wdma(c)
    nxt = K1LEAD
    for c in range(8):
        A.wait_vm("w%d" % c)
        if c in (0, 1, 4, 7):
            stamp(A, kidx, {0: 2, 1: 3, 4: 4, 7: 5}[c], vt=VT)
        A("s_barrier")
        if nxt < 8 and nxt <= max(3, c + 2):
            wdma(nxt)
            nxt += 1
    assert nxt == 8
    A("s_endpgm")
    A("%s:" % Lpf)
    if K1TOUCH:
        A("v_lshrrev_b32 v13, 5, v1")
        A("v_bfe_u32 v14, v1, 2, 3")
        A("v_and_b32 v15, 3, v1")
        A("v_min_u32 v15, 2, v15")
        A("v_mul_u32_u24 v5, 3072, v14")
        A("v_lshl_add_u32 v5, v15, 10, v5")
        A("s_and_b32 s37, s26, 7")
        A("s_mul_i32 s37, s37, 24576")
        A("s_lshl_b32 s38, s28, 7")
        A("s_add_u32 s37, s37, s38")
        A("s_mov_b32 s39, %d" % (4 * 49152))
        A("v_add_u32 v13, s55, v13")
        for i in range(4):
            A("v_and_b32 v14, 7, v13")
            A("v_mul_lo_u32 v14, v14, s39")
            A("v_add_u32 v14, v14, v5")
            A("buffer_load_dword v%d, v14, s[16:19], s37 offen" % (16 + i))
            A("v_add_u32 v13, 2, v13")
    if code_bytes:
        Lc = A.label("k1code")
        A("s_cmp_ge_u32 s26, (L_code_end - L_code_pc + 8191) / 8192")
        A("s_cbranch_scc1 %s" % Lc)
        A("s_getpc_b64 s[38:39]")
        A("L_code_pc:")
        A("s_lshl_b32 s37, s26, 13")
        A("v_lshlrev_b32 v15, 7, v1")
        A("v_add_u32 v15, s37, v15")
        A("v_min_u32 v15, L_code_end - L_code_pc - 4, v15")
        A("global_load_dword v14, v15, s[38:39]")
        A("%s:" % Lc)
    Lz = A.label("k1z")
    A("s_cmp_lg_u32 s2, 0")
    A("s_cbranch_scc1 %s" % Lz)
    for i in range(4):
        A("v_mov_b32 v%d, 0" % (24 + i))
    A("v_lshlrev_b32 v6, 4, v1")
    for i in range(CNT_BYTES // 1024):
        A("s_mov_b32 s34, 0x%x" % (CNT_OFF + i * 1024))
        A("buffer_store_dwordx4 v[24:27], v6, s[20:23], s34 offen" + st_flag)
    A("%s:" % Lz)
    if PF:
        A("s_load_dwordx2 s[40:41], s[0:1], 16")
        A("s_load_dwordx4 s[44:47], s[0:1], 32")
        A("v_lshlrev_b32 v9, 7, v1")
        A("s_waitcnt lgkmcnt(0)")
        srd(A, 60, 44, W1_BYTES)
        srd(A, 64, 46, W2_BYTES)
        srd(A, 68, 40, WO_BYTES)
    for i in range(10 if K1PRE else 9):
        A("s_barrier")
        if PF and i == PFAT:
            A("s_mul_i32 s34, s2, %d" % (43 * 128))
            A("v_min_u32 v7, %d, v9" % (42 * 128))
            if PF == 1:
                A("buffer_load_dword v20, v7, s[60:63], s34 offen")
            else:
                A("s_lshl_b32 s35, s26, 13")
                for t in range(6):
                    A("s_add_u32 s36, s35, %d" % (t * 262144))
                    A("buffer_load_dword v%d, v9, s[60:63], s36 offen" % (28 + t))
            A("buffer_load_dword v21, v7, s[64:67], s34 offen")
            A("s_lshl_b32 s34, s2, 11")
            A("v_min_u32 v7, %d, v9" % (15 * 128))
            A("buffer_load_dword v22, v7, s[68:71], s34 offen")
    A("s_endpgm")
    return 136
```

```python
import asmlib
from asmlib import *
from layout import *

Q = 4; NEGM = 16; S = [32, 48]; P = 64; O = 72; KF = [88, 92]; VF = [[96, 100], [104, 108]]
def E(r, e64=False): return "v_exp_f32%s v%d, v%d" % ("_e64" if e64 else "", r, r)
def C(d, r): return "v_cvt_pk_bf16_f32 v%d, v%d, v%d" % (d, r, r + 1)

def att_tile(A, i):
    p = i & 1; s = S[p]; sp = S[p ^ 1]
    A(E(s)); A("s_waitcnt lgkmcnt(0)")
    A(C(P + 7, sp + 14))
    A(E(s + 1)); A(E(s + 2))
    A(mfma(O, VF[p ^ 1][1], P + 4, O))
    A(C(P, s))
    A(E(s + 3)); A("s_mov_b64 exec, s[40:41]")
    A("ds_read_b128 %s, v3 offset:%d" % (vr(VF[p ^ 1][0], 4), (i + 1) * 2048))
    A("ds_read_b128 %s, v3 offset:%d" % (vr(VF[p ^ 1][1], 4), (i + 1) * 2048 + 512))
    A("s_mov_b64 exec, -1"); A(E(s + 4))
    A(C(P + 1, s + 2))
    A(E(s + 5)); A(E(s + 6))
    A(mfma(sp, KF[p ^ 1], Q, NEGM))
    A(C(P + 2, s + 4))
    A(E(s + 7)); A(E(s + 8))
    A("ds_read_b128 %s, v2 offset:%d" % (vr(KF[p], 4), (i + 2) * 2048))
    A(C(P + 3, s + 6))
    A(E(s + 9)); A(E(s + 10))
    A(mfma(O, VF[p][0], P, O))
    A(C(P + 4, s + 8))
    A(E(s + 11)); A(E(s + 12))
    A(C(P + 5, s + 10))
    A(E(s + 13)); A(E(s + 14))
    A(C(P + 6, s + 12))
    A(E(s + 15, e64=True))


def rowmax16(A, dst, s, init=None):
    if init is None:
        A("v_max3_f32 v%d, v%d, v%d, v%d" % (dst, s, s + 1, s + 2))
        rest = list(range(3, 16))
    else:
        A("v_max3_f32 v%d, v%d, v%d, v%d" % (dst, s, s + 1, init))
        rest = list(range(2, 16))
    while len(rest) >= 2:
        A("v_max3_f32 v%d, v%d, v%d, v%d" % (dst, dst, s + rest[0], s + rest[1]))
        rest = rest[2:]
    if rest:
        A("v_max_f32 v%d, v%d, v%d" % (dst, dst, s + rest[0]))


def set_negm(A, m):
    A("v_mov_b32 v9, v%d" % m)
    A("s_nop 1")
    A("v_permlane32_swap_b32 v%d, v9" % m)
    A("s_nop 1")
    A("v_max_f32 v%d, v%d, v9" % (m, m))
    A("v_sub_f32 v%d, 0, v%d" % (NEGM, m))
    for r in range(1, 16):
        A("v_mov_b32 v%d, v%d" % (NEGM + r, NEGM))


WFB = [16, 24]
AF = 32
ACC = 96

def gemm_addr(A, rowstride, kind, s_ring, s_bswap):
    A("v_lshrrev_b32 v6, 3, v1")
    A("v_and_b32 v7, 7, v1")
    A("v_lshrrev_b32 v8, 2, v1")
    A("v_and_b32 v8, 4, v8")
    A("v_xor_b32 v7, v7, v8")
    A("v_mul_u32_u24 v3, %d, v6" % rowstride)
    A("v_lshl_add_u32 v3, v7, 4, v3")
    A("v_lshrrev_b32 v6, 5, v1")
    A("v_lshlrev_b32 v4, %d, v6" % (10 if kind == "x" else 9))
    A("v_bfe_u32 v7, v1, 2, 2")
    A("v_lshl_add_u32 v4, v7, 7, v4")
    A("v_lshrrev_b32 v7, 1, v7")
    if s_bswap:
        A("v_xor_b32 v7, %s, v7" % s_bswap)
    A("v_lshl_add_u32 v4, v7, 6, v4")
    A("v_bfe_u32 v7, v1, 4, 1")
    A("v_lshl_add_u32 v4, v7, 5, v4")
    A("v_and_b32 v7, 3, v1")
    A("v_lshl_add_u32 v4, v7, 3, v4")
    A("v_add_u32 v4, %s, v4" % s_ring)
    A("v_xor_b32 v5, 64, v4")


class Gemm:
    def __init__(self, A, nsteps, DW, DA, kind, rowstride, srdA, srdW, sA0, sA1, sW, s_ring, st, aflag="", rot=None, alds=False):
        self.__dict__.update(locals())
        self.jstep = 512 if kind == "x" else 1024

    def grp(self, dst, s, unit, base):
        A = self.A
        if self.rot is None:
            A("s_add_u32 s%d, s%d, %d" % (dst, base, (s // 4) * unit))
        else:
            A("s_add_u32 s%d, %s, %d" % (dst, self.rot, s // 4))
            A("s_and_b32 s%d, s%d, 7" % (dst, dst))
            A("s_mul_i32 s%d, s%d, %d" % (dst, dst, unit))
            A("s_add_u32 s%d, s%d, s%d" % (dst, dst, base))

    def issue_w(self, s, parts=(0, 1)):
        A = self.A
        if F1REP & 8:
            return
        for hh in parts:
            if s % 4 == 0 and hh == 0:
                self.grp(self.st + 1, s, 64 * self.rowstride, self.sW)
            A("s_add_u32 m0, %s, %d" % (self.s_ring, (s % self.DW) * 2048 + hh * 1024))
            A("s_add_u32 s%d, s%d, %d" % (self.st, self.st + 1, (16 * (s % 4) + 8 * hh) * self.rowstride))
            A.vmem("buffer_load_dwordx4 v3, %s, s%d offen lds" % (sr(self.srdW, 4), self.st), "w%d" % s)

    def issue_a(self, s, parts=(0, 1)):
        A = self.A
        for a in parts:
            if s % 4 == 0 and a == 0:
                self.grp(self.st + 2, s, 4096, self.sA0)
                A("s_add_u32 s%d, s%d, s%d" % (self.st + 3, self.st + 2, self.sA1))
            A.vmem("buffer_load_dwordx4 %s, v2, %s, s%d offen offset:%d%s" % (
                vr(AF + ((s % self.DA) * 2 + a) * 4, 4), sr(self.srdA, 4), self.st + 2 + a, (s % 4) * 1024, self.aflag), "a%d" % s)

    def pre(self, a=True, w=True):
        for s in range(max(self.DW, self.DA)):
            if a and s < self.DA and s < self.nsteps:
                self.issue_a(s)
            if w and s < self.DW and s < self.nsteps:
                self.issue_w(s)

    def reads(self, s, part):
        A = self.A
        if F1REP & 4:
            return
        if self.alds:
            A("ds_read_b128 %s, v9 offset:%d" % (vr(AF + ((s & 1) * 2 + part) * 4, 4), (s // 4) * 8192 + part * 4096 + (s % 4) * 1024))
        for j in range(2):
            A("ds_read_b64_tr_b16 %s, v%d offset:%d" % (vr(WFB[s & 1] + 4 * part + 2 * j, 2), 4 + part, (s % self.DW) * 2048 + j * self.jstep))

    def loop(self, hook=None):
        A = self.A
        n = self.nsteps
        DA = 2 if self.alds else self.DA
        A.wait_vm("w0")
        self.reads(0, 0)
        self.reads(0, 1)
        for s in range(n):
            A.wait_vm("a%d" % s, extra="lgkmcnt(0)")
            if hook:
                hook(s)
            for q in range(4):
                b, a = q >> 1, q & 1
                d = ACC + q * 16
                if not (F1REP & 2):
                    A(mfma(d, WFB[s & 1] + 4 * b, AF + ((s % DA) * 2 + a) * 4, "0" if s == 0 else d))
                if q < 2:
                    if s + 1 < n:
                        if q == 0:
                            A.wait_vm("w%d" % (s + 1))
                        self.reads(s + 1, q)
                    if not self.alds and s >= 1 and s - 1 + self.DA < n:
                        self.issue_a(s - 1 + self.DA, (q,))
                elif s + self.DW < n:
                    self.issue_w(s + self.DW, (q - 2,))


def lds_wait(A, vaddr, off, val, vt, st, sleep=1):
    L = A.label("lw")
    A("s_mov_b32 s%d, 0" % (st + 1))
    A("%s:" % L)
    A("ds_read_b32 v%d, v%d offset:%d" % (vt, vaddr, off))
    A("s_add_u32 s%d, s%d, 1" % (st + 1, st + 1))
    A("s_waitcnt lgkmcnt(0)")
    A("v_readfirstlane_b32 s%d, v%d" % (st, vt))
    A("s_cmp_ge_u32 s%d, %s" % (st, val))
    A("s_cbranch_scc1 %s_d" % L)
    A("s_sleep %d" % sleep)
    A("s_cmp_lt_u32 s%d, 0x200000" % (st + 1))
    A("s_cbranch_scc1 %s" % L)
    A("%s_d:" % L)


def round_bf16(A, regs, tmp, smask):
    for k in range(0, len(regs), 2):
        A("v_cvt_pk_bf16_f32 v%d, v%d, v%d" % (tmp + k // 2, regs[k], regs[k + 1]))
    for k in range(0, len(regs), 2):
        A("v_lshlrev_b32 v%d, 16, v%d" % (regs[k], tmp + k // 2))
        A("v_and_b32 v%d, %s, v%d" % (regs[k + 1], smask, tmp + k // 2))


RING = 131072
FLAG = RING + 30720

def gen_k2(A, name="k2_kernel", kidx=0, prio=(10, 14)):
    VT = (112, 113, 114)
    kernel_begin(A, name)
    Lend = A.label("k2end")
    Laux = A.label("k2aux")
    A("s_cmp_ge_u32 s2, 256")
    A("s_cbranch_scc1 %s" % Lend)
    pad_begin(A, "k2")
    A("s_load_dwordx2 s[8:9], s[0:1], 64")
    A("s_load_dwordx4 s[4:7], s[0:1], 32")
    A("s_load_dwordx2 s[56:57], s[0:1], 0")
    A("s_load_dwordx2 s[58:59], s[0:1], 16")
    A("s_load_dwordx2 s[10:11], s[0:1], 48")
    A("v_and_b32 v1, 63, v0")
    A("v_lshrrev_b32 v8, 6, v0")
    A("s_lshr_b32 s25, s2, 5" if BADMAP else "s_and_b32 s25, s2, 7")
    A("v_readfirstlane_b32 s24, v8")
    A("s_and_b32 s26, s2, 31" if BADMAP else "s_lshr_b32 s26, s2, 3")
    A("s_lshl_b32 s27, s25, 2")
    A("s_and_b32 s28, s26, 3")
    A("s_add_u32 s27, s27, s28")
    A("s_lshr_b32 s28, s26, 2")
    A("s_waitcnt lgkmcnt(0)")
    srd(A, 20, 8, WS_BYTES)
    srd(A, 12, 4, W1_BYTES)
    srd(A, 16, 6, W2_BYTES)
    srd(A, 60, 56, X_BYTES)
    srd(A, 64, 58, WO_BYTES)
    srd(A, 68, 10, X_BYTES)
    A("s_cmp_ge_u32 s24, 8")
    A("s_cbranch_scc1 %s" % Laux)
    A("s_lshl_b32 s29, s28, 3")
    A("s_add_u32 s29, s29, s24")
    A("v_lshlrev_b32 v10, 4, v1")
    A("s_lshl_b32 s30, s27, 16")
    A("s_lshl_b32 s31, s29, 10")
    A("s_add_u32 s30, s30, s31")
    A("s_add_u32 s30, s30, 0x%x" % QF_OFF)
    A.vmem("buffer_load_dwordx4 %s, v10, s[20:23], s30 offen" % vr(Q, 4), "q")
    stamp(A, kidx, 0, vt=VT)
    A("s_setprio %d" % ATTPRIO[0])
    A("s_mov_b32 s40, 0x0000ffff")
    A("s_mov_b32 s41, 0x0000ffff")
    A("v_lshrrev_b32 v8, 5, v1")
    A("v_lshlrev_b32 v11, 8, v8")
    A("v_and_b32 v8, 15, v1")
    A("v_lshl_add_u32 v11, v8, 4, v11")
    A("v_add_u32 v11, 1024, v11")
    if ZROWS:
        A("v_and_b32 v8, 27, v1")
        A("v_cmp_eq_u32 vcc, 16, v8")
        A("v_mov_b32 v8, 0x3f803f80")
        A("s_nop 1")
        A("v_cndmask_b32 v96, 0, v8, vcc")
        for r in range(97, 112):
            A("v_mov_b32 v%d, v96" % r)
    else:
        for r in range(96, 112):
            A("v_mov_b32 v%d, 0x3f803f80" % r)
    for r in range(16):
        A("v_mov_b32 v%d, 0" % (O + r))
    for r in (P + 4, P + 5, P + 6, S[1] + 14, S[1] + 15):
        A("v_mov_b32 v%d, 0" % r)
    A("v_mov_b32 v2, v10")
    A("v_mov_b32 v3, v11")
    A("s_mov_b32 s44, 0")
    A("s_mov_b32 s45, 2")
    A("v_mov_b32 v12, %d" % FLAG)
    A("v_mov_b32 v13, 1")
    A.wait_vm("q")
    A("s_barrier")
    stamp(A, kidx, 1, vt=VT)
    A("ds_read_b128 %s, v2" % vr(KF[0], 4))
    A("ds_read_b128 %s, v2 offset:2048" % vr(KF[1], 4))
    A("s_mov_b64 exec, s[40:41]")
    A("ds_read_b128 %s, v3" % vr(VF[0][0], 4))
    A("ds_read_b128 %s, v3 offset:512" % vr(VF[0][1], 4))
    A("s_mov_b64 exec, -1")
    A("s_waitcnt lgkmcnt(3)")
    A(mfma(S[0], KF[0], Q, "0"))
    A("s_nop 11")
    rowmax16(A, 8, S[0])
    set_negm(A, 8)
    A("s_nop 1")
    A(mfma(S[0], KF[0], Q, NEGM))
    A("s_nop 11")
    if NOATT:
        A("s_mov_b64 exec, 1")
        A("ds_add_u32 v12, v13 offset:4")
        A("ds_add_u32 v12, v13 offset:36")
        A("ds_add_u32 v12, v13 offset:40")
        A("s_endpgm")
    Lloop = A.label("attloop")
    Ldone = A.label("attdone")
    A(".p2align 6")
    A("%s:" % Lloop)
    for i in range(4):
        att_tile(A, i)
    A("v_add_u32 v2, 0x2000, v2")
    A("v_add_u32 v3, 0x2000, v3")
    A("s_add_u32 s44, s44, 1")
    A("s_cmp_lg_u32 s44, s45")
    A("s_cbranch_scc1 %s" % Lloop)
    def signal(off=4):
        A("s_mov_b64 exec, 1")
        A("ds_add_u32 v12, v13 offset:%d" % off)
        A("s_mov_b64 exec, -1")
    def kvw(v):
        return lambda: lds_wait(A, 12, 0, v, 14, 46)
    evs = {2: [lambda: lds_wait(A, 12, 20, 4, 14, 46)], 4: [signal], 7: [kvw(1)], 11: [kvw(2)], 12: [lambda: signal(36)]}
    evs.setdefault(prio[0], []).append(lambda: A("s_setprio %d" % ATTPRIO[1]))
    evs.setdefault(prio[1], []).append(lambda: A("s_setprio %d" % ATTPRIO[2]))
    keys = sorted(evs)
    ev = [(k, (lambda fs: (lambda: [f() for f in fs]))(evs[k]), (keys + [16])[i + 1]) for i, k in enumerate(keys)]
    for at, code, nxt in ev:
        Ln = A.label("attev")
        A("s_cmp_lg_u32 s44, %d" % at)
        A("s_cbranch_scc1 %s" % Ln)
        code()
        A("s_mov_b32 s45, %d" % nxt)
        A("s_branch %s" % Lloop)
        A("%s:" % Ln)
    A(C(P + 7, S[1] + 14))
    A("s_nop 1")
    A(mfma(O, VF[1][1], P + 4, O))
    signal(40)
    stamp(A, kidx, 2, vt=VT)
    Lok = A.label("attok")
    A("s_nop 11")
    A("v_mul_f32 v8, 0, v%d" % O)
    for r in range(1, 8):
        A("v_fma_f32 v8, v%d, 0, v8" % (O + r))
    A("s_mov_b32 s45, 0x5f800000")
    A("v_cmp_u_f32 vcc, v8, v8")
    A("v_cmp_ngt_f32 s[46:47], s45, v%d" % (O + 8))
    A("s_nop 1")
    A("s_or_b64 s[46:47], s[46:47], vcc")
    A("s_cbranch_scc0 %s" % Lok)
    Lf1 = A.label("attf1")
    Lf2 = A.label("attf2")
    A("s_lshl_b32 s31, s27, 17")
    A("s_add_u32 s31, s31, 0x%x" % KV_OFF)
    A("s_mov_b32 s32, s31")
    A("s_mov_b32 s44, 64")
    A("v_mov_b32 v8, 0xff800000")
    A("%s:" % Lf1)
    A("buffer_load_dwordx4 %s, v10, s[20:23], s32 offen" % vr(KF[0], 4))
    A("s_add_u32 s32, s32, 2048")
    A("s_waitcnt vmcnt(0)")
    A(mfma(S[0], KF[0], Q, "0"))
    A("s_nop 11")
    rowmax16(A, 8, S[0], init=8)
    A("s_sub_u32 s44, s44, 1")
    A("s_cmp_lg_u32 s44, 0")
    A("s_cbranch_scc1 %s" % Lf1)
    set_negm(A, 8)
    for r in range(16):
        A("v_mov_b32 v%d, 0" % (O + r))
    A("s_mov_b32 s32, s31")
    A("s_mov_b32 s44, 64")
    A("%s:" % Lf2)
    A("buffer_load_dwordx4 %s, v10, s[20:23], s32 offen" % vr(KF[0], 4))
    A("s_mov_b64 exec, s[40:41]")
    A("buffer_load_dwordx4 %s, v11, s[20:23], s32 offen" % vr(VF[0][0], 4))
    A("buffer_load_dwordx4 %s, v11, s[20:23], s32 offen offset:512" % vr(VF[0][1], 4))
    A("s_mov_b64 exec, -1")
    A("s_add_u32 s32, s32, 2048")
    A("s_waitcnt vmcnt(0)")
    A(mfma(S[0], KF[0], Q, NEGM))
    A("s_nop 11")
    for r in range(16):
        A(E(S[0] + r))
    A("s_nop 0")
    for i in range(8):
        A(C(P + i, S[0] + 2 * i))
    A("s_nop 1")
    A(mfma(O, VF[0][0], P, O))
    A(mfma(O, VF[0][1], P + 4, O))
    A("s_sub_u32 s44, s44, 1")
    A("s_cmp_lg_u32 s44, 0")
    A("s_cbranch_scc1 %s" % Lf2)
    A("s_nop 11")
    A("%s:" % Lok)
    A("v_rcp_f32 v8, v%d" % (O + 8))
    A("s_lshl_b32 s30, s29, 15")
    A("s_lshl_b32 s31, s27, 10")
    A("s_add_u32 s30, s30, s31")
    A("s_add_u32 s30, s30, 0x%x" % OF_OFF)
    for r in range(8):
        A("v_mul_f32 v%d, v%d, v8" % (O + r, O + r))
    for i in range(4):
        A(C(P + i, O + 2 * i))
    A("buffer_store_dwordx4 %s, v10, s[20:23], s30 offen sc0 sc1" % vr(P, 4))
    if asmlib.STAMP:
        A("s_waitcnt vmcnt(0)")
    stamp(A, kidx, 3, vt=VT)
    pad_end(A, "k2")
    A("%s:" % Lend)
    A("s_endpgm")

    A("%s:" % Laux)
    VT = (14, 15, 13)
    A.vm = []
    A("s_setprio 3")
    A("s_sub_u32 s29, s24, 8")
    A("v_lshlrev_b32 v2, 4, v1")
    A("s_lshl_b32 s31, s27, 17")
    A("s_add_u32 s31, s31, 0x%x" % KV_OFF)
    A("s_lshl_b32 s32, s29, 10")
    def kvb(lo, hi, tag):
        for i in range(lo, hi):
            A("s_add_u32 m0, s32, %d" % (i * 4096))
            A("s_add_u32 s34, m0, s31")
            A.vmem("buffer_load_dwordx4 v2, s[20:23], s34 offen lds", tag)
    kvb(0, 5, "kv")
    stamp(A, kidx, 0, vt=VT)
    A("v_mov_b32 v10, %d" % FLAG)
    A("v_mov_b32 v11, 0")
    A("v_mov_b32 v12, 1")
    A("s_lshr_b32 s46, s29, 1")
    A("s_and_b32 s47, s29, 1")

    def region(dst, a, b):
        A("s_mul_i32 s%d, %s, 15360" % (dst, a))
        A("s_add_u32 s%d, s%d, %d" % (dst, dst, RING))
        A("s_lshl_b32 s49, %s, 14" % a)
        A("s_cmp_eq_u32 %s, 0" % b)
        A("s_cselect_b32 s%d, s49, s%d" % (dst, dst))

    def lds_inc(off):
        A("s_mov_b64 exec, 1")
        A("ds_add_u32 v10, v12 offset:%d" % off)
        A("s_mov_b64 exec, -1")

    def f2_setup():
        region(30, "s47", "s46")
        gemm_addr(A, 1024, "d", "s30", "s46")
        A("s_mul_i32 s33, s29, %d" % (22 * 16 * 1024))
        A("s_lshl_b32 s34, s28, 7")
        A("s_add_u32 s33, s33, s34")
        lds_wait(A, 10, 4, 8, 13, 42)
        lds_wait(A, 10, 28, 3, 13, 42)
        G2.pre(a=False)
    G2 = Gemm(A, 22, 7, 8, "d", 1024, 20, 16, 31, 32, 33, "s30", 34, aflag=" sc0 sc1")
    A("s_lshl_b32 s55, s27, 8")
    A("s_add_u32 s55, s55, 0x%x" % CNT_OFF)
    A("s_and_b32 s40, s26, 3")
    A("s_lshl_b32 s40, s40, 1")
    A("s_lshl_b32 s38, s27, 16")
    A("s_add_u32 s38, s38, 0x%x" % XN_OFF)

    def xn_block(sidx, tag):
        A("s_lshr_b32 s43, %s, 1" % sidx)
        A("s_add_u32 s43, s43, s40")
        A("s_and_b32 s43, s43, 7")
        A("s_lshl_b32 s43, s43, 12")
        A("s_and_b32 s44, %s, 1" % sidx)
        A("s_lshl_b32 s44, s44, 15")
        A("s_add_u32 s43, s43, s44")
        A("s_lshl_b32 s44, %s, 12" % sidx)
        A("s_add_u32 m0, s44, 65536")
        A("s_add_u32 s43, s43, s38")
        for u in range(4):
            A.vmem("buffer_load_dwordx4 v2, s[20:23], s43 offen offset:%d lds" % (u * 1024), tag)
    Lw3 = A.label("aux3")
    Lf2 = A.label("auxf2")
    A("s_cmp_eq_u32 s29, 3")
    A("s_cbranch_scc1 %s" % Lw3)
    A("s_mul_i32 s30, s29, 10240")
    A("s_add_u32 s30, s30, %d" % RING)
    A("s_mul_i32 s39, s28, 3")
    A("s_add_u32 s39, s39, s29")
    gemm_addr(A, 2752, "x", "s30", None)
    A("v_add_u32 v9, 65536, v2")
    A("s_lshl_b32 s33, s39, 7")
    G1 = Gemm(A, 32, 5, 0, "x", 2752, 20, 12, 31, 32, 33, "s30", 34, rot="s40", alds=True)
    A.wait_vm("kv")
    A("s_barrier")
    stamp(A, kidx, 1, vt=VT)
    kvb(5, 16, "xn1")
    if not NOFFN:
        xn_block("s29", "xn1")
        G1.pre(a=False)
    A.wait_vm("xn1")
    lds_inc(20)
    if NOFFN:
        A("s_endpgm")
    A("s_add_u32 s41, s29, 4")
    Lnof1 = A.label("nof1")
    Lf1sig = A.label("f1sig")
    A("s_cmp_ge_u32 s39, 22")
    A("s_cbranch_scc1 %s" % Lnof1)
    lds_wait(A, 10, 20, 4, 13, 42)
    A("s_setprio %d" % AUXPRIO)
    stamp(A, kidx, 2, vt=VT)

    def f1hook(s):
        if s < 4:
            xn_block("s41", "xn2")
            A("s_add_u32 s41, s41, 3")
        if s == 6:
            A.wait_vm("xn2")
            lds_inc(32)
        if s == 7:
            lds_wait(A, 10, 32, 3, 13, 42)
        if s == 16:
            lds_inc(24)
    G1.loop(f1hook)
    A("s_setprio 3")
    stamp(A, kidx, 3, vt=VT)
    A("s_mul_i32 s31, s27, %d" % (2 * HF_MB))
    A("s_lshl_b32 s32, s39, 12")
    A("s_add_u32 s31, s31, s32")
    A("s_add_u32 s31, s31, 0x%x" % HF_OFF)
    A("s_add_u32 s32, s31, %d" % HF_MB)
    A("s_nop 7")
    for b in range(2):
        for a in range(2):
            d = ACC + (b * 2 + a) * 16
            o = AF + (b * 2 + a) * 8
            for i in range(8):
                A(C(o + i, d + 2 * i))
            for i in range(8):
                A("v_pk_max_i16 v%d, v%d, 0" % (o + i, o + i))
            for j in range(2):
                A("buffer_store_dwordx4 %s, v2, s[20:23], s%d offen offset:%d sc0 sc1" % (vr(o + 4 * j, 4), 31 + a, (2 * b + j) * 1024))
    A("s_branch %s" % Lf1sig)
    A("%s:" % Lnof1)
    for t in range(4):
        xn_block("s41", "xn2")
        A("s_add_u32 s41, s41, 3")
    A("s_waitcnt vmcnt(0)")
    lds_inc(32)
    lds_inc(24)
    A("%s:" % Lf1sig)
    lds_inc(28)
    A.vm = ["h"]
    f2_setup()
    A.wait_vm("h")
    A("s_mov_b64 exec, 1")
    A("ds_add_rtn_u32 v13, v10, v12 offset:8")
    A("s_waitcnt lgkmcnt(0)")
    A("v_readfirstlane_b32 s42, v13")
    A("s_lshl_b32 s43, s28, 2")
    A("v_mov_b32 v13, s43")
    Lnp = A.label("nopub")
    A("s_cmp_lg_u32 s42, 2")
    A("s_cbranch_scc1 %s" % Lnp)
    A("buffer_store_dword v12, v13, s[20:23], s55 offen sc0 sc1")
    A("%s:" % Lnp)
    A("s_mov_b64 exec, -1")
    stamp(A, kidx, 4, vt=VT)
    A("s_cmp_lg_u32 s29, 0")
    A("s_cbranch_scc1 %s" % Lf2)
    A("v_and_b32 v13, 7, v1")
    A("v_lshlrev_b32 v13, 2, v13")
    Lp = A.label("poll")
    A("s_mov_b32 s42, 0")
    A("%s:" % Lp)
    A("buffer_load_dword v14, v13, s[20:23], s55 offen sc0 sc1")
    A("s_add_u32 s42, s42, 1")
    A("s_waitcnt vmcnt(0)")
    A("v_cmp_ne_u32 vcc, 1, v14")
    A("s_nop 4")
    A("s_cbranch_vccz %s_d" % Lp)
    A("s_sleep 1")
    A("s_cmp_lt_u32 s42, 0x40000")
    A("s_cbranch_scc1 %s" % Lp)
    A("%s_d:" % Lp)
    A("ds_write_b32 v10, v12 offset:12")
    A("s_branch %s" % Lf2)
    A("%s:" % Lw3)
    A("v_lshlrev_b32 v13, 2, v1")
    A("v_add_u32 v13, v10, v13")
    A("ds_write_b32 v13, v11")
    A.vm = ["kv"]
    A.wait_vm("kv", extra="lgkmcnt(0)")
    A("s_barrier")
    stamp(A, kidx, 1, vt=VT)
    kvb(5, 16, "xn1")
    if not NOFFN:
        xn_block("s29", "xn1")
    A.wait_vm("xn1")
    lds_inc(20)
    A("s_mov_b32 s32, %d" % (64 * 1024))

    def kvrun(end, cnt, val):
        Lk = A.label("kvl")
        A("%s:" % Lk)
        A("s_mov_b32 m0, s32")
        A("s_add_u32 s34, s32, s31")
        A("s_add_u32 s32, s32, 4096")
        for u in range(4):
            A("buffer_load_dwordx4 v2, s[20:23], s34 offen offset:%d lds" % (u * 1024))
        A("s_cmp_lg_u32 s32, %d" % (end * 1024))
        A("s_cbranch_scc1 %s" % Lk)
        A("v_mov_b32 v13, %d" % val)
        A("s_waitcnt vmcnt(%d)" % cnt)
        A("ds_write_b32 v10, v13")
    stamp(A, kidx, 2, vt=VT)
    if not NOFFN:
        lds_wait(A, 10, 24, 3, 13, 42)
    kvrun(96, 0, 1)
    stamp(A, kidx, 3, vt=VT)
    if (TOUCH & 1) and not NOFFN:
        A("v_lshlrev_b32 v9, 7, v1")
        A("s_lshl_b32 s35, s26, 13")
        for i in range(6):
            A("s_add_u32 s36, s35, %d" % (i * 262144))
            A("buffer_load_dword v%d, v9, s[16:19], s36 offen" % (16 + i))
            A("s_waitcnt vmcnt(1)")
    if not NOFFN:
        lds_wait(A, 10, 28, 3, 13, 42)
    kvrun(128, 0, 2)
    stamp(A, kidx, 4, vt=VT)
    if NOFFN:
        A("s_endpgm")
    A.vm = []
    f2_setup()
    A("%s:" % Lf2)
    A("s_xor_b32 s50, s47, 1")
    A("s_xor_b32 s51, s46, 1")
    region(52, "s50", "s46")
    region(53, "s47", "s51")
    region(54, "s50", "s51")
    A("s_mul_i32 s31, s27, %d" % (2 * HF_MB))
    A("s_add_u32 s31, s31, 0x%x" % HF_OFF)
    A("s_lshl_b32 s49, s28, 2")
    A("s_add_u32 s49, s49, s29")
    A("s_mul_i32 s49, s49, %d" % (44 * 128))
    A("s_add_u32 s49, s49, s31")
    A("s_mul_i32 s32, s29, %d" % (22 * 1024))
    A("s_add_u32 s31, s31, s32")
    A("s_mul_i32 s38, s47, %d" % HF_MB)
    A("s_add_u32 s31, s31, s38")
    A("s_lshl_b32 s38, s38, 1")
    A("s_sub_u32 s32, %d, s38" % HF_MB)
    A("v_min_u32 v9, 43, v1")
    A("v_lshlrev_b32 v9, 7, v9")
    lds_wait(A, 10, 12, 1, 13, 42)
    stamp(A, kidx, 5, vt=VT)
    if TOUCH & 2:
        A.vmem("buffer_load_dword v13, v9, s[20:23], s49 offen sc0 sc1", "t")
    G2.pre(w=False)
    A("s_setprio %d" % AUXPRIO)
    G2.loop()
    A("s_setprio 3")
    stamp(A, kidx, 6, vt=VT)
    A("v_add_u32 v6, s30, v2")
    A("v_add_u32 v7, s52, v2")
    A("v_add_u32 v8, s53, v2")
    A("v_add_u32 v9, s54, v2")
    A("s_nop 7")
    for j in (1, 2, 3):
        for g in range(4):
            A("ds_write_b128 v6, %s offset:%d" % (vr(ACC + j * 16 + 4 * g, 4), (j - 1) * 4096 + g * 1024))
    A("s_waitcnt lgkmcnt(0)")
    A("s_mov_b64 exec, 1")
    A("ds_add_u32 v10, v12 offset:16")
    A("s_mov_b64 exec, -1")
    lds_wait(A, 10, 16, 4, 13, 42)
    for j in (1, 2, 3):
        for g in range(4):
            A("ds_read_b128 %s, v%d offset:%d" % (vr(ACC + j * 16 + 4 * g, 4), 6 + j, (j - 1) * 4096 + g * 1024))
    A("s_lshl_b32 s48, s29, 14")
    A("s_add_u32 s48, s48, 32768")
    A("s_sub_u32 s49, s48, s30")
    A("v_add_u32 v4, s49, v4")
    A("v_add_u32 v5, s49, v5")
    A("s_lshl_b32 s33, s29, 17")
    A("s_lshl_b32 s34, s28, 7")
    A("s_add_u32 s33, s33, s34")
    A("s_lshl_b32 s31, s27, 16")
    A("s_lshl_b32 s32, s29, 13")
    A("s_add_u32 s31, s31, s32")
    A("s_add_u32 s31, s31, 0x%x" % OF_OFF)
    A("s_lshl_b32 s38, s47, 15")
    A("s_add_u32 s31, s31, s38")
    A("s_lshl_b32 s32, s38, 1")
    A("s_sub_u32 s32, 32768, s32")
    A("v_and_b32 v6, 31, v1")
    A("v_lshrrev_b32 v7, 5, v1")
    A("v_lshlrev_b32 v11, 10, v6")
    A("v_lshl_add_u32 v11, v7, 4, v11")
    A("s_lshl_b32 s45, s27, 16")
    A("s_add_u32 s45, s45, s38")
    A("s_add_u32 s45, s45, s34")
    A("s_lshl_b32 s44, s46, 6")
    A("s_add_u32 s45, s45, s44")
    lds_wait(A, 10, 36, 8, 13, 42)
    G3 = Gemm(A, 8, 8, 8, "d", 1024, 20, 64, 31, 32, 33, "s48", 34, aflag=" sc0 sc1")
    A.vm = []
    G3.pre(a=False)
    A("buffer_load_dwordx4 v[24:27], v11, s[60:63], s45 offen")
    A("buffer_load_dwordx4 v[28:31], v11, s[60:63], s45 offen offset:32")
    for r in range(16):
        A("v_add_f32 v%d, v%d, v%d" % (ACC + r, ACC + r, ACC + 16 + r))
        A("v_add_f32 v%d, v%d, v%d" % (ACC + 32 + r, ACC + 32 + r, ACC + 48 + r))
    for r in range(16):
        A("v_add_f32 v%d, v%d, v%d" % (ACC + r, ACC + r, ACC + 32 + r))
    A("s_mov_b32 s41, 0xffff0000")
    regs = list(range(ACC, ACC + 16))
    round_bf16(A, regs, 16, "s41")
    for r in regs:
        A("v_mul_f32 v%d, 0x%x, v%d" % (r + 16, f32bits(-LOG2E), r))
    for r in regs:
        A("v_exp_f32 v%d, v%d" % (r + 16, r + 16))
    for r in regs:
        A("v_add_f32 v%d, 1.0, v%d" % (r + 16, r + 16))
    for r in regs:
        A("v_rcp_f32 v%d, v%d" % (r + 16, r + 16))
    for r in regs:
        A("v_mul_f32 v%d, v%d, v%d" % (r, r, r + 16))
    for k in range(8):
        A(C(160 + k, ACC + 2 * k))
    A("s_add_u32 s36, s31, 4096")
    A("s_add_u32 s35, s31, s32")
    A("s_add_u32 s37, s36, s32")
    A("v_add_u32 v6, s48, v2")
    A("s_xor_b32 s49, s29, 1")
    A("s_lshl_b32 s49, s49, 14")
    A("v_add_u32 v7, s49, v2")
    A("s_xor_b32 s49, s29, 2")
    A("s_lshl_b32 s49, s49, 14")
    A("v_add_u32 v8, s49, v2")
    A("s_xor_b32 s49, s29, 3")
    A("s_lshl_b32 s49, s49, 14")
    A("v_add_u32 v9, s49, v2")
    A("s_waitcnt vmcnt(0)")
    stamp(A, kidx, 7, vt=VT)
    lds_wait(A, 10, 40, 8, 13, 42)
    stamp(A, kidx, 8, vt=VT)
    if asmlib.STAMP:
        A("s_waitcnt vmcnt(0)")
    Li = A.label("oiss")
    Lc = A.label("ochk")
    A("s_mov_b32 s50, 0")
    A("s_mov_b32 s51, 0")
    for st_ in range(8):
        A("%s_%d:" % (Li, st_))
        for a in range(2):
            A("buffer_load_dwordx4 %s, v2, s[20:23], s%d offen offset:%d sc0 sc1" % (vr(AF + (st_ * 2 + a) * 4, 4), ((31, 35), (36, 37))[st_ >> 2][a], (st_ & 3) * 1024))
    for st_ in range(1, 8):
        A("s_cmp_eq_u32 s50, %d" % st_)
        A("s_cbranch_scc1 %s_%d" % (Lc, st_))
    for st_ in range(8):
        for b in range(2):
            for j in range(2):
                A("ds_read_b64_tr_b16 %s, v%d offset:%d" % (vr(16 + 4 * b + 2 * j, 2), 4 + b, st_ * 2048 + j * 1024))
        A("%s_%d:" % (Lc, st_))
        A("s_waitcnt vmcnt(%d)" % (2 * (7 - st_)))
        f = AF + st_ * 8
        A("v_max3_u32 v13, v%d, v%d, v%d" % (f, f + 1, f + 2))
        A("v_max3_u32 v14, v%d, v%d, v%d" % (f + 3, f + 4, f + 5))
        A("v_max3_u32 v13, v13, v%d, v%d" % (f + 6, f + 7))
        A("v_max_u32 v13, v13, v14")
        A("v_cmp_eq_u32 vcc, -1, v13")
        Lg = A.label("ogo")
        A("s_add_u32 s51, s51, 1")
        A("s_mov_b32 s50, %d" % st_)
        A("s_nop 2")
        A("s_cbranch_vccz %s" % Lg)
        A("s_cmp_lt_u32 s51, 0x20000")
        A("s_cbranch_scc1 %s_%d" % (Li, st_))
        A("%s:" % Lg)
        A("s_waitcnt lgkmcnt(0)")
        for q in range(4):
            d = ACC + q * 16
            A(mfma(d, 16 + 4 * (q >> 1), f + 4 * (q & 1), "0" if st_ == 0 else d))
    stamp(A, kidx, 9, vt=VT)
    for k in range(8):
        A("v_lshlrev_b32 v%d, 16, v%d" % (32 + 2 * k, 160 + k))
        A("v_and_b32 v%d, s41, v%d" % (33 + 2 * k, 160 + k))
    for j in (1, 2, 3):
        for g in range(4):
            A("ds_write_b128 v6, %s offset:%d" % (vr(ACC + j * 16 + 4 * g, 4), j * 4096 + g * 1024))
    for k in range(8):
        A("v_lshlrev_b32 v%d, 16, v%d" % (48 + 2 * k, 24 + k))
        A("v_and_b32 v%d, s41, v%d" % (49 + 2 * k, 24 + k))
    A("s_waitcnt lgkmcnt(0)")
    A("s_barrier")
    for j in (1, 2, 3):
        for g in range(4):
            A("ds_read_b128 %s, v%d offset:%d" % (vr(ACC + j * 16 + 4 * g, 4), 6 + j, 32768 + j * 4096 + g * 1024))
    A("s_waitcnt lgkmcnt(4)")
    for r in range(16):
        A("v_add_f32 v%d, v%d, v%d" % (ACC + r, ACC + r, ACC + 16 + r))
    for r in range(16):
        A("v_add_f32 v%d, v%d, v%d" % (ACC + r, ACC + r, ACC + 32 + r))
    A("s_waitcnt lgkmcnt(0)")
    for r in range(16):
        A("v_add_f32 v%d, v%d, v%d" % (ACC + r, ACC + r, ACC + 48 + r))
    round_bf16(A, regs, 16, "s41")
    for r in range(16):
        A("v_mul_f32 v%d, v%d, v%d" % (ACC + r, ACC + r, 32 + r))
    for k in range(8):
        A(C(16 + k, ACC + 2 * k))
    A("s_nop 1")
    for k in (0, 1, 4, 5):
        A("v_permlane32_swap_b32 v%d, v%d" % (16 + k, 18 + k))
    A("s_nop 0")
    for k in range(8):
        A("v_lshlrev_b32 v%d, 16, v%d" % (32 + 2 * k, 16 + k))
        A("v_and_b32 v%d, s41, v%d" % (33 + 2 * k, 16 + k))
    for r in range(16):
        A("v_add_f32 v%d, v%d, v%d" % (32 + r, 32 + r, 48 + r))
    for k in range(8):
        A(C(16 + k, 32 + 2 * k))
    A("buffer_store_dwordx4 v[16:19], v11, s[68:71], s45 offen" + OUTST)
    A("buffer_store_dwordx4 v[20:23], v11, s[68:71], s45 offen offset:32" + OUTST)
    if asmlib.STAMP:
        A("s_waitcnt vmcnt(0)")
    stamp(A, kidx, 10, vt=VT)
    A("s_endpgm")
    return 168


def gen_k3(A, name="k3_kernel", kidx=0):
    VT = (176, 177, 178)
    kernel_begin(A, name)
    Lend = A.label("k3end")
    A("s_cmp_ge_u32 s2, 256")
    A("s_cbranch_scc1 %s" % Lend)
    pad_begin(A, "k3")
    A("s_load_dwordx2 s[4:5], s[0:1], 16")
    A("s_load_dwordx2 s[6:7], s[0:1], 0")
    A("s_load_dwordx2 s[8:9], s[0:1], 64")
    A("s_load_dwordx2 s[10:11], s[0:1], 48")
    A("v_and_b32 v1, 63, v0")
    A("v_lshrrev_b32 v8, 6, v0")
    A("s_lshr_b32 s25, s2, 5" if BADMAP else "s_and_b32 s25, s2, 7")
    A("v_readfirstlane_b32 s24, v8")
    A("s_and_b32 s26, s2, 31" if BADMAP else "s_lshr_b32 s26, s2, 3")
    A("s_lshl_b32 s27, s25, 2")
    A("s_and_b32 s28, s26, 3")
    A("s_add_u32 s27, s27, s28")
    A("s_lshr_b32 s28, s26, 2")
    A("v_lshlrev_b32 v2, 4, v1")
    A("s_lshl_b32 s30, s24, 14")
    A("s_lshr_b32 s46, s24, 1")
    A("s_and_b32 s47, s24, 1")
    gemm_addr(A, 1024, "d", "s30", "s46")
    A("s_waitcnt lgkmcnt(0)")
    srd(A, 12, 6, X_BYTES)
    srd(A, 16, 4, WO_BYTES)
    srd(A, 20, 8, WS_BYTES)
    srd(A, 36, 10, X_BYTES)
    A("s_lshl_b32 s31, s27, 16")
    A("s_lshl_b32 s32, s24, 13")
    A("s_add_u32 s31, s31, s32")
    A("s_add_u32 s31, s31, 0x%x" % OF_OFF)
    A("s_lshl_b32 s48, s47, 15")
    A("s_add_u32 s31, s31, s48")
    A("s_lshl_b32 s32, s48, 1")
    A("s_sub_u32 s32, 32768, s32")
    A("s_lshl_b32 s33, s24, 17")
    A("s_lshl_b32 s34, s28, 7")
    A("s_add_u32 s33, s33, s34")
    G = Gemm(A, 8, 8, 8, "d", 1024, 20, 16, 31, 32, 33, "s30", 50)
    G.pre()
    stamp(A, kidx, 0, vt=VT)
    A("v_and_b32 v6, 31, v1")
    A("v_lshrrev_b32 v7, 5, v1")
    A("v_lshlrev_b32 v10, 10, v6")
    A("v_lshl_add_u32 v10, v7, 4, v10")
    A("s_lshl_b32 s42, s27, 16")
    A("s_add_u32 s42, s42, s48")
    A("s_lshl_b32 s43, s28, 7")
    A("s_add_u32 s42, s42, s43")
    A("s_lshl_b32 s43, s46, 6")
    A("s_add_u32 s42, s42, s43")
    A("s_lshl_b32 s44, s27, 16")
    A("s_lshl_b32 s45, s28, 13")
    A("s_add_u32 s44, s44, s45")
    A("s_lshl_b32 s45, s24, 11")
    A("s_add_u32 s44, s44, s45")
    A("s_add_u32 s44, s44, 0x%x" % G_OFF)
    A.vmem("buffer_load_dwordx4 v[160:163], v2, s[20:23], s44 offen", "g")
    A.vmem("buffer_load_dwordx4 v[164:167], v2, s[20:23], s44 offen offset:1024", "g")
    A.vmem("buffer_load_dwordx4 v[168:171], v10, s[12:15], s42 offen", "g")
    A.vmem("buffer_load_dwordx4 v[172:175], v10, s[12:15], s42 offen offset:32", "g")
    G.loop()
    stamp(A, kidx, 2, vt=VT)
    A("v_add_u32 v6, s30, v2")
    A("s_nop 10")
    for j in (1, 2, 3):
        for g in range(4):
            A("ds_write_b128 v6, %s offset:%d" % (vr(ACC + j * 16 + 4 * g, 4), j * 4096 + g * 1024))
    A("v_xor_b32 v7, 0x4000, v6")
    A("v_xor_b32 v8, 0x8000, v6")
    A("v_xor_b32 v9, 0xc000, v6")
    A("s_waitcnt lgkmcnt(0)")
    A("s_barrier")
    for j in (1, 2, 3):
        for g in range(4):
            A("ds_read_b128 %s, v%d offset:%d" % (vr(ACC + j * 16 + 4 * g, 4), 6 + j, j * 4096 + g * 1024))
    A("s_mov_b32 s41, 0xffff0000")
    A.wait_vm("g")
    for k in range(8):
        A("v_lshlrev_b32 v%d, 16, v%d" % (32 + 2 * k, 160 + k))
        A("v_and_b32 v%d, s41, v%d" % (33 + 2 * k, 160 + k))
    for k in range(8):
        A("v_lshlrev_b32 v%d, 16, v%d" % (48 + 2 * k, 168 + k))
        A("v_and_b32 v%d, s41, v%d" % (49 + 2 * k, 168 + k))
    A("s_waitcnt lgkmcnt(0)")
    for r in range(16):
        A("v_add_f32 v%d, v%d, v%d" % (ACC + r, ACC + r, ACC + 16 + r))
        A("v_add_f32 v%d, v%d, v%d" % (ACC + 32 + r, ACC + 32 + r, ACC + 48 + r))
    for r in range(16):
        A("v_add_f32 v%d, v%d, v%d" % (ACC + r, ACC + r, ACC + 32 + r))
    regs = list(range(ACC, ACC + 16))
    round_bf16(A, regs, 16, "s41")
    for r in range(16):
        A("v_mul_f32 v%d, v%d, v%d" % (ACC + r, ACC + r, 32 + r))
    for k in range(8):
        A(C(16 + k, ACC + 2 * k))
    A("s_nop 1")
    for k in (0, 1, 4, 5):
        A("v_permlane32_swap_b32 v%d, v%d" % (16 + k, 18 + k))
    A("s_nop 0")
    for k in range(8):
        A("v_lshlrev_b32 v%d, 16, v%d" % (32 + 2 * k, 16 + k))
        A("v_and_b32 v%d, s41, v%d" % (33 + 2 * k, 16 + k))
    for r in range(16):
        A("v_add_f32 v%d, v%d, v%d" % (32 + r, 32 + r, 48 + r))
    for k in range(8):
        A(C(16 + k, 32 + 2 * k))
    A("buffer_store_dwordx4 v[16:19], v10, s[36:39], s42 offen")
    A("buffer_store_dwordx4 v[20:23], v10, s[36:39], s42 offen offset:32")
    if asmlib.STAMP:
        A("s_waitcnt vmcnt(0)")
    stamp(A, kidx, 3, vt=VT)
    pad_end(A, "k3")
    A("%s:" % Lend)
    A("s_endpgm")
    return 180
```

```python
import struct
X_BYTES = 2048 * 512 * 2
WQKV_BYTES = 512 * 1536 * 2
WO_BYTES = 512 * 512 * 2
W1_BYTES = 512 * 1376 * 2
W2_BYTES = 1376 * 512 * 2
WS_BYTES = 0x2000000
MB = 1 << 20
QF_OFF = 0
KV_OFF = 2 * MB
XN_OFF = 6 * MB
HF_OFF = 8 * MB
OF_OFF = 14 * MB
G_OFF = 16 * MB
def f32bits(x):
    return struct.unpack("<I", struct.pack("<f", x))[0]
LOG2E = 1.4426950408889634
QSCALE_BITS = f32bits(0.25 * LOG2E)
HF_MB = 88 * 1024
CNT_OFF = 20 * MB
import os
TOUCH = int(os.environ.get('TOUCH', '0'))
NOFFN = int(os.environ.get('NOFFN', '0'))
AUXPRIO = int(os.environ.get('AUXPRIO', '0'))
ATTPRIO = [int(c) for c in os.environ.get('ATTPRIO', '210')]
K1TOUCH = int(os.environ.get('K1TOUCH', '0'))
K1X = int(os.environ.get('K1X', '0'))
NOATT = int(os.environ.get('NOATT', '0'))
ZROWS = int(os.environ.get('ZROWS', '1'))
ROT = int(os.environ.get('ROT', '1'))
K1NT = os.environ.get('K1NT', '')
CNT_BYTES = 8192
K1LEAD = int(os.environ.get('K1LEAD', '3'))
K1THR = int(os.environ.get('K1THR', '0'))
K1PRE = int(os.environ.get('K1PRE', '0'))
F1REP = int(os.environ.get('F1REP', '0'))
PF = int(os.environ.get('PF', '0'))
PFAT = int(os.environ.get('PFAT', '7'))
BADMAP = int(os.environ.get('BADMAP', '0'))
OUTST = os.environ.get('OUTST', '')
DBGT = int(os.environ.get('DBGT', '0'))
```

```python
import asmlib
from asmlib import *
from layout import *

Q = 4; NEGM = 16; S = [32, 48]; P = 64; O = 72; KF = [88, 92]; VF = [[96, 100], [104, 108]]
def E(r, e64=False): return "v_exp_f32%s v%d, v%d" % ("_e64" if e64 else "", r, r)
def C(d, r): return "v_cvt_pk_bf16_f32 v%d, v%d, v%d" % (d, r, r + 1)

def att_tile(A, i):
    p = i & 1; s = S[p]; sp = S[p ^ 1]
    A(E(s)); A("s_waitcnt lgkmcnt(0)")
    A(C(P + 7, sp + 14))
    A(E(s + 1)); A(E(s + 2))
    A(mfma(O, VF[p ^ 1][1], P + 4, O))
    A(C(P, s))
    A(E(s + 3)); A("s_mov_b64 exec, s[40:41]")
    A("ds_read_b128 %s, v3 offset:%d" % (vr(VF[p ^ 1][0], 4), (i + 1) * 2048))
    A("ds_read_b128 %s, v3 offset:%d" % (vr(VF[p ^ 1][1], 4), (i + 1) * 2048 + 512))
    A("s_mov_b64 exec, -1"); A(E(s + 4))
    A(C(P + 1, s + 2))
    A(E(s + 5)); A(E(s + 6))
    A(mfma(sp, KF[p ^ 1], Q, NEGM))
    A(C(P + 2, s + 4))
    A(E(s + 7)); A(E(s + 8))
    A("ds_read_b128 %s, v2 offset:%d" % (vr(KF[p], 4), (i + 2) * 2048))
    A(C(P + 3, s + 6))
    A(E(s + 9)); A(E(s + 10))
    A(mfma(O, VF[p][0], P, O))
    A(C(P + 4, s + 8))
    A(E(s + 11)); A(E(s + 12))
    A(C(P + 5, s + 10))
    A(E(s + 13)); A(E(s + 14))
    A(C(P + 6, s + 12))
    A(E(s + 15, e64=True))


def rowmax16(A, dst, s, init=None):
    if init is None:
        A("v_max3_f32 v%d, v%d, v%d, v%d" % (dst, s, s + 1, s + 2))
        rest = list(range(3, 16))
    else:
        A("v_max3_f32 v%d, v%d, v%d, v%d" % (dst, s, s + 1, init))
        rest = list(range(2, 16))
    while len(rest) >= 2:
        A("v_max3_f32 v%d, v%d, v%d, v%d" % (dst, dst, s + rest[0], s + rest[1]))
        rest = rest[2:]
    if rest:
        A("v_max_f32 v%d, v%d, v%d" % (dst, dst, s + rest[0]))


def set_negm(A, m):
    A("v_mov_b32 v9, v%d" % m)
    A("s_nop 1")
    A("v_permlane32_swap_b32 v%d, v9" % m)
    A("s_nop 1")
    A("v_max_f32 v%d, v%d, v9" % (m, m))
    A("v_sub_f32 v%d, 0, v%d" % (NEGM, m))
    for r in range(1, 16):
        A("v_mov_b32 v%d, v%d" % (NEGM + r, NEGM))


WFB = [16, 24]
AF = 32
ACC = 96

def gemm_addr(A, rowstride, kind, s_ring, s_bswap):
    A("v_lshrrev_b32 v6, 3, v1")
    A("v_and_b32 v7, 7, v1")
    A("v_lshrrev_b32 v8, 2, v1")
    A("v_and_b32 v8, 4, v8")
    A("v_xor_b32 v7, v7, v8")
    A("v_mul_u32_u24 v3, %d, v6" % rowstride)
    A("v_lshl_add_u32 v3, v7, 4, v3")
    A("v_lshrrev_b32 v6, 5, v1")
    A("v_lshlrev_b32 v4, %d, v6" % (10 if kind == "x" else 9))
    A("v_bfe_u32 v7, v1, 2, 2")
    A("v_lshl_add_u32 v4, v7, 7, v4")
    A("v_lshrrev_b32 v7, 1, v7")
    if s_bswap:
        A("v_xor_b32 v7, %s, v7" % s_bswap)
    A("v_lshl_add_u32 v4, v7, 6, v4")
    A("v_bfe_u32 v7, v1, 4, 1")
    A("v_lshl_add_u32 v4, v7, 5, v4")
    A("v_and_b32 v7, 3, v1")
    A("v_lshl_add_u32 v4, v7, 3, v4")
    A("v_add_u32 v4, %s, v4" % s_ring)
    A("v_xor_b32 v5, 64, v4")


class Gemm:
    def __init__(self, A, nsteps, DW, DA, kind, rowstride, srdA, srdW, sA0, sA1, sW, s_ring, st, aflag="", rot=None, alds=False):
        self.__dict__.update(locals())
        self.jstep = 512 if kind == "x" else 1024

    def grp(self, dst, s, unit, base):
        A = self.A
        if self.rot is None:
            A("s_add_u32 s%d, s%d, %d" % (dst, base, (s // 4) * unit))
        else:
            A("s_add_u32 s%d, %s, %d" % (dst, self.rot, s // 4))
            A("s_and_b32 s%d, s%d, 7" % (dst, dst))
            A("s_mul_i32 s%d, s%d, %d" % (dst, dst, unit))
            A("s_add_u32 s%d, s%d, s%d" % (dst, dst, base))

    def issue_w(self, s, parts=(0, 1)):
        A = self.A
        if F1REP & 8:
            return
        for hh in parts:
            if s % 4 == 0 and hh == 0:
                self.grp(self.st + 1, s, 64 * self.rowstride, self.sW)
            A("s_add_u32 m0, %s, %d" % (self.s_ring, (s % self.DW) * 2048 + hh * 1024))
            A("s_add_u32 s%d, s%d, %d" % (self.st, self.st + 1, (16 * (s % 4) + 8 * hh) * self.rowstride))
            A.vmem("buffer_load_dwordx4 v3, %s, s%d offen lds" % (sr(self.srdW, 4), self.st), "w%d" % s)

    def issue_a(self, s, parts=(0, 1)):
        A = self.A
        for a in parts:
            if s % 4 == 0 and a == 0:
                self.grp(self.st + 2, s, 4096, self.sA0)
                A("s_add_u32 s%d, s%d, s%d" % (self.st + 3, self.st + 2, self.sA1))
            A.vmem("buffer_load_dwordx4 %s, v2, %s, s%d offen offset:%d%s" % (
                vr(AF + ((s % self.DA) * 2 + a) * 4, 4), sr(self.srdA, 4), self.st + 2 + a, (s % 4) * 1024, self.aflag), "a%d" % s)

    def pre(self, a=True, w=True):
        for s in range(max(self.DW, self.DA)):
            if a and s < self.DA and s < self.nsteps:
                self.issue_a(s)
            if w and s < self.DW and s < self.nsteps:
                self.issue_w(s)

    def reads(self, s, part):
        A = self.A
        if F1REP & 4:
            return
        if self.alds:
            A("ds_read_b128 %s, v9 offset:%d" % (vr(AF + ((s & 1) * 2 + part) * 4, 4), (s // 4) * 8192 + part * 4096 + (s % 4) * 1024))
        for j in range(2):
            A("ds_read_b64_tr_b16 %s, v%d offset:%d" % (vr(WFB[s & 1] + 4 * part + 2 * j, 2), 4 + part, (s % self.DW) * 2048 + j * self.jstep))

    def loop(self, hook=None):
        A = self.A
        n = self.nsteps
        DA = 2 if self.alds else self.DA
        A.wait_vm("w0")
        self.reads(0, 0)
        self.reads(0, 1)
        for s in range(n):
            A.wait_vm("a%d" % s, extra="lgkmcnt(0)")
            if hook:
                hook(s)
            for q in range(4):
                b, a = q >> 1, q & 1
                d = ACC + q * 16
                if not (F1REP & 2):
                    A(mfma(d, WFB[s & 1] + 4 * b, AF + ((s % DA) * 2 + a) * 4, "0" if s == 0 else d))
                if q < 2:
                    if s + 1 < n:
                        if q == 0:
                            A.wait_vm("w%d" % (s + 1))
                        self.reads(s + 1, q)
                    if not self.alds and s >= 1 and s - 1 + self.DA < n:
                        self.issue_a(s - 1 + self.DA, (q,))
                elif s + self.DW < n:
                    self.issue_w(s + self.DW, (q - 2,))


def lds_wait(A, vaddr, off, val, vt, st, sleep=1):
    L = A.label("lw")
    A("s_mov_b32 s%d, 0" % (st + 1))
    A("%s:" % L)
    A("ds_read_b32 v%d, v%d offset:%d" % (vt, vaddr, off))
    A("s_add_u32 s%d, s%d, 1" % (st + 1, st + 1))
    A("s_waitcnt lgkmcnt(0)")
    A("v_readfirstlane_b32 s%d, v%d" % (st, vt))
    A("s_cmp_ge_u32 s%d, %s" % (st, val))
    A("s_cbranch_scc1 %s_d" % L)
    A("s_sleep %d" % sleep)
    A("s_cmp_lt_u32 s%d, 0x200000" % (st + 1))
    A("s_cbranch_scc1 %s" % L)
    A("%s_d:" % L)


def round_bf16(A, regs, tmp, smask):
    for k in range(0, len(regs), 2):
        A("v_cvt_pk_bf16_f32 v%d, v%d, v%d" % (tmp + k // 2, regs[k], regs[k + 1]))
    for k in range(0, len(regs), 2):
        A("v_lshlrev_b32 v%d, 16, v%d" % (regs[k], tmp + k // 2))
        A("v_and_b32 v%d, %s, v%d" % (regs[k + 1], smask, tmp + k // 2))


RING = 131072
FLAG = RING + 30720

def gen_k2(A, name="k2_kernel", kidx=0, prio=(10, 14)):
    VT = (112, 113, 114)
    kernel_begin(A, name)
    Lend = A.label("k2end")
    Laux = A.label("k2aux")
    A("s_cmp_ge_u32 s2, 256")
    A("s_cbranch_scc1 %s" % Lend)
    pad_begin(A, "k2")
    A("s_load_dwordx2 s[8:9], s[0:1], 64")
    A("s_load_dwordx4 s[4:7], s[0:1], 32")
    A("s_load_dwordx2 s[56:57], s[0:1], 0")
    A("s_load_dwordx2 s[58:59], s[0:1], 16")
    A("s_load_dwordx2 s[10:11], s[0:1], 48")
    A("v_and_b32 v1, 63, v0")
    A("v_lshrrev_b32 v8, 6, v0")
    A("s_lshr_b32 s25, s2, 5" if BADMAP else "s_and_b32 s25, s2, 7")
    A("v_readfirstlane_b32 s24, v8")
    A("s_and_b32 s26, s2, 31" if BADMAP else "s_lshr_b32 s26, s2, 3")
    A("s_lshl_b32 s27, s25, 2")
    A("s_and_b32 s28, s26, 3")
    A("s_add_u32 s27, s27, s28")
    A("s_lshr_b32 s28, s26, 2")
    A("s_waitcnt lgkmcnt(0)")
    srd(A, 20, 8, WS_BYTES)
    srd(A, 12, 4, W1_BYTES)
    srd(A, 16, 6, W2_BYTES)
    srd(A, 60, 56, X_BYTES)
    srd(A, 64, 58, WO_BYTES)
    srd(A, 68, 10, X_BYTES)
    A("s_cmp_ge_u32 s24, 8")
    A("s_cbranch_scc1 %s" % Laux)
    A("s_lshl_b32 s29, s28, 3")
    A("s_add_u32 s29, s29, s24")
    A("v_lshlrev_b32 v10, 4, v1")
    A("s_lshl_b32 s30, s27, 16")
    A("s_lshl_b32 s31, s29, 10")
    A("s_add_u32 s30, s30, s31")
    A("s_add_u32 s30, s30, 0x%x" % QF_OFF)
    A.vmem("buffer_load_dwordx4 %s, v10, s[20:23], s30 offen" % vr(Q, 4), "q")
    stamp(A, kidx, 0, vt=VT)
    A("s_setprio %d" % ATTPRIO[0])
    A("s_mov_b32 s40, 0x0000ffff")
    A("s_mov_b32 s41, 0x0000ffff")
    A("v_lshrrev_b32 v8, 5, v1")
    A("v_lshlrev_b32 v11, 8, v8")
    A("v_and_b32 v8, 15, v1")
    A("v_lshl_add_u32 v11, v8, 4, v11")
    A("v_add_u32 v11, 1024, v11")
    if ZROWS:
        A("v_and_b32 v8, 27, v1")
        A("v_cmp_eq_u32 vcc, 16, v8")
        A("v_mov_b32 v8, 0x3f803f80")
        A("s_nop 1")
        A("v_cndmask_b32 v96, 0, v8, vcc")
        for r in range(97, 112):
            A("v_mov_b32 v%d, v96" % r)
    else:
        for r in range(96, 112):
            A("v_mov_b32 v%d, 0x3f803f80" % r)
    for r in range(16):
        A("v_mov_b32 v%d, 0" % (O + r))
    for r in (P + 4, P + 5, P + 6, S[1] + 14, S[1] + 15):
        A("v_mov_b32 v%d, 0" % r)
    A("v_mov_b32 v2, v10")
    A("v_mov_b32 v3, v11")
    A("s_mov_b32 s44, 0")
    A("s_mov_b32 s45, 2")
    A("v_mov_b32 v12, %d" % FLAG)
    A("v_mov_b32 v13, 1")
    A.wait_vm("q")
    A("s_barrier")
    stamp(A, kidx, 1, vt=VT)
    A("ds_read_b128 %s, v2" % vr(KF[0], 4))
    A("ds_read_b128 %s, v2 offset:2048" % vr(KF[1], 4))
    A("s_mov_b64 exec, s[40:41]")
    A("ds_read_b128 %s, v3" % vr(VF[0][0], 4))
    A("ds_read_b128 %s, v3 offset:512" % vr(VF[0][1], 4))
    A("s_mov_b64 exec, -1")
    A("s_waitcnt lgkmcnt(3)")
    A(mfma(S[0], KF[0], Q, "0"))
    A("s_nop 11")
    rowmax16(A, 8, S[0])
    set_negm(A, 8)
    A("s_nop 1")
    A(mfma(S[0], KF[0], Q, NEGM))
    A("s_nop 11")
    if NOATT:
        A("s_mov_b64 exec, 1")
        A("ds_add_u32 v12, v13 offset:4")
        A("ds_add_u32 v12, v13 offset:36")
        A("ds_add_u32 v12, v13 offset:40")
        A("s_endpgm")
    Lloop = A.label("attloop")
    Ldone = A.label("attdone")
    A(".p2align 6")
    A("%s:" % Lloop)
    for i in range(4):
        att_tile(A, i)
    A("v_add_u32 v2, 0x2000, v2")
    A("v_add_u32 v3, 0x2000, v3")
    A("s_add_u32 s44, s44, 1")
    A("s_cmp_lg_u32 s44, s45")
    A("s_cbranch_scc1 %s" % Lloop)
    def signal(off=4):
        A("s_mov_b64 exec, 1")
        A("ds_add_u32 v12, v13 offset:%d" % off)
        A("s_mov_b64 exec, -1")
    def kvw(v):
        return lambda: lds_wait(A, 12, 0, v, 14, 46)
    evs = {2: [lambda: lds_wait(A, 12, 20, 4, 14, 46)], 4: [signal], 7: [kvw(1)], 11: [kvw(2)], 12: [lambda: signal(36)]}
    evs.setdefault(prio[0], []).append(lambda: A("s_setprio %d" % ATTPRIO[1]))
    evs.setdefault(prio[1], []).append(lambda: A("s_setprio %d" % ATTPRIO[2]))
    keys = sorted(evs)
    ev = [(k, (lambda fs: (lambda: [f() for f in fs]))(evs[k]), (keys + [16])[i + 1]) for i, k in enumerate(keys)]
    for at, code, nxt in ev:
        Ln = A.label("attev")
        A("s_cmp_lg_u32 s44, %d" % at)
        A("s_cbranch_scc1 %s" % Ln)
        code()
        A("s_mov_b32 s45, %d" % nxt)
        A("s_branch %s" % Lloop)
        A("%s:" % Ln)
    A(C(P + 7, S[1] + 14))
    A("s_nop 1")
    A(mfma(O, VF[1][1], P + 4, O))
    signal(40)
    stamp(A, kidx, 2, vt=VT)
    Lok = A.label("attok")
    A("s_nop 11")
    A("v_mul_f32 v8, 0, v%d" % O)
    for r in range(1, 8):
        A("v_fma_f32 v8, v%d, 0, v8" % (O + r))
    A("s_mov_b32 s45, 0x5f800000")
    A("v_cmp_u_f32 vcc, v8, v8")
    A("v_cmp_ngt_f32 s[46:47], s45, v%d" % (O + 8))
    A("s_nop 1")
    A("s_or_b64 s[46:47], s[46:47], vcc")
    A("s_cbranch_scc0 %s" % Lok)
    Lf1 = A.label("attf1")
    Lf2 = A.label("attf2")
    A("s_lshl_b32 s31, s27, 17")
    A("s_add_u32 s31, s31, 0x%x" % KV_OFF)
    A("s_mov_b32 s32, s31")
    A("s_mov_b32 s44, 64")
    A("v_mov_b32 v8, 0xff800000")
    A("%s:" % Lf1)
    A("buffer_load_dwordx4 %s, v10, s[20:23], s32 offen" % vr(KF[0], 4))
    A("s_add_u32 s32, s32, 2048")
    A("s_waitcnt vmcnt(0)")
    A(mfma(S[0], KF[0], Q, "0"))
    A("s_nop 11")
    rowmax16(A, 8, S[0], init=8)
    A("s_sub_u32 s44, s44, 1")
    A("s_cmp_lg_u32 s44, 0")
    A("s_cbranch_scc1 %s" % Lf1)
    set_negm(A, 8)
    for r in range(16):
        A("v_mov_b32 v%d, 0" % (O + r))
    A("s_mov_b32 s32, s31")
    A("s_mov_b32 s44, 64")
    A("%s:" % Lf2)
    A("buffer_load_dwordx4 %s, v10, s[20:23], s32 offen" % vr(KF[0], 4))
    A("s_mov_b64 exec, s[40:41]")
    A("buffer_load_dwordx4 %s, v11, s[20:23], s32 offen" % vr(VF[0][0], 4))
    A("buffer_load_dwordx4 %s, v11, s[20:23], s32 offen offset:512" % vr(VF[0][1], 4))
    A("s_mov_b64 exec, -1")
    A("s_add_u32 s32, s32, 2048")
    A("s_waitcnt vmcnt(0)")
    A(mfma(S[0], KF[0], Q, NEGM))
    A("s_nop 11")
    for r in range(16):
        A(E(S[0] + r))
    A("s_nop 0")
    for i in range(8):
        A(C(P + i, S[0] + 2 * i))
    A("s_nop 1")
    A(mfma(O, VF[0][0], P, O))
    A(mfma(O, VF[0][1], P + 4, O))
    A("s_sub_u32 s44, s44, 1")
    A("s_cmp_lg_u32 s44, 0")
    A("s_cbranch_scc1 %s" % Lf2)
    A("s_nop 11")
    A("%s:" % Lok)
    A("v_rcp_f32 v8, v%d" % (O + 8))
    A("s_lshl_b32 s30, s29, 15")
    A("s_lshl_b32 s31, s27, 10")
    A("s_add_u32 s30, s30, s31")
    A("s_add_u32 s30, s30, 0x%x" % OF_OFF)
    for r in range(8):
        A("v_mul_f32 v%d, v%d, v8" % (O + r, O + r))
    for i in range(4):
        A(C(P + i, O + 2 * i))
    pad_end(A, "k2a")
    A("buffer_store_dwordx4 %s, v10, s[20:23], s30 offen sc0 sc1" % vr(P, 4))
    if asmlib.STAMP:
        A("s_waitcnt vmcnt(0)")
    stamp(A, kidx, 3, vt=VT)
    pad_end(A, "k2")
    A("%s:" % Lend)
    A("s_endpgm")

    A("%s:" % Laux)
    VT = (14, 15, 13)
    A.vm = []
    A("s_setprio 3")
    A("s_sub_u32 s29, s24, 8")
    A("v_lshlrev_b32 v2, 4, v1")
    A("s_lshl_b32 s31, s27, 17")
    A("s_add_u32 s31, s31, 0x%x" % KV_OFF)
    A("s_lshl_b32 s32, s29, 10")
    def kvb(lo, hi, tag):
        for i in range(lo, hi):
            A("s_add_u32 m0, s32, %d" % (i * 4096))
            A("s_add_u32 s34, m0, s31")
            A.vmem("buffer_load_dwordx4 v2, s[20:23], s34 offen lds", tag)
    kvb(0, 5, "kv")
    stamp(A, kidx, 0, vt=VT)
    A("v_mov_b32 v10, %d" % FLAG)
    A("v_mov_b32 v11, 0")
    A("v_mov_b32 v12, 1")
    A("s_lshr_b32 s46, s29, 1")
    A("s_and_b32 s47, s29, 1")

    def region(dst, a, b):
        A("s_mul_i32 s%d, %s, 15360" % (dst, a))
        A("s_add_u32 s%d, s%d, %d" % (dst, dst, RING))
        A("s_lshl_b32 s49, %s, 14" % a)
        A("s_cmp_eq_u32 %s, 0" % b)
        A("s_cselect_b32 s%d, s49, s%d" % (dst, dst))

    def lds_inc(off):
        A("s_mov_b64 exec, 1")
        A("ds_add_u32 v10, v12 offset:%d" % off)
        A("s_mov_b64 exec, -1")

    def f2_setup():
        region(30, "s47", "s46")
        gemm_addr(A, 1024, "d", "s30", "s46")
        A("s_mul_i32 s33, s29, %d" % (22 * 16 * 1024))
        A("s_lshl_b32 s34, s28, 7")
        A("s_add_u32 s33, s33, s34")
        lds_wait(A, 10, 4, 8, 13, 42)
        lds_wait(A, 10, 28, 3, 13, 42)
        G2.pre(a=False)
    G2 = Gemm(A, 22, 7, 8, "d", 1024, 20, 16, 31, 32, 33, "s30", 34, aflag=" sc0 sc1")
    A("s_lshl_b32 s55, s27, 8")
    A("s_add_u32 s55, s55, 0x%x" % CNT_OFF)
    A("s_and_b32 s40, s26, 3")
    A("s_lshl_b32 s40, s40, 1")
    A("s_lshl_b32 s38, s27, 16")
    A("s_add_u32 s38, s38, 0x%x" % XN_OFF)

    def xn_block(sidx, tag):
        A("s_lshr_b32 s43, %s, 1" % sidx)
        A("s_add_u32 s43, s43, s40")
        A("s_and_b32 s43, s43, 7")
        A("s_lshl_b32 s43, s43, 12")
        A("s_and_b32 s44, %s, 1" % sidx)
        A("s_lshl_b32 s44, s44, 15")
        A("s_add_u32 s43, s43, s44")
        A("s_lshl_b32 s44, %s, 12" % sidx)
        A("s_add_u32 m0, s44, 65536")
        A("s_add_u32 s43, s43, s38")
        for u in range(4):
            A.vmem("buffer_load_dwordx4 v2, s[20:23], s43 offen offset:%d lds" % (u * 1024), tag)
    Lw3 = A.label("aux3")
    Lf2 = A.label("auxf2")
    A("s_cmp_eq_u32 s29, 3")
    A("s_cbranch_scc1 %s" % Lw3)
    A("s_mul_i32 s30, s29, 10240")
    A("s_add_u32 s30, s30, %d" % RING)
    A("s_mul_i32 s39, s28, 3")
    A("s_add_u32 s39, s39, s29")
    gemm_addr(A, 2752, "x", "s30", None)
    A("v_add_u32 v9, 65536, v2")
    A("s_lshl_b32 s33, s39, 7")
    G1 = Gemm(A, 32, 5, 0, "x", 2752, 20, 12, 31, 32, 33, "s30", 34, rot="s40", alds=True)
    A.wait_vm("kv")
    A("s_barrier")
    stamp(A, kidx, 1, vt=VT)
    kvb(5, 16, "xn1")
    if not NOFFN:
        xn_block("s29", "xn1")
        G1.pre(a=False)
    A.wait_vm("xn1")
    lds_inc(20)
    if NOFFN:
        A("s_endpgm")
    A("s_add_u32 s41, s29, 4")
    Lnof1 = A.label("nof1")
    Lf1sig = A.label("f1sig")
    A("s_cmp_ge_u32 s39, 22")
    A("s_cbranch_scc1 %s" % Lnof1)
    lds_wait(A, 10, 20, 4, 13, 42)
    A("s_setprio %d" % AUXPRIO)
    stamp(A, kidx, 2, vt=VT)

    def f1hook(s):
        if s < 4:
            xn_block("s41", "xn2")
            A("s_add_u32 s41, s41, 3")
        if s == 6:
            A.wait_vm("xn2")
            lds_inc(32)
        if s == 7:
            lds_wait(A, 10, 32, 3, 13, 42)
        if s == 16:
            lds_inc(24)
    G1.loop(f1hook)
    A("s_setprio 3")
    stamp(A, kidx, 3, vt=VT)
    A("s_mul_i32 s31, s27, %d" % (2 * HF_MB))
    A("s_lshl_b32 s32, s39, 12")
    A("s_add_u32 s31, s31, s32")
    A("s_add_u32 s31, s31, 0x%x" % HF_OFF)
    A("s_add_u32 s32, s31, %d" % HF_MB)
    A("s_nop 7")
    for b in range(2):
        for a in range(2):
            d = ACC + (b * 2 + a) * 16
            o = AF + (b * 2 + a) * 8
            for i in range(8):
                A(C(o + i, d + 2 * i))
            for i in range(8):
                A("v_pk_max_i16 v%d, v%d, 0" % (o + i, o + i))
            for j in range(2):
                A("buffer_store_dwordx4 %s, v2, s[20:23], s%d offen offset:%d sc0 sc1" % (vr(o + 4 * j, 4), 31 + a, (2 * b + j) * 1024))
    A("s_branch %s" % Lf1sig)
    A("%s:" % Lnof1)
    for t in range(4):
        xn_block("s41", "xn2")
        A("s_add_u32 s41, s41, 3")
    A("s_waitcnt vmcnt(0)")
    lds_inc(32)
    lds_inc(24)
    A("%s:" % Lf1sig)
    lds_inc(28)
    A.vm = ["h"]
    f2_setup()
    A.wait_vm("h")
    A("s_mov_b64 exec, 1")
    A("ds_add_rtn_u32 v13, v10, v12 offset:8")
    A("s_waitcnt lgkmcnt(0)")
    A("v_readfirstlane_b32 s42, v13")
    A("s_lshl_b32 s43, s28, 2")
    A("v_mov_b32 v13, s43")
    Lnp = A.label("nopub")
    A("s_cmp_lg_u32 s42, 2")
    A("s_cbranch_scc1 %s" % Lnp)
    A("buffer_store_dword v12, v13, s[20:23], s55 offen sc0 sc1")
    A("%s:" % Lnp)
    A("s_mov_b64 exec, -1")
    stamp(A, kidx, 4, vt=VT)
    A("s_cmp_lg_u32 s29, 0")
    A("s_cbranch_scc1 %s" % Lf2)
    A("v_and_b32 v13, 7, v1")
    A("v_lshlrev_b32 v13, 2, v13")
    Lp = A.label("poll")
    A("s_mov_b32 s42, 0")
    A("%s:" % Lp)
    A("buffer_load_dword v14, v13, s[20:23], s55 offen sc0 sc1")
    A("s_add_u32 s42, s42, 1")
    A("s_waitcnt vmcnt(0)")
    A("v_cmp_ne_u32 vcc, 1, v14")
    A("s_nop 4")
    A("s_cbranch_vccz %s_d" % Lp)
    A("s_sleep 1")
    A("s_cmp_lt_u32 s42, 0x40000")
    A("s_cbranch_scc1 %s" % Lp)
    A("%s_d:" % Lp)
    A("ds_write_b32 v10, v12 offset:12")
    A("s_branch %s" % Lf2)
    A("%s:" % Lw3)
    A("v_lshlrev_b32 v13, 2, v1")
    A("v_add_u32 v13, v10, v13")
    A("ds_write_b32 v13, v11")
    A.vm = ["kv"]
    A.wait_vm("kv", extra="lgkmcnt(0)")
    A("s_barrier")
    stamp(A, kidx, 1, vt=VT)
    kvb(5, 16, "xn1")
    if not NOFFN:
        xn_block("s29", "xn1")
    A.wait_vm("xn1")
    lds_inc(20)
    A("s_mov_b32 s32, %d" % (64 * 1024))

    def kvrun(end, cnt, val):
        Lk = A.label("kvl")
        A("%s:" % Lk)
        A("s_mov_b32 m0, s32")
        A("s_add_u32 s34, s32, s31")
        A("s_add_u32 s32, s32, 4096")
        for u in range(4):
            A("buffer_load_dwordx4 v2, s[20:23], s34 offen offset:%d lds" % (u * 1024))
        A("s_cmp_lg_u32 s32, %d" % (end * 1024))
        A("s_cbranch_scc1 %s" % Lk)
        A("v_mov_b32 v13, %d" % val)
        A("s_waitcnt vmcnt(%d)" % cnt)
        A("ds_write_b32 v10, v13")
    stamp(A, kidx, 2, vt=VT)
    if not NOFFN:
        lds_wait(A, 10, 24, 3, 13, 42)
    kvrun(96, 0, 1)
    stamp(A, kidx, 3, vt=VT)
    if (TOUCH & 1) and not NOFFN:
        A("v_lshlrev_b32 v9, 7, v1")
        A("s_lshl_b32 s35, s26, 13")
        for i in range(6):
            A("s_add_u32 s36, s35, %d" % (i * 262144))
            A("buffer_load_dword v%d, v9, s[16:19], s36 offen" % (16 + i))
            A("s_waitcnt vmcnt(1)")
    if not NOFFN:
        lds_wait(A, 10, 28, 3, 13, 42)
    kvrun(128, 0, 2)
    stamp(A, kidx, 4, vt=VT)
    if NOFFN:
        A("s_endpgm")
    A.vm = []
    f2_setup()
    A("%s:" % Lf2)
    A("s_xor_b32 s50, s47, 1")
    A("s_xor_b32 s51, s46, 1")
    region(52, "s50", "s46")
    region(53, "s47", "s51")
    region(54, "s50", "s51")
    A("s_mul_i32 s31, s27, %d" % (2 * HF_MB))
    A("s_add_u32 s31, s31, 0x%x" % HF_OFF)
    A("s_lshl_b32 s49, s28, 2")
    A("s_add_u32 s49, s49, s29")
    A("s_mul_i32 s49, s49, %d" % (44 * 128))
    A("s_add_u32 s49, s49, s31")
    A("s_mul_i32 s32, s29, %d" % (22 * 1024))
    A("s_add_u32 s31, s31, s32")
    A("s_mul_i32 s38, s47, %d" % HF_MB)
    A("s_add_u32 s31, s31, s38")
    A("s_lshl_b32 s38, s38, 1")
    A("s_sub_u32 s32, %d, s38" % HF_MB)
    A("v_min_u32 v9, 43, v1")
    A("v_lshlrev_b32 v9, 7, v9")
    lds_wait(A, 10, 12, 1, 13, 42)
    stamp(A, kidx, 5, vt=VT)
    if TOUCH & 2:
        A.vmem("buffer_load_dword v13, v9, s[20:23], s49 offen sc0 sc1", "t")
    G2.pre(w=False)
    A("s_setprio %d" % AUXPRIO)
    G2.loop()
    A("s_setprio 3")
    stamp(A, kidx, 6, vt=VT)
    A("v_add_u32 v6, s30, v2")
    A("v_add_u32 v7, s52, v2")
    A("v_add_u32 v8, s53, v2")
    A("v_add_u32 v9, s54, v2")
    A("s_nop 7")
    for j in (1, 2, 3):
        for g in range(4):
            A("ds_write_b128 v6, %s offset:%d" % (vr(ACC + j * 16 + 4 * g, 4), (j - 1) * 4096 + g * 1024))
    A("s_waitcnt lgkmcnt(0)")
    A("s_mov_b64 exec, 1")
    A("ds_add_u32 v10, v12 offset:16")
    A("s_mov_b64 exec, -1")
    lds_wait(A, 10, 16, 4, 13, 42)
    for j in (1, 2, 3):
        for g in range(4):
            A("ds_read_b128 %s, v%d offset:%d" % (vr(ACC + j * 16 + 4 * g, 4), 6 + j, (j - 1) * 4096 + g * 1024))
    A("s_lshl_b32 s48, s29, 14")
    A("s_add_u32 s48, s48, 32768")
    A("s_sub_u32 s49, s48, s30")
    A("v_add_u32 v4, s49, v4")
    A("v_add_u32 v5, s49, v5")
    A("s_lshl_b32 s33, s29, 17")
    A("s_lshl_b32 s34, s28, 7")
    A("s_add_u32 s33, s33, s34")
    A("s_lshl_b32 s31, s27, 16")
    A("s_lshl_b32 s32, s29, 13")
    A("s_add_u32 s31, s31, s32")
    A("s_add_u32 s31, s31, 0x%x" % OF_OFF)
    A("s_lshl_b32 s38, s47, 15")
    A("s_add_u32 s31, s31, s38")
    A("s_lshl_b32 s32, s38, 1")
    A("s_sub_u32 s32, 32768, s32")
    A("v_and_b32 v6, 31, v1")
    A("v_lshrrev_b32 v7, 5, v1")
    A("v_lshlrev_b32 v11, 10, v6")
    A("v_lshl_add_u32 v11, v7, 4, v11")
    A("s_lshl_b32 s45, s27, 16")
    A("s_add_u32 s45, s45, s38")
    A("s_add_u32 s45, s45, s34")
    A("s_lshl_b32 s44, s46, 6")
    A("s_add_u32 s45, s45, s44")
    lds_wait(A, 10, 36, 8, 13, 42)
    G3 = Gemm(A, 8, 8, 8, "d", 1024, 20, 64, 31, 32, 33, "s48", 34, aflag=" sc0 sc1")
    A.vm = []
    G3.pre(a=False)
    A("buffer_load_dwordx4 v[24:27], v11, s[60:63], s45 offen")
    A("buffer_load_dwordx4 v[28:31], v11, s[60:63], s45 offen offset:32")
    for r in range(16):
        A("v_add_f32 v%d, v%d, v%d" % (ACC + r, ACC + r, ACC + 16 + r))
        A("v_add_f32 v%d, v%d, v%d" % (ACC + 32 + r, ACC + 32 + r, ACC + 48 + r))
    for r in range(16):
        A("v_add_f32 v%d, v%d, v%d" % (ACC + r, ACC + r, ACC + 32 + r))
    A("s_mov_b32 s41, 0xffff0000")
    regs = list(range(ACC, ACC + 16))
    round_bf16(A, regs, 16, "s41")
    for r in regs:
        A("v_mul_f32 v%d, 0x%x, v%d" % (r + 16, f32bits(-LOG2E), r))
    for r in regs:
        A("v_exp_f32 v%d, v%d" % (r + 16, r + 16))
    for r in regs:
        A("v_add_f32 v%d, 1.0, v%d" % (r + 16, r + 16))
    for r in regs:
        A("v_rcp_f32 v%d, v%d" % (r + 16, r + 16))
    for r in regs:
        A("v_mul_f32 v%d, v%d, v%d" % (r, r, r + 16))
    for k in range(8):
        A(C(160 + k, ACC + 2 * k))
    A("s_add_u32 s36, s31, 4096")
    A("s_add_u32 s35, s31, s32")
    A("s_add_u32 s37, s36, s32")
    A("v_add_u32 v6, s48, v2")
    A("s_xor_b32 s49, s29, 1")
    A("s_lshl_b32 s49, s49, 14")
    A("v_add_u32 v7, s49, v2")
    A("s_xor_b32 s49, s29, 2")
    A("s_lshl_b32 s49, s49, 14")
    A("v_add_u32 v8, s49, v2")
    A("s_xor_b32 s49, s29, 3")
    A("s_lshl_b32 s49, s49, 14")
    A("v_add_u32 v9, s49, v2")
    A("s_waitcnt vmcnt(0)")
    stamp(A, kidx, 7, vt=VT)
    pad_end(A, "k2g")
    lds_wait(A, 10, 40, 8, 13, 42)
    stamp(A, kidx, 8, vt=VT)
    if asmlib.STAMP:
        A("s_waitcnt vmcnt(0)")
    Li = A.label("oiss")
    Lc = A.label("ochk")
    A("s_mov_b32 s50, 0")
    A("s_mov_b32 s51, 0")
    for st_ in range(8):
        A("%s_%d:" % (Li, st_))
        for a in range(2):
            A("buffer_load_dwordx4 %s, v2, s[20:23], s%d offen offset:%d sc0 sc1" % (vr(AF + (st_ * 2 + a) * 4, 4), ((31, 35), (36, 37))[st_ >> 2][a], (st_ & 3) * 1024))
    for st_ in range(1, 8):
        A("s_cmp_eq_u32 s50, %d" % st_)
        A("s_cbranch_scc1 %s_%d" % (Lc, st_))
    for st_ in range(8):
        for b in range(2):
            for j in range(2):
                A("ds_read_b64_tr_b16 %s, v%d offset:%d" % (vr(16 + 4 * b + 2 * j, 2), 4 + b, st_ * 2048 + j * 1024))
        A("%s_%d:" % (Lc, st_))
        A("s_waitcnt vmcnt(%d)" % (2 * (7 - st_)))
        f = AF + st_ * 8
        A("v_max3_u32 v13, v%d, v%d, v%d" % (f, f + 1, f + 2))
        A("v_max3_u32 v14, v%d, v%d, v%d" % (f + 3, f + 4, f + 5))
        A("v_max3_u32 v13, v13, v%d, v%d" % (f + 6, f + 7))
        A("v_max_u32 v13, v13, v14")
        A("v_cmp_eq_u32 vcc, -1, v13")
        Lg = A.label("ogo")
        A("s_add_u32 s51, s51, 1")
        A("s_mov_b32 s50, %d" % st_)
        A("s_nop 2")
        A("s_cbranch_vccz %s" % Lg)
        A("s_cmp_lt_u32 s51, 0x20000")
        A("s_cbranch_scc1 %s_%d" % (Li, st_))
        A("%s:" % Lg)
        A("s_waitcnt lgkmcnt(0)")
        for q in range(4):
            d = ACC + q * 16
            A(mfma(d, 16 + 4 * (q >> 1), f + 4 * (q & 1), "0" if st_ == 0 else d))
    stamp(A, kidx, 9, vt=VT)
    for k in range(8):
        A("v_lshlrev_b32 v%d, 16, v%d" % (32 + 2 * k, 160 + k))
        A("v_and_b32 v%d, s41, v%d" % (33 + 2 * k, 160 + k))
    for j in (1, 2, 3):
        for g in range(4):
            A("ds_write_b128 v6, %s offset:%d" % (vr(ACC + j * 16 + 4 * g, 4), j * 4096 + g * 1024))
    for k in range(8):
        A("v_lshlrev_b32 v%d, 16, v%d" % (48 + 2 * k, 24 + k))
        A("v_and_b32 v%d, s41, v%d" % (49 + 2 * k, 24 + k))
    A("s_waitcnt lgkmcnt(0)")
    A("s_barrier")
    for j in (1, 2, 3):
        for g in range(4):
            A("ds_read_b128 %s, v%d offset:%d" % (vr(ACC + j * 16 + 4 * g, 4), 6 + j, 32768 + j * 4096 + g * 1024))
    A("s_waitcnt lgkmcnt(4)")
    for r in range(16):
        A("v_add_f32 v%d, v%d, v%d" % (ACC + r, ACC + r, ACC + 16 + r))
    for r in range(16):
        A("v_add_f32 v%d, v%d, v%d" % (ACC + r, ACC + r, ACC + 32 + r))
    A("s_waitcnt lgkmcnt(0)")
    for r in range(16):
        A("v_add_f32 v%d, v%d, v%d" % (ACC + r, ACC + r, ACC + 48 + r))
    round_bf16(A, regs, 16, "s41")
    for r in range(16):
        A("v_mul_f32 v%d, v%d, v%d" % (ACC + r, ACC + r, 32 + r))
    for k in range(8):
        A(C(16 + k, ACC + 2 * k))
    A("s_nop 1")
    for k in (0, 1, 4, 5):
        A("v_permlane32_swap_b32 v%d, v%d" % (16 + k, 18 + k))
    A("s_nop 0")
    for k in range(8):
        A("v_lshlrev_b32 v%d, 16, v%d" % (32 + 2 * k, 16 + k))
        A("v_and_b32 v%d, s41, v%d" % (33 + 2 * k, 16 + k))
    for r in range(16):
        A("v_add_f32 v%d, v%d, v%d" % (32 + r, 32 + r, 48 + r))
    for k in range(8):
        A(C(16 + k, 32 + 2 * k))
    pad_end(A, "k2s")
    A("buffer_store_dwordx4 v[16:19], v11, s[68:71], s45 offen" + OUTST)
    A("buffer_store_dwordx4 v[20:23], v11, s[68:71], s45 offen offset:32" + OUTST)
    if asmlib.STAMP:
        A("s_waitcnt vmcnt(0)")
    stamp(A, kidx, 10, vt=VT)
    pad_end(A, "k2e")
    A("s_endpgm")
    return 168


def gen_k3(A, name="k3_kernel", kidx=0):
    VT = (176, 177, 178)
    kernel_begin(A, name)
    Lend = A.label("k3end")
    A("s_cmp_ge_u32 s2, 256")
    A("s_cbranch_scc1 %s" % Lend)
    pad_begin(A, "k3")
    A("s_load_dwordx2 s[4:5], s[0:1], 16")
    A("s_load_dwordx2 s[6:7], s[0:1], 0")
    A("s_load_dwordx2 s[8:9], s[0:1], 64")
    A("s_load_dwordx2 s[10:11], s[0:1], 48")
    A("v_and_b32 v1, 63, v0")
    A("v_lshrrev_b32 v8, 6, v0")
    A("s_lshr_b32 s25, s2, 5" if BADMAP else "s_and_b32 s25, s2, 7")
    A("v_readfirstlane_b32 s24, v8")
    A("s_and_b32 s26, s2, 31" if BADMAP else "s_lshr_b32 s26, s2, 3")
    A("s_lshl_b32 s27, s25, 2")
    A("s_and_b32 s28, s26, 3")
    A("s_add_u32 s27, s27, s28")
    A("s_lshr_b32 s28, s26, 2")
    A("v_lshlrev_b32 v2, 4, v1")
    A("s_lshl_b32 s30, s24, 14")
    A("s_lshr_b32 s46, s24, 1")
    A("s_and_b32 s47, s24, 1")
    gemm_addr(A, 1024, "d", "s30", "s46")
    A("s_waitcnt lgkmcnt(0)")
    srd(A, 12, 6, X_BYTES)
    srd(A, 16, 4, WO_BYTES)
    srd(A, 20, 8, WS_BYTES)
    srd(A, 36, 10, X_BYTES)
    A("s_lshl_b32 s31, s27, 16")
    A("s_lshl_b32 s32, s24, 13")
    A("s_add_u32 s31, s31, s32")
    A("s_add_u32 s31, s31, 0x%x" % OF_OFF)
    A("s_lshl_b32 s48, s47, 15")
    A("s_add_u32 s31, s31, s48")
    A("s_lshl_b32 s32, s48, 1")
    A("s_sub_u32 s32, 32768, s32")
    A("s_lshl_b32 s33, s24, 17")
    A("s_lshl_b32 s34, s28, 7")
    A("s_add_u32 s33, s33, s34")
    G = Gemm(A, 8, 8, 8, "d", 1024, 20, 16, 31, 32, 33, "s30", 50)
    G.pre()
    stamp(A, kidx, 0, vt=VT)
    A("v_and_b32 v6, 31, v1")
    A("v_lshrrev_b32 v7, 5, v1")
    A("v_lshlrev_b32 v10, 10, v6")
    A("v_lshl_add_u32 v10, v7, 4, v10")
    A("s_lshl_b32 s42, s27, 16")
    A("s_add_u32 s42, s42, s48")
    A("s_lshl_b32 s43, s28, 7")
    A("s_add_u32 s42, s42, s43")
    A("s_lshl_b32 s43, s46, 6")
    A("s_add_u32 s42, s42, s43")
    A("s_lshl_b32 s44, s27, 16")
    A("s_lshl_b32 s45, s28, 13")
    A("s_add_u32 s44, s44, s45")
    A("s_lshl_b32 s45, s24, 11")
    A("s_add_u32 s44, s44, s45")
    A("s_add_u32 s44, s44, 0x%x" % G_OFF)
    A.vmem("buffer_load_dwordx4 v[160:163], v2, s[20:23], s44 offen", "g")
    A.vmem("buffer_load_dwordx4 v[164:167], v2, s[20:23], s44 offen offset:1024", "g")
    A.vmem("buffer_load_dwordx4 v[168:171], v10, s[12:15], s42 offen", "g")
    A.vmem("buffer_load_dwordx4 v[172:175], v10, s[12:15], s42 offen offset:32", "g")
    G.loop()
    stamp(A, kidx, 2, vt=VT)
    A("v_add_u32 v6, s30, v2")
    A("s_nop 10")
    for j in (1, 2, 3):
        for g in range(4):
            A("ds_write_b128 v6, %s offset:%d" % (vr(ACC + j * 16 + 4 * g, 4), j * 4096 + g * 1024))
    A("v_xor_b32 v7, 0x4000, v6")
    A("v_xor_b32 v8, 0x8000, v6")
    A("v_xor_b32 v9, 0xc000, v6")
    A("s_waitcnt lgkmcnt(0)")
    A("s_barrier")
    for j in (1, 2, 3):
        for g in range(4):
            A("ds_read_b128 %s, v%d offset:%d" % (vr(ACC + j * 16 + 4 * g, 4), 6 + j, j * 4096 + g * 1024))
    A("s_mov_b32 s41, 0xffff0000")
    A.wait_vm("g")
    for k in range(8):
        A("v_lshlrev_b32 v%d, 16, v%d" % (32 + 2 * k, 160 + k))
        A("v_and_b32 v%d, s41, v%d" % (33 + 2 * k, 160 + k))
    for k in range(8):
        A("v_lshlrev_b32 v%d, 16, v%d" % (48 + 2 * k, 168 + k))
        A("v_and_b32 v%d, s41, v%d" % (49 + 2 * k, 168 + k))
    A("s_waitcnt lgkmcnt(0)")
    for r in range(16):
        A("v_add_f32 v%d, v%d, v%d" % (ACC + r, ACC + r, ACC + 16 + r))
        A("v_add_f32 v%d, v%d, v%d" % (ACC + 32 + r, ACC + 32 + r, ACC + 48 + r))
    for r in range(16):
        A("v_add_f32 v%d, v%d, v%d" % (ACC + r, ACC + r, ACC + 32 + r))
    regs = list(range(ACC, ACC + 16))
    round_bf16(A, regs, 16, "s41")
    for r in range(16):
        A("v_mul_f32 v%d, v%d, v%d" % (ACC + r, ACC + r, 32 + r))
    for k in range(8):
        A(C(16 + k, ACC + 2 * k))
    A("s_nop 1")
    for k in (0, 1, 4, 5):
        A("v_permlane32_swap_b32 v%d, v%d" % (16 + k, 18 + k))
    A("s_nop 0")
    for k in range(8):
        A("v_lshlrev_b32 v%d, 16, v%d" % (32 + 2 * k, 16 + k))
        A("v_and_b32 v%d, s41, v%d" % (33 + 2 * k, 16 + k))
    for r in range(16):
        A("v_add_f32 v%d, v%d, v%d" % (32 + r, 32 + r, 48 + r))
    for k in range(8):
        A(C(16 + k, 32 + 2 * k))
    A("buffer_store_dwordx4 v[16:19], v10, s[36:39], s42 offen")
    A("buffer_store_dwordx4 v[20:23], v10, s[36:39], s42 offen offset:32")
    if asmlib.STAMP:
        A("s_waitcnt vmcnt(0)")
    stamp(A, kidx, 3, vt=VT)
    pad_end(A, "k3")
    A("%s:" % Lend)
    A("s_endpgm")
    return 180
```

```python
import asmlib
from asmlib import *
from layout import *

WBASE = 65536
WSLOT = 24576
K1_LDS = 163840

def gen_k1(A, name="k1_kernel", kidx=0, st_flag="", code_bytes=0):
    VT = (128, 129, 130)
    kernel_begin(A, name)
    Lend = A.label("k1end")
    Lld = A.label("k1ld")
    A("s_cmp_ge_u32 s2, 256")
    A("s_cbranch_scc1 %s" % Lend)
    pad_begin(A, "k1")
    A("s_load_dwordx4 s[4:7], s[0:1], 0")
    A("s_load_dwordx2 s[8:9], s[0:1], 64")
    A("v_and_b32 v1, 63, v0")
    A("v_lshrrev_b32 v11, 6, v0")
    A("s_lshr_b32 s25, s2, 5" if BADMAP else "s_and_b32 s25, s2, 7")
    A("v_readfirstlane_b32 s24, v11")
    A("s_and_b32 s26, s2, 31" if BADMAP else "s_lshr_b32 s26, s2, 3")
    A("s_and_b32 s27, s25, 3")
    A("s_lshl_b32 s27, s27, 3")
    A("s_and_b32 s28, s26, 7")
    A("s_add_u32 s27, s27, s28")
    A("s_lshr_b32 s28, s25, 2")
    A("s_lshl_b32 s28, s28, 2")
    A("s_lshr_b32 s29, s26, 3")
    A("s_add_u32 s28, s28, s29")
    A("v_lshrrev_b32 v11, 3, v1")
    A("v_and_b32 v12, 7, v1")
    A("v_lshlrev_b32 v2, 10, v11")
    A("v_lshl_add_u32 v2, v12, 4, v2")
    A("s_lshl_b32 s55, s29, 1")
    A("s_lshr_b32 s54, s25, 2")
    A("s_add_u32 s55, s55, s54")
    if ROT == 1:
        A("s_add_u32 s55, s55, s26")
    A("s_and_b32 s55, s55, 7")
    A("s_waitcnt lgkmcnt(0)")
    srd(A, 12, 4, X_BYTES)
    srd(A, 16, 6, WQKV_BYTES)
    srd(A, 20, 8, WS_BYTES)
    A("s_cmp_ge_u32 s24, 8")
    A("s_cbranch_scc1 %s" % Lld)
    A("s_lshl_b32 s30, s27, 16")
    A("s_lshl_b32 s31, s24, 13")
    A("s_add_u32 s30, s30, s31")
    XR = 32
    for c in range(8):
        A("s_add_u32 s31, s55, %d" % c)
        A("s_and_b32 s31, s31, 7")
        A("s_lshl_b32 s31, s31, 7")
        A("s_add_u32 s31, s31, s30")
        A.vmem("buffer_load_dwordx4 %s, v2, s[12:15], s31 offen%s" % (vr(XR + c * 4, 4), K1NT), "x%d" % c)
    if K1PRE:
        A("s_barrier")
    A("v_xor_b32 v13, v11, v12")
    A("v_lshlrev_b32 v4, 9, v12")
    A("v_lshl_add_u32 v10, v11, 4, v4")
    A("v_lshl_add_u32 v4, v13, 4, v4")
    A("s_lshr_b32 s35, s24, 2")
    A("s_and_b32 s36, s24, 3")
    A("s_lshl_b32 s37, s35, 12")
    A("s_lshl_b32 s38, s36, 7")
    A("s_add_u32 s37, s37, s38")
    A("v_add_u32 v4, s37, v4")
    A("s_lshl_b32 s52, s27, 1")
    A("s_add_u32 s52, s52, s35")
    A("s_lshl_b32 s52, s52, 15")
    A("s_lshl_b32 s53, s55, 12")
    A("s_add_u32 s52, s52, s53")
    A("s_add_u32 s52, s52, s38")
    A("s_add_u32 s52, s52, 0x%x" % XN_OFF)
    A("s_bfe_u32 s35, s24, 0x10001")
    A("s_and_b32 s36, s24, 1")
    A("v_and_b32 v13, 31, v1")
    A("v_lshrrev_b32 v14, 5, v1")
    A("s_lshl_b32 s37, s36, 12")
    for v in range(4):
        A("v_add_u32 v15, %d, v14" % (2 * v))
        A("v_xor_b32 v16, v13, v15")
        A("v_lshlrev_b32 v16, 4, v16")
        A("v_lshl_add_u32 v16, v15, 9, v16")
        A("v_add_u32 v%d, s37, v16" % (5 + v))
    A("v_mul_u32_u24 v9, 3072, v14")
    A("v_bfe_u32 v15, v1, 2, 2")
    A("v_lshl_add_u32 v9, v15, 7, v9")
    A("v_lshrrev_b32 v15, 1, v15")
    A("v_xor_b32 v15, s35, v15")
    A("v_lshl_add_u32 v9, v15, 6, v9")
    A("v_bfe_u32 v15, v1, 4, 1")
    A("v_lshl_add_u32 v9, v15, 5, v9")
    A("v_and_b32 v15, 3, v1")
    A("v_lshl_add_u32 v9, v15, 3, v9")
    A("v_add_u32 v9, %d, v9" % WBASE)
    A("v_lshlrev_b32 v11, 4, v1")
    A("v_bfe_u32 v15, v1, 4, 1")
    A("v_lshlrev_b32 v12, 17, v15")
    A("v_lshl_add_u32 v12, v14, 8, v12")
    A("v_and_b32 v15, 15, v1")
    A("v_lshl_add_u32 v12, v15, 4, v12")
    A("s_lshl_b32 s43, s27, 1")
    A("s_add_u32 s43, s43, s36")
    A("s_lshl_b32 s46, s28, 2")
    A("s_lshl_b32 s47, s35, 1")
    A("s_add_u32 s46, s46, s47")
    A("s_lshl_b32 s47, s46, 16")
    A("s_lshl_b32 s48, s43, 10")
    A("s_add_u32 s47, s47, s48")
    A("s_add_u32 s47, s47, 0x%x" % QF_OFF)
    A("s_add_u32 s48, s47, 65536")
    A("s_lshl_b32 s49, s46, 17")
    A("s_lshl_b32 s50, s43, 11")
    A("s_add_u32 s49, s49, s50")
    A("s_add_u32 s49, s49, 0x%x" % KV_OFF)
    A("s_add_u32 s50, s49, 131072")
    A("s_mov_b32 s51, 0x%x" % QSCALE_BITS)
    ACC = [80, 96, 112]
    for r in range(80, 128):
        A("v_mov_b32 v%d, 0" % r)
    A("s_mov_b32 s56, 1")
    A("s_mov_b32 s57, %d" % WSLOT)
    A("s_mov_b32 s59, 0x%x" % ((-3 * WSLOT) & 0xffffffff))
    A("s_movk_i32 s58, 0x2000")
    A("v_mov_b32 v14, 0x3f803f80")
    A("v_mov_b32 v15, 0xffff0000")
    for i in range(4):
        A("v_mov_b32 v%d, 0" % (16 + i))
    for c in range(8):
        A.wait_vm("x%d" % c)
        for d in range(4):
            r = XR + c * 4 + d
            A("v_dot2c_f32_bf16 v%d, v14, v%d" % (16 + (d & 1), r))
            A("v_dot2c_f32_bf16 v%d, v%d, v%d" % (18 + (d & 1), r, r))
    A("s_nop 2")
    A("v_add_f32 v16, v16, v17")
    A("v_add_f32 v18, v18, v19")
    for mode in ("quad_perm:[1,0,3,2]", "quad_perm:[2,3,0,1]", "row_half_mirror"):
        A("s_nop 0")
        for r in (16, 18):
            A("v_add_f32_dpp v%d, v%d, v%d %s row_mask:0xf bank_mask:0xf" % (r, r, r, mode))
    A("v_mul_f32 v16, 0x3b000000, v16")
    A("v_mul_f32 v18, 0x3b000000, v18")
    A("v_fma_f32 v18, -v16, v16, v18")
    A("v_max_f32 v18, 0, v18")
    A("v_cvt_pk_bf16_f32 v17, v16, v18")
    A("v_lshlrev_b32 v16, 16, v17")
    A("v_and_b32 v18, v15, v17")
    A("v_add_f32 v18, 0x3727c5ac, v18")
    A("v_cvt_pk_bf16_f32 v18, v18, v18")
    A("v_and_b32 v18, v15, v18")
    A("v_sqrt_f32 v18, v18")
    A("s_nop 0")
    A("v_cvt_pk_bf16_f32 v18, v18, v18")
    A("v_and_b32 v18, v15, v18")
    A("v_rcp_f32 v20, v18")
    A("s_nop 0")
    A("v_mul_f32 v21, -v16, v20")
    if asmlib.STAMP:
        A("s_memrealtime s[62:63]")
        A("s_memtime s[64:65]")
    for c in range(8):
        b = XR + c * 4
        T = 64 + 8 * (c & 1)
        for d in range(4):
            A("v_lshlrev_b32 v%d, 16, v%d" % (T + 2 * d, b + d))
            A("v_and_b32 v%d, v15, v%d" % (T + 2 * d + 1, b + d))
        for d in range(8):
            A("v_fma_f32 v%d, v%d, v20, v21" % (T + d, T + d))
        for d in range(4):
            A("v_cvt_pk_bf16_f32 v%d, v%d, v%d" % (b + d, T + 2 * d, T + 2 * d + 1))
        A("ds_write_b128 v4, %s offset:%d" % (vr(b, 4), c * 8192))
    if asmlib.STAMP:
        A("s_memrealtime s[66:67]")
        A("s_memtime s[68:69]")
    A("s_waitcnt lgkmcnt(0)")
    A("s_barrier")
    if asmlib.STAMP:
        A("s_memrealtime s[70:71]")
        A("s_memtime s[72:73]")
        A("s_waitcnt lgkmcnt(0)")
    Lmm = A.label("k1mm")
    A("s_cmp_lt_u32 s24, 4")
    A("s_cbranch_scc1 %s" % Lmm)
    A("buffer_store_dwordx4 %s, v10, s[20:23], s52 offen%s" % (vr(XR, 4), st_flag))
    for i in range(4):
        A("v_mov_b32 v%d, -1" % (16 + i))
    A("s_lshl_b32 s34, s2, 13")
    A("s_lshl_b32 s35, s24, 11")
    A("s_add_u32 s34, s34, s35")
    A("s_add_u32 s34, s34, 0x%x" % (OF_OFF - 8192))
    A("buffer_store_dwordx4 v[16:19], v11, s[20:23], s34 offen" + st_flag)
    A("buffer_store_dwordx4 v[16:19], v11, s[20:23], s34 offen offset:1024" + st_flag)
    for i in range(7):
        A("s_barrier")
    A("s_endpgm")
    A("%s:" % Lmm)
    for i in range(4):
        A("v_mov_b32 v%d, v%d" % (132 + i, XR + i))
    BUF = [16, 32, 48, 64]
    A("s_setprio 3")

    def reads(r, part):
        b = BUF[r]
        if part == 0:
            A("ds_read_b128 %s, v%d" % (vr(b, 4), 5 + r))
        for j in range(2):
            A("ds_read_b64_tr_b16 %s, v9 offset:%d" % (vr(b + 4 + 4 * part + 2 * j, 2), r * 6144 + part * 1024 + j * 512))
    for r in range(2):
        for part in range(3):
            reads(r, part)
    Lloop = A.label("k1loop")
    A(".p2align 6")
    A("%s:" % Lloop)
    filler = {(0, 0): "s_and_b32 s53, s56, 3", (0, 1): "s_cselect_b32 s54, s57, s59", (0, 2): "v_add_u32 v5, s58, v5",
              (1, 0): "s_add_u32 s56, s56, 1", (1, 1): "v_add_u32 v6, s58, v6", (1, 2): "v_add_u32 v7, s58, v7",
              (2, 0): "v_add_u32 v8, s58, v8", (2, 1): "s_nop 0", (2, 2): "s_nop 0", (3, 0): "s_nop 0", (3, 1): "s_nop 0", (3, 2): "s_cmp_lg_u32 s56, 9"}
    for r in range(4):
        b = BUF[r]
        ms = [mfma(ACC[0], b + 4, b, ACC[0]), mfma(ACC[1], b + 8, b, ACC[1]), mfma(ACC[2], b, b + 12, ACC[2])]
        for G in range(3):
            A(filler[(r, G)])
            A("s_waitcnt lgkmcnt(%d)" % (11 if G == 0 else 12))
            A(ms[G])
            if r == 2 and G == 0:
                A("s_barrier")
                A("v_add_u32 v9, s54, v9")
            reads((r + 2) & 3, G)
    A("s_cbranch_scc1 %s" % Lloop)
    if asmlib.STAMP:
        A("s_memrealtime s[74:75]")
        A("s_memtime s[76:77]")
    A("buffer_store_dwordx4 v[132:135], v10, s[20:23], s52 offen" + st_flag)
    A("s_nop 6")
    A("s_waitcnt lgkmcnt(0)")
    for t in (1, 2, 0):
        regs = ACC[t]
        if t == 0:
            for r in range(16):
                A("v_mul_f32 v%d, s51, v%d" % (ACC[0] + r, ACC[0] + r))
        for i in range(8):
            A("v_cvt_pk_bf16_f32 v%d, v%d, v%d" % (16 + t * 8 + i, regs + 2 * i, regs + 2 * i + 1))
        if t == 0:
            A("buffer_store_dwordx4 v[16:19], v11, s[20:23], s47 offen" + st_flag)
            A("buffer_store_dwordx4 v[20:23], v11, s[20:23], s48 offen" + st_flag)
        elif t == 1:
            A("buffer_store_dwordx4 v[24:27], v11, s[20:23], s49 offen" + st_flag)
            A("buffer_store_dwordx4 v[28:31], v11, s[20:23], s50 offen" + st_flag)
        else:
            A("buffer_store_dwordx4 v[32:35], v12, s[20:23], s49 offen offset:1024" + st_flag)
            A("buffer_store_dwordx4 v[36:39], v12, s[20:23], s49 offen offset:1536" + st_flag)
    if asmlib.STAMP:
        A("s_waitcnt vmcnt(0)")
        stamp(A, kidx, 5, vt=VT)
        for slot, b in ((0, 62), (1, 62), (2, 66), (3, 70), (4, 74)):
            stamp(A, kidx, slot, vt=VT, saved=b)
    pad_end(A, "k1")
    A("%s:" % Lend)
    A("s_endpgm")

    A("%s:" % Lld)
    A.vm = []
    Lpf = A.label("k1pf")
    A("s_cmp_eq_u32 s24, 11")
    A("s_cbranch_scc1 %s" % Lpf)
    stamp(A, kidx, 0, vt=VT)
    A("v_lshrrev_b32 v13, 2, v1")
    A("v_and_b32 v13, 4, v13")
    A("v_xor_b32 v13, v12, v13")
    A("v_mul_u32_u24 v3, 3072, v11")
    A("v_lshl_add_u32 v3, v13, 4, v3")
    A("s_sub_u32 s29, s24, 8")
    A("s_lshl_b32 s33, s29, 10")
    A("s_lshl_b32 s32, s28, 7")
    A("s_add_u32 s32, s32, s33")
    A("s_add_u32 s33, s33, %d" % WBASE)

    def wdma(c):
        A("s_add_u32 s34, s55, %d" % c)
        A("s_and_b32 s34, s34, 7")
        A("s_mul_i32 s34, s34, %d" % (4 * 49152))
        for i in range(8):
            A("s_add_u32 m0, s33, %d" % ((c & 3) * WSLOT + i * 3072))
            A("s_add_u32 s34, s34, %s" % ("s32" if i == 0 else "24576"))
            A.vmem("buffer_load_dwordx4 v3, s[16:19], s34 offen%s lds" % K1NT, "w%d" % c)
    if K1PRE == 2:
        wdma(0)
    if K1PRE:
        A("s_barrier")
    for c in range(1 if K1PRE == 2 else 0, K1LEAD):
        wdma(c)
    nxt = K1LEAD
    for c in range(8):
        A.wait_vm("w%d" % c)
        if c in (0, 1, 4, 7):
            stamp(A, kidx, {0: 2, 1: 3, 4: 4, 7: 5}[c], vt=VT)
        A("s_barrier")
        if nxt < 8 and nxt <= max(3, c + 2):
            wdma(nxt)
            nxt += 1
    assert nxt == 8
    A("s_endpgm")
    A("%s:" % Lpf)
    if DBGT:
        A("s_memrealtime s[80:81]")
        A("s_load_dwordx2 s[72:73], s[0:1], 56")
        A("s_getreg_b32 s78, hwreg(HW_REG_XCC_ID)")
        A("s_waitcnt lgkmcnt(0)")
        srd(A, 84, 72, 256)
        A("s_and_b32 s78, s78, 7")
        A("s_lshl_b32 s78, s78, 3")
        A("s_and_b32 s80, s80, 0xffffff")
        A("s_sub_u32 s79, 0x1000000, s80")
        A("v_mov_b32 v20, s80")
        A("v_mov_b32 v21, s79")
        A("v_mov_b32 v22, s78")
        A("s_mov_b64 exec, 1")
        A("buffer_atomic_umax v20, v22, s[84:87], 0 offen")
        A("buffer_atomic_umax v21, v22, s[84:87], 0 offen offset:4")
        A("s_mov_b64 exec, -1")
    if K1TOUCH:
        A("v_lshrrev_b32 v13, 5, v1")
        A("v_bfe_u32 v14, v1, 2, 3")
        A("v_and_b32 v15, 3, v1")
        A("v_min_u32 v15, 2, v15")
        A("v_mul_u32_u24 v5, 3072, v14")
        A("v_lshl_add_u32 v5, v15, 10, v5")
        A("s_and_b32 s37, s26, 7")
        A("s_mul_i32 s37, s37, 24576")
        A("s_lshl_b32 s38, s28, 7")
        A("s_add_u32 s37, s37, s38")
        A("s_mov_b32 s39, %d" % (4 * 49152))
        A("v_add_u32 v13, s55, v13")
        for i in range(4):
            A("v_and_b32 v14, 7, v13")
            A("v_mul_lo_u32 v14, v14, s39")
            A("v_add_u32 v14, v14, v5")
            A("buffer_load_dword v%d, v14, s[16:19], s37 offen" % (16 + i))
            A("v_add_u32 v13, 2, v13")
    if code_bytes:
        Lc = A.label("k1code")
        A("s_cmp_ge_u32 s26, (L_code_end - L_code_pc + 8191) / 8192")
        A("s_cbranch_scc1 %s" % Lc)
        A("s_getpc_b64 s[38:39]")
        A("L_code_pc:")
        A("s_lshl_b32 s37, s26, 13")
        A("v_lshlrev_b32 v15, 7, v1")
        A("v_add_u32 v15, s37, v15")
        A("v_min_u32 v15, L_code_end - L_code_pc - 4, v15")
        A("global_load_dword v14, v15, s[38:39]")
        A("%s:" % Lc)
    Lz = A.label("k1z")
    A("s_cmp_lg_u32 s2, 0")
    A("s_cbranch_scc1 %s" % Lz)
    for i in range(4):
        A("v_mov_b32 v%d, 0" % (24 + i))
    A("v_lshlrev_b32 v6, 4, v1")
    for i in range(CNT_BYTES // 1024):
        A("s_mov_b32 s34, 0x%x" % (CNT_OFF + i * 1024))
        A("buffer_store_dwordx4 v[24:27], v6, s[20:23], s34 offen" + st_flag)
    A("%s:" % Lz)
    if PF:
        A("s_load_dwordx2 s[40:41], s[0:1], 16")
        A("s_load_dwordx4 s[44:47], s[0:1], 32")
        A("v_lshlrev_b32 v9, 7, v1")
        A("s_waitcnt lgkmcnt(0)")
        srd(A, 60, 44, W1_BYTES)
        srd(A, 64, 46, W2_BYTES)
        srd(A, 68, 40, WO_BYTES)
    for i in range(10 if K1PRE else 9):
        A("s_barrier")
        if PF and i == PFAT:
            A("s_mul_i32 s34, s2, %d" % (43 * 128))
            A("v_min_u32 v7, %d, v9" % (42 * 128))
            if PF == 1:
                A("buffer_load_dword v20, v7, s[60:63], s34 offen")
            else:
                A("s_lshl_b32 s35, s26, 13")
                for t in range(6):
                    A("s_add_u32 s36, s35, %d" % (t * 262144))
                    A("buffer_load_dword v%d, v9, s[60:63], s36 offen" % (28 + t))
            A("buffer_load_dword v21, v7, s[64:67], s34 offen")
            A("s_lshl_b32 s34, s2, 11")
            A("v_min_u32 v7, %d, v9" % (15 * 128))
            A("buffer_load_dword v22, v7, s[68:71], s34 offen")
    A("s_endpgm")
    return 136
```

```python
import asmlib
from asmlib import *
from layout import *

WBASE = 65536
WSLOT = 24576
K1_LDS = 163840

def gen_k1(A, name="k1_kernel", kidx=0, st_flag="", code_bytes=0):
    VT = (128, 129, 130)
    kernel_begin(A, name)
    Lend = A.label("k1end")
    Lld = A.label("k1ld")
    A("s_cmp_ge_u32 s2, 256")
    A("s_cbranch_scc1 %s" % Lend)
    pad_begin(A, "k1")
    A("s_load_dwordx4 s[4:7], s[0:1], 0")
    A("s_load_dwordx2 s[8:9], s[0:1], 64")
    A("v_and_b32 v1, 63, v0")
    A("v_lshrrev_b32 v11, 6, v0")
    A("s_lshr_b32 s25, s2, 5" if BADMAP else "s_and_b32 s25, s2, 7")
    A("v_readfirstlane_b32 s24, v11")
    A("s_and_b32 s26, s2, 31" if BADMAP else "s_lshr_b32 s26, s2, 3")
    A("s_and_b32 s27, s25, 3")
    A("s_lshl_b32 s27, s27, 3")
    A("s_and_b32 s28, s26, 7")
    A("s_add_u32 s27, s27, s28")
    A("s_lshr_b32 s28, s25, 2")
    A("s_lshl_b32 s28, s28, 2")
    A("s_lshr_b32 s29, s26, 3")
    A("s_add_u32 s28, s28, s29")
    A("v_lshrrev_b32 v11, 3, v1")
    A("v_and_b32 v12, 7, v1")
    A("v_lshlrev_b32 v2, 10, v11")
    A("v_lshl_add_u32 v2, v12, 4, v2")
    A("s_lshl_b32 s55, s29, 1")
    A("s_lshr_b32 s54, s25, 2")
    A("s_add_u32 s55, s55, s54")
    if ROT == 1:
        A("s_add_u32 s55, s55, s26")
    A("s_and_b32 s55, s55, 7")
    A("s_waitcnt lgkmcnt(0)")
    srd(A, 12, 4, X_BYTES)
    srd(A, 16, 6, WQKV_BYTES)
    srd(A, 20, 8, WS_BYTES)
    A("s_cmp_ge_u32 s24, 8")
    A("s_cbranch_scc1 %s" % Lld)
    A("s_lshl_b32 s30, s27, 16")
    A("s_lshl_b32 s31, s24, 13")
    A("s_add_u32 s30, s30, s31")
    XR = 32
    for c in range(8):
        A("s_add_u32 s31, s55, %d" % c)
        A("s_and_b32 s31, s31, 7")
        A("s_lshl_b32 s31, s31, 7")
        A("s_add_u32 s31, s31, s30")
        A.vmem("buffer_load_dwordx4 %s, v2, s[12:15], s31 offen%s" % (vr(XR + c * 4, 4), K1NT), "x%d" % c)
    if K1PRE:
        A("s_barrier")
    A("v_xor_b32 v13, v11, v12")
    A("v_lshlrev_b32 v4, 9, v12")
    A("v_lshl_add_u32 v10, v11, 4, v4")
    A("v_lshl_add_u32 v4, v13, 4, v4")
    A("s_lshr_b32 s35, s24, 2")
    A("s_and_b32 s36, s24, 3")
    A("s_lshl_b32 s37, s35, 12")
    A("s_lshl_b32 s38, s36, 7")
    A("s_add_u32 s37, s37, s38")
    A("v_add_u32 v4, s37, v4")
    A("s_lshl_b32 s52, s27, 1")
    A("s_add_u32 s52, s52, s35")
    A("s_lshl_b32 s52, s52, 15")
    A("s_lshl_b32 s53, s55, 12")
    A("s_add_u32 s52, s52, s53")
    A("s_add_u32 s52, s52, s38")
    A("s_add_u32 s52, s52, 0x%x" % XN_OFF)
    A("s_bfe_u32 s35, s24, 0x10001")
    A("s_and_b32 s36, s24, 1")
    A("v_and_b32 v13, 31, v1")
    A("v_lshrrev_b32 v14, 5, v1")
    A("s_lshl_b32 s37, s36, 12")
    for v in range(4):
        A("v_add_u32 v15, %d, v14" % (2 * v))
        A("v_xor_b32 v16, v13, v15")
        A("v_lshlrev_b32 v16, 4, v16")
        A("v_lshl_add_u32 v16, v15, 9, v16")
        A("v_add_u32 v%d, s37, v16" % (5 + v))
    A("v_mul_u32_u24 v9, 3072, v14")
    A("v_bfe_u32 v15, v1, 2, 2")
    A("v_lshl_add_u32 v9, v15, 7, v9")
    A("v_lshrrev_b32 v15, 1, v15")
    A("v_xor_b32 v15, s35, v15")
    A("v_lshl_add_u32 v9, v15, 6, v9")
    A("v_bfe_u32 v15, v1, 4, 1")
    A("v_lshl_add_u32 v9, v15, 5, v9")
    A("v_and_b32 v15, 3, v1")
    A("v_lshl_add_u32 v9, v15, 3, v9")
    A("v_add_u32 v9, %d, v9" % WBASE)
    A("v_lshlrev_b32 v11, 4, v1")
    A("v_bfe_u32 v15, v1, 4, 1")
    A("v_lshlrev_b32 v12, 17, v15")
    A("v_lshl_add_u32 v12, v14, 8, v12")
    A("v_and_b32 v15, 15, v1")
    A("v_lshl_add_u32 v12, v15, 4, v12")
    A("s_lshl_b32 s43, s27, 1")
    A("s_add_u32 s43, s43, s36")
    A("s_lshl_b32 s46, s28, 2")
    A("s_lshl_b32 s47, s35, 1")
    A("s_add_u32 s46, s46, s47")
    A("s_lshl_b32 s47, s46, 16")
    A("s_lshl_b32 s48, s43, 10")
    A("s_add_u32 s47, s47, s48")
    A("s_add_u32 s47, s47, 0x%x" % QF_OFF)
    A("s_add_u32 s48, s47, 65536")
    A("s_lshl_b32 s49, s46, 17")
    A("s_lshl_b32 s50, s43, 11")
    A("s_add_u32 s49, s49, s50")
    A("s_add_u32 s49, s49, 0x%x" % KV_OFF)
    A("s_add_u32 s50, s49, 131072")
    A("s_mov_b32 s51, 0x%x" % QSCALE_BITS)
    ACC = [80, 96, 112]
    for r in range(80, 128):
        A("v_mov_b32 v%d, 0" % r)
    A("s_mov_b32 s56, 1")
    A("s_mov_b32 s57, %d" % WSLOT)
    A("s_mov_b32 s59, 0x%x" % ((-3 * WSLOT) & 0xffffffff))
    A("s_movk_i32 s58, 0x2000")
    A("v_mov_b32 v14, 0x3f803f80")
    A("v_mov_b32 v15, 0xffff0000")
    for i in range(4):
        A("v_mov_b32 v%d, 0" % (16 + i))
    for c in range(8):
        A.wait_vm("x%d" % c)
        for d in range(4):
            r = XR + c * 4 + d
            A("v_dot2c_f32_bf16 v%d, v14, v%d" % (16 + (d & 1), r))
            A("v_dot2c_f32_bf16 v%d, v%d, v%d" % (18 + (d & 1), r, r))
    A("s_nop 2")
    A("v_add_f32 v16, v16, v17")
    A("v_add_f32 v18, v18, v19")
    for mode in ("quad_perm:[1,0,3,2]", "quad_perm:[2,3,0,1]", "row_half_mirror"):
        A("s_nop 0")
        for r in (16, 18):
            A("v_add_f32_dpp v%d, v%d, v%d %s row_mask:0xf bank_mask:0xf" % (r, r, r, mode))
    A("v_mul_f32 v16, 0x3b000000, v16")
    A("v_mul_f32 v18, 0x3b000000, v18")
    A("v_fma_f32 v18, -v16, v16, v18")
    A("v_max_f32 v18, 0, v18")
    A("v_cvt_pk_bf16_f32 v17, v16, v18")
    A("v_lshlrev_b32 v16, 16, v17")
    A("v_and_b32 v18, v15, v17")
    A("v_add_f32 v18, 0x3727c5ac, v18")
    A("v_cvt_pk_bf16_f32 v18, v18, v18")
    A("v_and_b32 v18, v15, v18")
    A("v_sqrt_f32 v18, v18")
    A("s_nop 0")
    A("v_cvt_pk_bf16_f32 v18, v18, v18")
    A("v_and_b32 v18, v15, v18")
    A("v_rcp_f32 v20, v18")
    A("s_nop 0")
    A("v_mul_f32 v21, -v16, v20")
    if asmlib.STAMP:
        A("s_memrealtime s[62:63]")
        A("s_memtime s[64:65]")
    for c in range(8):
        b = XR + c * 4
        T = 64 + 8 * (c & 1)
        for d in range(4):
            A("v_lshlrev_b32 v%d, 16, v%d" % (T + 2 * d, b + d))
            A("v_and_b32 v%d, v15, v%d" % (T + 2 * d + 1, b + d))
        for d in range(8):
            A("v_fma_f32 v%d, v%d, v20, v21" % (T + d, T + d))
        for d in range(4):
            A("v_cvt_pk_bf16_f32 v%d, v%d, v%d" % (b + d, T + 2 * d, T + 2 * d + 1))
        A("ds_write_b128 v4, %s offset:%d" % (vr(b, 4), c * 8192))
    if asmlib.STAMP:
        A("s_memrealtime s[66:67]")
        A("s_memtime s[68:69]")
    A("s_waitcnt lgkmcnt(0)")
    A("s_barrier")
    if asmlib.STAMP:
        A("s_memrealtime s[70:71]")
        A("s_memtime s[72:73]")
        A("s_waitcnt lgkmcnt(0)")
    Lmm = A.label("k1mm")
    A("s_cmp_lt_u32 s24, 4")
    A("s_cbranch_scc1 %s" % Lmm)
    A("buffer_store_dwordx4 %s, v10, s[20:23], s52 offen%s" % (vr(XR, 4), st_flag))
    for i in range(4):
        A("v_mov_b32 v%d, -1" % (16 + i))
    A("s_lshl_b32 s34, s2, 13")
    A("s_lshl_b32 s35, s24, 11")
    A("s_add_u32 s34, s34, s35")
    A("s_add_u32 s34, s34, 0x%x" % (OF_OFF - 8192))
    A("buffer_store_dwordx4 v[16:19], v11, s[20:23], s34 offen" + st_flag)
    A("buffer_store_dwordx4 v[16:19], v11, s[20:23], s34 offen offset:1024" + st_flag)
    for i in range(7):
        A("s_barrier")
    A("s_endpgm")
    A("%s:" % Lmm)
    for i in range(4):
        A("v_mov_b32 v%d, v%d" % (132 + i, XR + i))
    BUF = [16, 32, 48, 64]
    A("s_setprio 3")

    def reads(r, part):
        b = BUF[r]
        if part == 0:
            A("ds_read_b128 %s, v%d" % (vr(b, 4), 5 + r))
        for j in range(2):
            A("ds_read_b64_tr_b16 %s, v9 offset:%d" % (vr(b + 4 + 4 * part + 2 * j, 2), r * 6144 + part * 1024 + j * 512))
    for r in range(2):
        for part in range(3):
            reads(r, part)
    Lloop = A.label("k1loop")
    A(".p2align 6")
    A("%s:" % Lloop)
    filler = {(0, 0): "s_and_b32 s53, s56, 3", (0, 1): "s_cselect_b32 s54, s57, s59", (0, 2): "v_add_u32 v5, s58, v5",
              (1, 0): "s_add_u32 s56, s56, 1", (1, 1): "v_add_u32 v6, s58, v6", (1, 2): "v_add_u32 v7, s58, v7",
              (2, 0): "v_add_u32 v8, s58, v8", (2, 1): "s_nop 0", (2, 2): "s_nop 0", (3, 0): "s_nop 0", (3, 1): "s_nop 0", (3, 2): "s_cmp_lg_u32 s56, 9"}
    for r in range(4):
        b = BUF[r]
        ms = [mfma(ACC[0], b + 4, b, ACC[0]), mfma(ACC[1], b + 8, b, ACC[1]), mfma(ACC[2], b, b + 12, ACC[2])]
        for G in range(3):
            A(filler[(r, G)])
            A("s_waitcnt lgkmcnt(%d)" % (11 if G == 0 else 12))
            A(ms[G])
            if r == 2 and G == 0:
                A("s_barrier")
                A("v_add_u32 v9, s54, v9")
            reads((r + 2) & 3, G)
    A("s_cbranch_scc1 %s" % Lloop)
    if asmlib.STAMP:
        A("s_memrealtime s[74:75]")
        A("s_memtime s[76:77]")
    A("buffer_store_dwordx4 v[132:135], v10, s[20:23], s52 offen" + st_flag)
    A("s_nop 6")
    A("s_waitcnt lgkmcnt(0)")
    for t in (1, 2, 0):
        regs = ACC[t]
        if t == 0:
            for r in range(16):
                A("v_mul_f32 v%d, s51, v%d" % (ACC[0] + r, ACC[0] + r))
        for i in range(8):
            A("v_cvt_pk_bf16_f32 v%d, v%d, v%d" % (16 + t * 8 + i, regs + 2 * i, regs + 2 * i + 1))
        if t == 0:
            A("buffer_store_dwordx4 v[16:19], v11, s[20:23], s47 offen" + st_flag)
            A("buffer_store_dwordx4 v[20:23], v11, s[20:23], s48 offen" + st_flag)
        elif t == 1:
            A("buffer_store_dwordx4 v[24:27], v11, s[20:23], s49 offen" + st_flag)
            A("buffer_store_dwordx4 v[28:31], v11, s[20:23], s50 offen" + st_flag)
        else:
            A("buffer_store_dwordx4 v[32:35], v12, s[20:23], s49 offen offset:1024" + st_flag)
            A("buffer_store_dwordx4 v[36:39], v12, s[20:23], s49 offen offset:1536" + st_flag)
    if asmlib.STAMP:
        A("s_waitcnt vmcnt(0)")
        stamp(A, kidx, 5, vt=VT)
        for slot, b in ((0, 62), (1, 62), (2, 66), (3, 70), (4, 74)):
            stamp(A, kidx, slot, vt=VT, saved=b)
    pad_end(A, "k1")
    A("%s:" % Lend)
    A("s_endpgm")

    A("%s:" % Lld)
    A.vm = []
    Lpf = A.label("k1pf")
    A("s_cmp_eq_u32 s24, 11")
    A("s_cbranch_scc1 %s" % Lpf)
    stamp(A, kidx, 0, vt=VT)
    A("v_lshrrev_b32 v13, 2, v1")
    A("v_and_b32 v13, 4, v13")
    A("v_xor_b32 v13, v12, v13")
    A("v_mul_u32_u24 v3, 3072, v11")
    A("v_lshl_add_u32 v3, v13, 4, v3")
    A("s_sub_u32 s29, s24, 8")
    A("s_lshl_b32 s33, s29, 10")
    A("s_lshl_b32 s32, s28, 7")
    A("s_add_u32 s32, s32, s33")
    A("s_add_u32 s33, s33, %d" % WBASE)

    def wdma(c):
        A("s_add_u32 s34, s55, %d" % c)
        A("s_and_b32 s34, s34, 7")
        A("s_mul_i32 s34, s34, %d" % (4 * 49152))
        for i in range(8):
            A("s_add_u32 m0, s33, %d" % ((c & 3) * WSLOT + i * 3072))
            A("s_add_u32 s34, s34, %s" % ("s32" if i == 0 else "24576"))
            A.vmem("buffer_load_dwordx4 v3, s[16:19], s34 offen%s lds" % K1NT, "w%d" % c)
    if K1PRE == 2:
        wdma(0)
    if K1PRE:
        A("s_barrier")
    for c in range(1 if K1PRE == 2 else 0, K1LEAD):
        wdma(c)
    nxt = K1LEAD
    for c in range(8):
        A.wait_vm("w%d" % c)
        if c in (0, 1, 4, 7):
            stamp(A, kidx, {0: 2, 1: 3, 4: 4, 7: 5}[c], vt=VT)
        A("s_barrier")
        if nxt < 8 and nxt <= max(3, c + 2):
            wdma(nxt)
            nxt += 1
    assert nxt == 8
    A("s_endpgm")
    A("%s:" % Lpf)
    if DBGT:
        A("s_memrealtime s[80:81]")
        A("s_getreg_b32 s78, hwreg(HW_REG_XCC_ID)")
        A("s_waitcnt lgkmcnt(0)")
        A("s_and_b32 s78, s78, 7")
        A("s_lshl_b32 s78, s78, 3")
        A("s_and_b32 s80, s80, 0xffffff")
        A("v_mov_b32 v20, s80")
        A("v_mov_b32 v21, s78")
        A("v_mov_b32 v22, 0")
        A("s_lshl_b32 s79, s2, 3")
        A("s_add_u32 s79, s79, 0x%x" % (22 << 20))
        A("buffer_store_dwordx2 v[20:21], v22, s[20:23], s79 offen")
    if K1TOUCH:
        A("v_lshrrev_b32 v13, 5, v1")
        A("v_bfe_u32 v14, v1, 2, 3")
        A("v_and_b32 v15, 3, v1")
        A("v_min_u32 v15, 2, v15")
        A("v_mul_u32_u24 v5, 3072, v14")
        A("v_lshl_add_u32 v5, v15, 10, v5")
        A("s_and_b32 s37, s26, 7")
        A("s_mul_i32 s37, s37, 24576")
        A("s_lshl_b32 s38, s28, 7")
        A("s_add_u32 s37, s37, s38")
        A("s_mov_b32 s39, %d" % (4 * 49152))
        A("v_add_u32 v13, s55, v13")
        for i in range(4):
            A("v_and_b32 v14, 7, v13")
            A("v_mul_lo_u32 v14, v14, s39")
            A("v_add_u32 v14, v14, v5")
            A("buffer_load_dword v%d, v14, s[16:19], s37 offen" % (16 + i))
            A("v_add_u32 v13, 2, v13")
    if code_bytes:
        Lc = A.label("k1code")
        A("s_cmp_ge_u32 s26, (L_code_end - L_code_pc + 8191) / 8192")
        A("s_cbranch_scc1 %s" % Lc)
        A("s_getpc_b64 s[38:39]")
        A("L_code_pc:")
        A("s_lshl_b32 s37, s26, 13")
        A("v_lshlrev_b32 v15, 7, v1")
        A("v_add_u32 v15, s37, v15")
        A("v_min_u32 v15, L_code_end - L_code_pc - 4, v15")
        A("global_load_dword v14, v15, s[38:39]")
        A("%s:" % Lc)
    Lz = A.label("k1z")
    A("s_cmp_lg_u32 s2, 0")
    A("s_cbranch_scc1 %s" % Lz)
    for i in range(4):
        A("v_mov_b32 v%d, 0" % (24 + i))
    A("v_lshlrev_b32 v6, 4, v1")
    for i in range(CNT_BYTES // 1024):
        A("s_mov_b32 s34, 0x%x" % (CNT_OFF + i * 1024))
        A("buffer_store_dwordx4 v[24:27], v6, s[20:23], s34 offen" + st_flag)
    A("%s:" % Lz)
    if PF:
        A("s_load_dwordx2 s[40:41], s[0:1], 16")
        A("s_load_dwordx4 s[44:47], s[0:1], 32")
        A("v_lshlrev_b32 v9, 7, v1")
        A("s_waitcnt lgkmcnt(0)")
        srd(A, 60, 44, W1_BYTES)
        srd(A, 64, 46, W2_BYTES)
        srd(A, 68, 40, WO_BYTES)
    for i in range(10 if K1PRE else 9):
        A("s_barrier")
        if PF and i == PFAT:
            A("s_mul_i32 s34, s2, %d" % (43 * 128))
            A("v_min_u32 v7, %d, v9" % (42 * 128))
            if PF == 1:
                A("buffer_load_dword v20, v7, s[60:63], s34 offen")
            else:
                A("s_lshl_b32 s35, s26, 13")
                for t in range(6):
                    A("s_add_u32 s36, s35, %d" % (t * 262144))
                    A("buffer_load_dword v%d, v9, s[60:63], s36 offen" % (28 + t))
            A("buffer_load_dword v21, v7, s[64:67], s34 offen")
            A("s_lshl_b32 s34, s2, 11")
            A("v_min_u32 v7, %d, v9" % (15 * 128))
            A("buffer_load_dword v22, v7, s[68:71], s34 offen")
    A("s_endpgm")
    return 136
```

```python
import asmlib
from asmlib import *
from layout import *

Q = 4; NEGM = 16; S = [32, 48]; P = 64; O = 72; KF = [88, 92]; VF = [[96, 100], [104, 108]]
def E(r, e64=False): return "v_exp_f32%s v%d, v%d" % ("_e64" if e64 else "", r, r)
def C(d, r): return "v_cvt_pk_bf16_f32 v%d, v%d, v%d" % (d, r, r + 1)

def att_tile(A, i):
    p = i & 1; s = S[p]; sp = S[p ^ 1]
    A(E(s)); A("s_waitcnt lgkmcnt(0)")
    A(C(P + 7, sp + 14))
    A(E(s + 1)); A(E(s + 2))
    A(mfma(O, VF[p ^ 1][1], P + 4, O))
    A(C(P, s))
    A(E(s + 3)); A("s_mov_b64 exec, s[40:41]")
    A("ds_read_b128 %s, v3 offset:%d" % (vr(VF[p ^ 1][0], 4), (i + 1) * 2048))
    A("ds_read_b128 %s, v3 offset:%d" % (vr(VF[p ^ 1][1], 4), (i + 1) * 2048 + 512))
    A("s_mov_b64 exec, -1"); A(E(s + 4))
    A(C(P + 1, s + 2))
    A(E(s + 5)); A(E(s + 6))
    A(mfma(sp, KF[p ^ 1], Q, NEGM))
    A(C(P + 2, s + 4))
    A(E(s + 7)); A(E(s + 8))
    A("ds_read_b128 %s, v2 offset:%d" % (vr(KF[p], 4), (i + 2) * 2048))
    A(C(P + 3, s + 6))
    A(E(s + 9)); A(E(s + 10))
    A(mfma(O, VF[p][0], P, O))
    A(C(P + 4, s + 8))
    A(E(s + 11)); A(E(s + 12))
    A(C(P + 5, s + 10))
    A(E(s + 13)); A(E(s + 14))
    A(C(P + 6, s + 12))
    A(E(s + 15, e64=True))


def rowmax16(A, dst, s, init=None):
    if init is None:
        A("v_max3_f32 v%d, v%d, v%d, v%d" % (dst, s, s + 1, s + 2))
        rest = list(range(3, 16))
    else:
        A("v_max3_f32 v%d, v%d, v%d, v%d" % (dst, s, s + 1, init))
        rest = list(range(2, 16))
    while len(rest) >= 2:
        A("v_max3_f32 v%d, v%d, v%d, v%d" % (dst, dst, s + rest[0], s + rest[1]))
        rest = rest[2:]
    if rest:
        A("v_max_f32 v%d, v%d, v%d" % (dst, dst, s + rest[0]))


def set_negm(A, m):
    A("v_mov_b32 v9, v%d" % m)
    A("s_nop 1")
    A("v_permlane32_swap_b32 v%d, v9" % m)
    A("s_nop 1")
    A("v_max_f32 v%d, v%d, v9" % (m, m))
    A("v_sub_f32 v%d, 0, v%d" % (NEGM, m))
    for r in range(1, 16):
        A("v_mov_b32 v%d, v%d" % (NEGM + r, NEGM))


WFB = [16, 24]
AF = 32
ACC = 96

def gemm_addr(A, rowstride, kind, s_ring, s_bswap):
    A("v_lshrrev_b32 v6, 3, v1")
    A("v_and_b32 v7, 7, v1")
    A("v_lshrrev_b32 v8, 2, v1")
    A("v_and_b32 v8, 4, v8")
    A("v_xor_b32 v7, v7, v8")
    A("v_mul_u32_u24 v3, %d, v6" % rowstride)
    A("v_lshl_add_u32 v3, v7, 4, v3")
    A("v_lshrrev_b32 v6, 5, v1")
    A("v_lshlrev_b32 v4, %d, v6" % (10 if kind == "x" else 9))
    A("v_bfe_u32 v7, v1, 2, 2")
    A("v_lshl_add_u32 v4, v7, 7, v4")
    A("v_lshrrev_b32 v7, 1, v7")
    if s_bswap:
        A("v_xor_b32 v7, %s, v7" % s_bswap)
    A("v_lshl_add_u32 v4, v7, 6, v4")
    A("v_bfe_u32 v7, v1, 4, 1")
    A("v_lshl_add_u32 v4, v7, 5, v4")
    A("v_and_b32 v7, 3, v1")
    A("v_lshl_add_u32 v4, v7, 3, v4")
    A("v_add_u32 v4, %s, v4" % s_ring)
    A("v_xor_b32 v5, 64, v4")


class Gemm:
    def __init__(self, A, nsteps, DW, DA, kind, rowstride, srdA, srdW, sA0, sA1, sW, s_ring, st, aflag="", rot=None, alds=False):
        self.__dict__.update(locals())
        self.jstep = 512 if kind == "x" else 1024

    def grp(self, dst, s, unit, base):
        A = self.A
        if self.rot is None:
            A("s_add_u32 s%d, s%d, %d" % (dst, base, (s // 4) * unit))
        else:
            A("s_add_u32 s%d, %s, %d" % (dst, self.rot, s // 4))
            A("s_and_b32 s%d, s%d, 7" % (dst, dst))
            A("s_mul_i32 s%d, s%d, %d" % (dst, dst, unit))
            A("s_add_u32 s%d, s%d, s%d" % (dst, dst, base))

    def issue_w(self, s, parts=(0, 1)):
        A = self.A
        if F1REP & 8:
            return
        for hh in parts:
            if s % 4 == 0 and hh == 0:
                self.grp(self.st + 1, s, 64 * self.rowstride, self.sW)
            A("s_add_u32 m0, %s, %d" % (self.s_ring, (s % self.DW) * 2048 + hh * 1024))
            A("s_add_u32 s%d, s%d, %d" % (self.st, self.st + 1, (16 * (s % 4) + 8 * hh) * self.rowstride))
            A.vmem("buffer_load_dwordx4 v3, %s, s%d offen lds" % (sr(self.srdW, 4), self.st), "w%d" % s)

    def issue_a(self, s, parts=(0, 1)):
        A = self.A
        for a in parts:
            if s % 4 == 0 and a == 0:
                self.grp(self.st + 2, s, 4096, self.sA0)
                A("s_add_u32 s%d, s%d, s%d" % (self.st + 3, self.st + 2, self.sA1))
            A.vmem("buffer_load_dwordx4 %s, v2, %s, s%d offen offset:%d%s" % (
                vr(AF + ((s % self.DA) * 2 + a) * 4, 4), sr(self.srdA, 4), self.st + 2 + a, (s % 4) * 1024, self.aflag), "a%d" % s)

    def pre(self, a=True, w=True):
        for s in range(max(self.DW, self.DA)):
            if a and s < self.DA and s < self.nsteps:
                self.issue_a(s)
            if w and s < self.DW and s < self.nsteps:
                self.issue_w(s)

    def reads(self, s, part):
        A = self.A
        if F1REP & 4:
            return
        if self.alds:
            A("ds_read_b128 %s, v9 offset:%d" % (vr(AF + ((s & 1) * 2 + part) * 4, 4), (s // 4) * 8192 + part * 4096 + (s % 4) * 1024))
        for j in range(2):
            A("ds_read_b64_tr_b16 %s, v%d offset:%d" % (vr(WFB[s & 1] + 4 * part + 2 * j, 2), 4 + part, (s % self.DW) * 2048 + j * self.jstep))

    def loop(self, hook=None):
        A = self.A
        n = self.nsteps
        DA = 2 if self.alds else self.DA
        A.wait_vm("w0")
        self.reads(0, 0)
        self.reads(0, 1)
        for s in range(n):
            A.wait_vm("a%d" % s, extra="lgkmcnt(0)")
            if hook:
                hook(s)
            for q in range(4):
                b, a = q >> 1, q & 1
                d = ACC + q * 16
                if not (F1REP & 2):
                    A(mfma(d, WFB[s & 1] + 4 * b, AF + ((s % DA) * 2 + a) * 4, "0" if s == 0 else d))
                if q < 2:
                    if s + 1 < n:
                        if q == 0:
                            A.wait_vm("w%d" % (s + 1))
                        self.reads(s + 1, q)
                    if not self.alds and s >= 1 and s - 1 + self.DA < n:
                        self.issue_a(s - 1 + self.DA, (q,))
                elif s + self.DW < n:
                    self.issue_w(s + self.DW, (q - 2,))


def lds_wait(A, vaddr, off, val, vt, st, sleep=1):
    L = A.label("lw")
    A("s_mov_b32 s%d, 0" % (st + 1))
    A("%s:" % L)
    A("ds_read_b32 v%d, v%d offset:%d" % (vt, vaddr, off))
    A("s_add_u32 s%d, s%d, 1" % (st + 1, st + 1))
    A("s_waitcnt lgkmcnt(0)")
    A("v_readfirstlane_b32 s%d, v%d" % (st, vt))
    A("s_cmp_ge_u32 s%d, %s" % (st, val))
    A("s_cbranch_scc1 %s_d" % L)
    A("s_sleep %d" % sleep)
    A("s_cmp_lt_u32 s%d, 0x200000" % (st + 1))
    A("s_cbranch_scc1 %s" % L)
    A("%s_d:" % L)


def round_bf16(A, regs, tmp, smask):
    for k in range(0, len(regs), 2):
        A("v_cvt_pk_bf16_f32 v%d, v%d, v%d" % (tmp + k // 2, regs[k], regs[k + 1]))
    for k in range(0, len(regs), 2):
        A("v_lshlrev_b32 v%d, 16, v%d" % (regs[k], tmp + k // 2))
        A("v_and_b32 v%d, %s, v%d" % (regs[k + 1], smask, tmp + k // 2))


RING = 131072
FLAG = RING + 30720

def gen_k2(A, name="k2_kernel", kidx=0, prio=(10, 14)):
    VT = (112, 113, 114)
    kernel_begin(A, name)
    Lend = A.label("k2end")
    Laux = A.label("k2aux")
    A("s_cmp_ge_u32 s2, 256")
    A("s_cbranch_scc1 %s" % Lend)
    pad_begin(A, "k2")
    A("s_load_dwordx2 s[8:9], s[0:1], 64")
    A("s_load_dwordx4 s[4:7], s[0:1], 32")
    A("s_load_dwordx2 s[56:57], s[0:1], 0")
    A("s_load_dwordx2 s[58:59], s[0:1], 16")
    A("s_load_dwordx2 s[10:11], s[0:1], 48")
    A("v_and_b32 v1, 63, v0")
    A("v_lshrrev_b32 v8, 6, v0")
    A("s_lshr_b32 s25, s2, 5" if BADMAP else "s_and_b32 s25, s2, 7")
    A("v_readfirstlane_b32 s24, v8")
    A("s_and_b32 s26, s2, 31" if BADMAP else "s_lshr_b32 s26, s2, 3")
    A("s_lshl_b32 s27, s25, 2")
    A("s_and_b32 s28, s26, 3")
    A("s_add_u32 s27, s27, s28")
    A("s_lshr_b32 s28, s26, 2")
    A("s_waitcnt lgkmcnt(0)")
    srd(A, 20, 8, WS_BYTES)
    srd(A, 12, 4, W1_BYTES)
    srd(A, 16, 6, W2_BYTES)
    srd(A, 60, 56, X_BYTES)
    srd(A, 64, 58, WO_BYTES)
    srd(A, 68, 10, X_BYTES)
    A("s_cmp_ge_u32 s24, 8")
    A("s_cbranch_scc1 %s" % Laux)
    A("s_lshl_b32 s29, s28, 3")
    A("s_add_u32 s29, s29, s24")
    A("v_lshlrev_b32 v10, 4, v1")
    A("s_lshl_b32 s30, s27, 16")
    A("s_lshl_b32 s31, s29, 10")
    A("s_add_u32 s30, s30, s31")
    A("s_add_u32 s30, s30, 0x%x" % QF_OFF)
    A.vmem("buffer_load_dwordx4 %s, v10, s[20:23], s30 offen" % vr(Q, 4), "q")
    stamp(A, kidx, 0, vt=VT)
    A("s_setprio %d" % ATTPRIO[0])
    A("s_mov_b32 s40, 0x0000ffff")
    A("s_mov_b32 s41, 0x0000ffff")
    A("v_lshrrev_b32 v8, 5, v1")
    A("v_lshlrev_b32 v11, 8, v8")
    A("v_and_b32 v8, 15, v1")
    A("v_lshl_add_u32 v11, v8, 4, v11")
    A("v_add_u32 v11, 1024, v11")
    if ZROWS:
        A("v_and_b32 v8, 27, v1")
        A("v_cmp_eq_u32 vcc, 16, v8")
        A("v_mov_b32 v8, 0x3f803f80")
        A("s_nop 1")
        A("v_cndmask_b32 v96, 0, v8, vcc")
        for r in range(97, 112):
            A("v_mov_b32 v%d, v96" % r)
    else:
        for r in range(96, 112):
            A("v_mov_b32 v%d, 0x3f803f80" % r)
    for r in range(16):
        A("v_mov_b32 v%d, 0" % (O + r))
    for r in (P + 4, P + 5, P + 6, S[1] + 14, S[1] + 15):
        A("v_mov_b32 v%d, 0" % r)
    A("v_mov_b32 v2, v10")
    A("v_mov_b32 v3, v11")
    A("s_mov_b32 s44, 0")
    A("s_mov_b32 s45, 2")
    A("v_mov_b32 v12, %d" % FLAG)
    A("v_mov_b32 v13, 1")
    A.wait_vm("q")
    A("s_barrier")
    stamp(A, kidx, 1, vt=VT)
    A("ds_read_b128 %s, v2" % vr(KF[0], 4))
    A("ds_read_b128 %s, v2 offset:2048" % vr(KF[1], 4))
    A("s_mov_b64 exec, s[40:41]")
    A("ds_read_b128 %s, v3" % vr(VF[0][0], 4))
    A("ds_read_b128 %s, v3 offset:512" % vr(VF[0][1], 4))
    A("s_mov_b64 exec, -1")
    A("s_waitcnt lgkmcnt(3)")
    A(mfma(S[0], KF[0], Q, "0"))
    A("s_nop 11")
    rowmax16(A, 8, S[0])
    set_negm(A, 8)
    A("s_nop 1")
    A(mfma(S[0], KF[0], Q, NEGM))
    A("s_nop 11")
    if NOATT:
        A("s_mov_b64 exec, 1")
        A("ds_add_u32 v12, v13 offset:4")
        A("ds_add_u32 v12, v13 offset:36")
        A("ds_add_u32 v12, v13 offset:40")
        A("s_endpgm")
    Lloop = A.label("attloop")
    Ldone = A.label("attdone")
    A(".p2align 6")
    A("%s:" % Lloop)
    for i in range(4):
        att_tile(A, i)
    A("v_add_u32 v2, 0x2000, v2")
    A("v_add_u32 v3, 0x2000, v3")
    A("s_add_u32 s44, s44, 1")
    A("s_cmp_lg_u32 s44, s45")
    A("s_cbranch_scc1 %s" % Lloop)
    def signal(off=4):
        A("s_mov_b64 exec, 1")
        A("ds_add_u32 v12, v13 offset:%d" % off)
        A("s_mov_b64 exec, -1")
    def kvw(v):
        return lambda: lds_wait(A, 12, 0, v, 14, 46)
    evs = {2: [lambda: lds_wait(A, 12, 20, 4, 14, 46)], 4: [signal], 7: [kvw(1)], 11: [kvw(2)], 12: [lambda: signal(36)]}
    evs.setdefault(prio[0], []).append(lambda: A("s_setprio %d" % ATTPRIO[1]))
    evs.setdefault(prio[1], []).append(lambda: A("s_setprio %d" % ATTPRIO[2]))
    keys = sorted(evs)
    ev = [(k, (lambda fs: (lambda: [f() for f in fs]))(evs[k]), (keys + [16])[i + 1]) for i, k in enumerate(keys)]
    for at, code, nxt in ev:
        Ln = A.label("attev")
        A("s_cmp_lg_u32 s44, %d" % at)
        A("s_cbranch_scc1 %s" % Ln)
        code()
        A("s_mov_b32 s45, %d" % nxt)
        A("s_branch %s" % Lloop)
        A("%s:" % Ln)
    A(C(P + 7, S[1] + 14))
    A("s_nop 1")
    A(mfma(O, VF[1][1], P + 4, O))
    signal(40)
    stamp(A, kidx, 2, vt=VT)
    Lok = A.label("attok")
    A("s_nop 11")
    A("v_mul_f32 v8, 0, v%d" % O)
    for r in range(1, 8):
        A("v_fma_f32 v8, v%d, 0, v8" % (O + r))
    A("s_mov_b32 s45, 0x5f800000")
    A("v_cmp_u_f32 vcc, v8, v8")
    A("v_cmp_ngt_f32 s[46:47], s45, v%d" % (O + 8))
    A("s_nop 1")
    A("s_or_b64 s[46:47], s[46:47], vcc")
    A("s_cbranch_scc0 %s" % Lok)
    Lf1 = A.label("attf1")
    Lf2 = A.label("attf2")
    A("s_lshl_b32 s31, s27, 17")
    A("s_add_u32 s31, s31, 0x%x" % KV_OFF)
    A("s_mov_b32 s32, s31")
    A("s_mov_b32 s44, 64")
    A("v_mov_b32 v8, 0xff800000")
    A("%s:" % Lf1)
    A("buffer_load_dwordx4 %s, v10, s[20:23], s32 offen" % vr(KF[0], 4))
    A("s_add_u32 s32, s32, 2048")
    A("s_waitcnt vmcnt(0)")
    A(mfma(S[0], KF[0], Q, "0"))
    A("s_nop 11")
    rowmax16(A, 8, S[0], init=8)
    A("s_sub_u32 s44, s44, 1")
    A("s_cmp_lg_u32 s44, 0")
    A("s_cbranch_scc1 %s" % Lf1)
    set_negm(A, 8)
    for r in range(16):
        A("v_mov_b32 v%d, 0" % (O + r))
    A("s_mov_b32 s32, s31")
    A("s_mov_b32 s44, 64")
    A("%s:" % Lf2)
    A("buffer_load_dwordx4 %s, v10, s[20:23], s32 offen" % vr(KF[0], 4))
    A("s_mov_b64 exec, s[40:41]")
    A("buffer_load_dwordx4 %s, v11, s[20:23], s32 offen" % vr(VF[0][0], 4))
    A("buffer_load_dwordx4 %s, v11, s[20:23], s32 offen offset:512" % vr(VF[0][1], 4))
    A("s_mov_b64 exec, -1")
    A("s_add_u32 s32, s32, 2048")
    A("s_waitcnt vmcnt(0)")
    A(mfma(S[0], KF[0], Q, NEGM))
    A("s_nop 11")
    for r in range(16):
        A(E(S[0] + r))
    A("s_nop 0")
    for i in range(8):
        A(C(P + i, S[0] + 2 * i))
    A("s_nop 1")
    A(mfma(O, VF[0][0], P, O))
    A(mfma(O, VF[0][1], P + 4, O))
    A("s_sub_u32 s44, s44, 1")
    A("s_cmp_lg_u32 s44, 0")
    A("s_cbranch_scc1 %s" % Lf2)
    A("s_nop 11")
    A("%s:" % Lok)
    A("v_rcp_f32 v8, v%d" % (O + 8))
    A("s_lshl_b32 s30, s29, 15")
    A("s_lshl_b32 s31, s27, 10")
    A("s_add_u32 s30, s30, s31")
    A("s_add_u32 s30, s30, 0x%x" % OF_OFF)
    for r in range(8):
        A("v_mul_f32 v%d, v%d, v8" % (O + r, O + r))
    for i in range(4):
        A(C(P + i, O + 2 * i))
    pad_end(A, "k2a")
    A("buffer_store_dwordx4 %s, v10, s[20:23], s30 offen sc0 sc1" % vr(P, 4))
    if asmlib.STAMP:
        A("s_waitcnt vmcnt(0)")
    stamp(A, kidx, 3, vt=VT)
    pad_end(A, "k2")
    A("%s:" % Lend)
    A("s_endpgm")

    A("%s:" % Laux)
    VT = (14, 15, 13)
    A.vm = []
    A("s_setprio 3")
    A("s_sub_u32 s29, s24, 8")
    A("v_lshlrev_b32 v2, 4, v1")
    A("s_lshl_b32 s31, s27, 17")
    A("s_add_u32 s31, s31, 0x%x" % KV_OFF)
    A("s_lshl_b32 s32, s29, 10")
    def kvb(lo, hi, tag):
        for i in range(lo, hi):
            A("s_add_u32 m0, s32, %d" % (i * 4096))
            A("s_add_u32 s34, m0, s31")
            A.vmem("buffer_load_dwordx4 v2, s[20:23], s34 offen lds", tag)
    kvb(0, 5, "kv")
    stamp(A, kidx, 0, vt=VT)
    A("v_mov_b32 v10, %d" % FLAG)
    A("v_mov_b32 v11, 0")
    A("v_mov_b32 v12, 1")
    A("s_lshr_b32 s46, s29, 1")
    A("s_and_b32 s47, s29, 1")

    def region(dst, a, b):
        A("s_mul_i32 s%d, %s, 15360" % (dst, a))
        A("s_add_u32 s%d, s%d, %d" % (dst, dst, RING))
        A("s_lshl_b32 s49, %s, 14" % a)
        A("s_cmp_eq_u32 %s, 0" % b)
        A("s_cselect_b32 s%d, s49, s%d" % (dst, dst))

    def lds_inc(off):
        A("s_mov_b64 exec, 1")
        A("ds_add_u32 v10, v12 offset:%d" % off)
        A("s_mov_b64 exec, -1")

    def f2_setup():
        region(30, "s47", "s46")
        gemm_addr(A, 1024, "d", "s30", "s46")
        A("s_mul_i32 s33, s29, %d" % (22 * 16 * 1024))
        A("s_lshl_b32 s34, s28, 7")
        A("s_add_u32 s33, s33, s34")
        lds_wait(A, 10, 4, 8, 13, 42)
        lds_wait(A, 10, 28, 3, 13, 42)
        G2.pre(a=False)
    G2 = Gemm(A, 22, 7, 8, "d", 1024, 20, 16, 31, 32, 33, "s30", 34, aflag=" sc0 sc1")
    A("s_lshl_b32 s55, s27, 8")
    A("s_add_u32 s55, s55, 0x%x" % CNT_OFF)
    A("s_and_b32 s40, s26, 3")
    A("s_lshl_b32 s40, s40, 1")
    A("s_lshl_b32 s38, s27, 16")
    A("s_add_u32 s38, s38, 0x%x" % XN_OFF)

    def xn_block(sidx, tag):
        A("s_lshr_b32 s43, %s, 1" % sidx)
        A("s_add_u32 s43, s43, s40")
        A("s_and_b32 s43, s43, 7")
        A("s_lshl_b32 s43, s43, 12")
        A("s_and_b32 s44, %s, 1" % sidx)
        A("s_lshl_b32 s44, s44, 15")
        A("s_add_u32 s43, s43, s44")
        A("s_lshl_b32 s44, %s, 12" % sidx)
        A("s_add_u32 m0, s44, 65536")
        A("s_add_u32 s43, s43, s38")
        for u in range(4):
            A.vmem("buffer_load_dwordx4 v2, s[20:23], s43 offen offset:%d lds" % (u * 1024), tag)
    Lw3 = A.label("aux3")
    Lf2 = A.label("auxf2")
    A("s_cmp_eq_u32 s29, 3")
    A("s_cbranch_scc1 %s" % Lw3)
    A("s_mul_i32 s30, s29, 10240")
    A("s_add_u32 s30, s30, %d" % RING)
    A("s_mul_i32 s39, s28, 3")
    A("s_add_u32 s39, s39, s29")
    gemm_addr(A, 2752, "x", "s30", None)
    A("v_add_u32 v9, 65536, v2")
    A("s_lshl_b32 s33, s39, 7")
    G1 = Gemm(A, 32, 5, 0, "x", 2752, 20, 12, 31, 32, 33, "s30", 34, rot="s40", alds=True)
    A.wait_vm("kv")
    A("s_barrier")
    stamp(A, kidx, 1, vt=VT)
    kvb(5, 16, "xn1")
    if not NOFFN:
        xn_block("s29", "xn1")
        G1.pre(a=False)
    A.wait_vm("xn1")
    lds_inc(20)
    if NOFFN:
        A("s_endpgm")
    A("s_add_u32 s41, s29, 4")
    Lnof1 = A.label("nof1")
    Lf1sig = A.label("f1sig")
    A("s_cmp_ge_u32 s39, 22")
    A("s_cbranch_scc1 %s" % Lnof1)
    lds_wait(A, 10, 20, 4, 13, 42)
    A("s_setprio %d" % AUXPRIO)
    stamp(A, kidx, 2, vt=VT)

    def f1hook(s):
        if s < 4:
            xn_block("s41", "xn2")
            A("s_add_u32 s41, s41, 3")
        if s == 6:
            A.wait_vm("xn2")
            lds_inc(32)
        if s == 7:
            lds_wait(A, 10, 32, 3, 13, 42)
        if s == 16:
            lds_inc(24)
    G1.loop(f1hook)
    A("s_setprio 3")
    stamp(A, kidx, 3, vt=VT)
    A("s_mul_i32 s31, s27, %d" % (2 * HF_MB))
    A("s_lshl_b32 s32, s39, 12")
    A("s_add_u32 s31, s31, s32")
    A("s_add_u32 s31, s31, 0x%x" % HF_OFF)
    A("s_add_u32 s32, s31, %d" % HF_MB)
    A("s_nop 7")
    for b in range(2):
        for a in range(2):
            d = ACC + (b * 2 + a) * 16
            o = AF + (b * 2 + a) * 8
            for i in range(8):
                A(C(o + i, d + 2 * i))
            for i in range(8):
                A("v_pk_max_i16 v%d, v%d, 0" % (o + i, o + i))
            for j in range(2):
                A("buffer_store_dwordx4 %s, v2, s[20:23], s%d offen offset:%d sc0 sc1" % (vr(o + 4 * j, 4), 31 + a, (2 * b + j) * 1024))
    A("s_branch %s" % Lf1sig)
    A("%s:" % Lnof1)
    for t in range(4):
        xn_block("s41", "xn2")
        A("s_add_u32 s41, s41, 3")
    A("s_waitcnt vmcnt(0)")
    lds_inc(32)
    lds_inc(24)
    A("%s:" % Lf1sig)
    lds_inc(28)
    A.vm = ["h"]
    f2_setup()
    A.wait_vm("h")
    A("s_mov_b64 exec, 1")
    A("ds_add_rtn_u32 v13, v10, v12 offset:8")
    A("s_waitcnt lgkmcnt(0)")
    A("v_readfirstlane_b32 s42, v13")
    A("s_lshl_b32 s43, s28, 2")
    A("v_mov_b32 v13, s43")
    Lnp = A.label("nopub")
    A("s_cmp_lg_u32 s42, 2")
    A("s_cbranch_scc1 %s" % Lnp)
    A("buffer_store_dword v12, v13, s[20:23], s55 offen sc0 sc1")
    A("%s:" % Lnp)
    A("s_mov_b64 exec, -1")
    stamp(A, kidx, 4, vt=VT)
    A("s_cmp_lg_u32 s29, 0")
    A("s_cbranch_scc1 %s" % Lf2)
    A("v_and_b32 v13, 7, v1")
    A("v_lshlrev_b32 v13, 2, v13")
    Lp = A.label("poll")
    A("s_mov_b32 s42, 0")
    A("%s:" % Lp)
    A("buffer_load_dword v14, v13, s[20:23], s55 offen sc0 sc1")
    A("s_add_u32 s42, s42, 1")
    A("s_waitcnt vmcnt(0)")
    A("v_cmp_ne_u32 vcc, 1, v14")
    A("s_nop 4")
    A("s_cbranch_vccz %s_d" % Lp)
    A("s_sleep 1")
    A("s_cmp_lt_u32 s42, 0x40000")
    A("s_cbranch_scc1 %s" % Lp)
    A("%s_d:" % Lp)
    A("ds_write_b32 v10, v12 offset:12")
    A("s_branch %s" % Lf2)
    A("%s:" % Lw3)
    if DBGT:
        A("s_load_dwordx2 s[72:73], s[0:1], 56")
        A("s_memrealtime s[80:81]")
        A("s_lshl_b32 s79, s2, 3")
        A("s_add_u32 s79, s79, 0x%x" % (22 << 20))
        A("buffer_load_dwordx2 v[20:21], v11, s[20:23], s79 offen")
        A("s_waitcnt vmcnt(0) lgkmcnt(0)")
        srd(A, 84, 72, 256)
        A("s_and_b32 s80, s80, 0xffffff")
        A("v_sub_u32 v20, s80, v20")
        A("v_sub_u32 v22, 100000, v20")
        A("s_mov_b64 exec, 1")
        A("buffer_atomic_umax v20, v21, s[84:87], 0 offen")
        A("buffer_atomic_umax v22, v21, s[84:87], 0 offen offset:4")
        A("s_mov_b64 exec, -1")
        A("s_waitcnt vmcnt(0)")
    A("v_lshlrev_b32 v13, 2, v1")
    A("v_add_u32 v13, v10, v13")
    A("ds_write_b32 v13, v11")
    A.vm = ["kv"]
    A.wait_vm("kv", extra="lgkmcnt(0)")
    A("s_barrier")
    stamp(A, kidx, 1, vt=VT)
    kvb(5, 16, "xn1")
    if not NOFFN:
        xn_block("s29", "xn1")
    A.wait_vm("xn1")
    lds_inc(20)
    A("s_mov_b32 s32, %d" % (64 * 1024))

    def kvrun(end, cnt, val):
        Lk = A.label("kvl")
        A("%s:" % Lk)
        A("s_mov_b32 m0, s32")
        A("s_add_u32 s34, s32, s31")
        A("s_add_u32 s32, s32, 4096")
        for u in range(4):
            A("buffer_load_dwordx4 v2, s[20:23], s34 offen offset:%d lds" % (u * 1024))
        A("s_cmp_lg_u32 s32, %d" % (end * 1024))
        A("s_cbranch_scc1 %s" % Lk)
        A("v_mov_b32 v13, %d" % val)
        A("s_waitcnt vmcnt(%d)" % cnt)
        A("ds_write_b32 v10, v13")
    stamp(A, kidx, 2, vt=VT)
    if not NOFFN:
        lds_wait(A, 10, 24, 3, 13, 42)
    kvrun(96, 0, 1)
    stamp(A, kidx, 3, vt=VT)
    if (TOUCH & 1) and not NOFFN:
        A("v_lshlrev_b32 v9, 7, v1")
        A("s_lshl_b32 s35, s26, 13")
        for i in range(6):
            A("s_add_u32 s36, s35, %d" % (i * 262144))
            A("buffer_load_dword v%d, v9, s[16:19], s36 offen" % (16 + i))
            A("s_waitcnt vmcnt(1)")
    if not NOFFN:
        lds_wait(A, 10, 28, 3, 13, 42)
    kvrun(128, 0, 2)
    stamp(A, kidx, 4, vt=VT)
    if NOFFN:
        A("s_endpgm")
    A.vm = []
    f2_setup()
    A("%s:" % Lf2)
    A("s_xor_b32 s50, s47, 1")
    A("s_xor_b32 s51, s46, 1")
    region(52, "s50", "s46")
    region(53, "s47", "s51")
    region(54, "s50", "s51")
    A("s_mul_i32 s31, s27, %d" % (2 * HF_MB))
    A("s_add_u32 s31, s31, 0x%x" % HF_OFF)
    A("s_lshl_b32 s49, s28, 2")
    A("s_add_u32 s49, s49, s29")
    A("s_mul_i32 s49, s49, %d" % (44 * 128))
    A("s_add_u32 s49, s49, s31")
    A("s_mul_i32 s32, s29, %d" % (22 * 1024))
    A("s_add_u32 s31, s31, s32")
    A("s_mul_i32 s38, s47, %d" % HF_MB)
    A("s_add_u32 s31, s31, s38")
    A("s_lshl_b32 s38, s38, 1")
    A("s_sub_u32 s32, %d, s38" % HF_MB)
    A("v_min_u32 v9, 43, v1")
    A("v_lshlrev_b32 v9, 7, v9")
    lds_wait(A, 10, 12, 1, 13, 42)
    stamp(A, kidx, 5, vt=VT)
    if TOUCH & 2:
        A.vmem("buffer_load_dword v13, v9, s[20:23], s49 offen sc0 sc1", "t")
    G2.pre(w=False)
    A("s_setprio %d" % AUXPRIO)
    G2.loop()
    A("s_setprio 3")
    stamp(A, kidx, 6, vt=VT)
    A("v_add_u32 v6, s30, v2")
    A("v_add_u32 v7, s52, v2")
    A("v_add_u32 v8, s53, v2")
    A("v_add_u32 v9, s54, v2")
    A("s_nop 7")
    for j in (1, 2, 3):
        for g in range(4):
            A("ds_write_b128 v6, %s offset:%d" % (vr(ACC + j * 16 + 4 * g, 4), (j - 1) * 4096 + g * 1024))
    A("s_waitcnt lgkmcnt(0)")
    A("s_mov_b64 exec, 1")
    A("ds_add_u32 v10, v12 offset:16")
    A("s_mov_b64 exec, -1")
    lds_wait(A, 10, 16, 4, 13, 42)
    for j in (1, 2, 3):
        for g in range(4):
            A("ds_read_b128 %s, v%d offset:%d" % (vr(ACC + j * 16 + 4 * g, 4), 6 + j, (j - 1) * 4096 + g * 1024))
    A("s_lshl_b32 s48, s29, 14")
    A("s_add_u32 s48, s48, 32768")
    A("s_sub_u32 s49, s48, s30")
    A("v_add_u32 v4, s49, v4")
    A("v_add_u32 v5, s49, v5")
    A("s_lshl_b32 s33, s29, 17")
    A("s_lshl_b32 s34, s28, 7")
    A("s_add_u32 s33, s33, s34")
    A("s_lshl_b32 s31, s27, 16")
    A("s_lshl_b32 s32, s29, 13")
    A("s_add_u32 s31, s31, s32")
    A("s_add_u32 s31, s31, 0x%x" % OF_OFF)
    A("s_lshl_b32 s38, s47, 15")
    A("s_add_u32 s31, s31, s38")
    A("s_lshl_b32 s32, s38, 1")
    A("s_sub_u32 s32, 32768, s32")
    A("v_and_b32 v6, 31, v1")
    A("v_lshrrev_b32 v7, 5, v1")
    A("v_lshlrev_b32 v11, 10, v6")
    A("v_lshl_add_u32 v11, v7, 4, v11")
    A("s_lshl_b32 s45, s27, 16")
    A("s_add_u32 s45, s45, s38")
    A("s_add_u32 s45, s45, s34")
    A("s_lshl_b32 s44, s46, 6")
    A("s_add_u32 s45, s45, s44")
    lds_wait(A, 10, 36, 8, 13, 42)
    G3 = Gemm(A, 8, 8, 8, "d", 1024, 20, 64, 31, 32, 33, "s48", 34, aflag=" sc0 sc1")
    A.vm = []
    G3.pre(a=False)
    A("buffer_load_dwordx4 v[24:27], v11, s[60:63], s45 offen")
    A("buffer_load_dwordx4 v[28:31], v11, s[60:63], s45 offen offset:32")
    for r in range(16):
        A("v_add_f32 v%d, v%d, v%d" % (ACC + r, ACC + r, ACC + 16 + r))
        A("v_add_f32 v%d, v%d, v%d" % (ACC + 32 + r, ACC + 32 + r, ACC + 48 + r))
    for r in range(16):
        A("v_add_f32 v%d, v%d, v%d" % (ACC + r, ACC + r, ACC + 32 + r))
    A("s_mov_b32 s41, 0xffff0000")
    regs = list(range(ACC, ACC + 16))
    round_bf16(A, regs, 16, "s41")
    for r in regs:
        A("v_mul_f32 v%d, 0x%x, v%d" % (r + 16, f32bits(-LOG2E), r))
    for r in regs:
        A("v_exp_f32 v%d, v%d" % (r + 16, r + 16))
    for r in regs:
        A("v_add_f32 v%d, 1.0, v%d" % (r + 16, r + 16))
    for r in regs:
        A("v_rcp_f32 v%d, v%d" % (r + 16, r + 16))
    for r in regs:
        A("v_mul_f32 v%d, v%d, v%d" % (r, r, r + 16))
    for k in range(8):
        A(C(160 + k, ACC + 2 * k))
    A("s_add_u32 s36, s31, 4096")
    A("s_add_u32 s35, s31, s32")
    A("s_add_u32 s37, s36, s32")
    A("v_add_u32 v6, s48, v2")
    A("s_xor_b32 s49, s29, 1")
    A("s_lshl_b32 s49, s49, 14")
    A("v_add_u32 v7, s49, v2")
    A("s_xor_b32 s49, s29, 2")
    A("s_lshl_b32 s49, s49, 14")
    A("v_add_u32 v8, s49, v2")
    A("s_xor_b32 s49, s29, 3")
    A("s_lshl_b32 s49, s49, 14")
    A("v_add_u32 v9, s49, v2")
    A("s_waitcnt vmcnt(0)")
    stamp(A, kidx, 7, vt=VT)
    pad_end(A, "k2g")
    lds_wait(A, 10, 40, 8, 13, 42)
    stamp(A, kidx, 8, vt=VT)
    if asmlib.STAMP:
        A("s_waitcnt vmcnt(0)")
    Li = A.label("oiss")
    Lc = A.label("ochk")
    A("s_mov_b32 s50, 0")
    A("s_mov_b32 s51, 0")
    for st_ in range(8):
        A("%s_%d:" % (Li, st_))
        for a in range(2):
            A("buffer_load_dwordx4 %s, v2, s[20:23], s%d offen offset:%d sc0 sc1" % (vr(AF + (st_ * 2 + a) * 4, 4), ((31, 35), (36, 37))[st_ >> 2][a], (st_ & 3) * 1024))
    for st_ in range(1, 8):
        A("s_cmp_eq_u32 s50, %d" % st_)
        A("s_cbranch_scc1 %s_%d" % (Lc, st_))
    for st_ in range(8):
        for b in range(2):
            for j in range(2):
                A("ds_read_b64_tr_b16 %s, v%d offset:%d" % (vr(16 + 4 * b + 2 * j, 2), 4 + b, st_ * 2048 + j * 1024))
        A("%s_%d:" % (Lc, st_))
        A("s_waitcnt vmcnt(%d)" % (2 * (7 - st_)))
        f = AF + st_ * 8
        A("v_max3_u32 v13, v%d, v%d, v%d" % (f, f + 1, f + 2))
        A("v_max3_u32 v14, v%d, v%d, v%d" % (f + 3, f + 4, f + 5))
        A("v_max3_u32 v13, v13, v%d, v%d" % (f + 6, f + 7))
        A("v_max_u32 v13, v13, v14")
        A("v_cmp_eq_u32 vcc, -1, v13")
        Lg = A.label("ogo")
        A("s_add_u32 s51, s51, 1")
        A("s_mov_b32 s50, %d" % st_)
        A("s_nop 2")
        A("s_cbranch_vccz %s" % Lg)
        A("s_cmp_lt_u32 s51, 0x20000")
        A("s_cbranch_scc1 %s_%d" % (Li, st_))
        A("%s:" % Lg)
        A("s_waitcnt lgkmcnt(0)")
        for q in range(4):
            d = ACC + q * 16
            A(mfma(d, 16 + 4 * (q >> 1), f + 4 * (q & 1), "0" if st_ == 0 else d))
    stamp(A, kidx, 9, vt=VT)
    for k in range(8):
        A("v_lshlrev_b32 v%d, 16, v%d" % (32 + 2 * k, 160 + k))
        A("v_and_b32 v%d, s41, v%d" % (33 + 2 * k, 160 + k))
    for j in (1, 2, 3):
        for g in range(4):
            A("ds_write_b128 v6, %s offset:%d" % (vr(ACC + j * 16 + 4 * g, 4), j * 4096 + g * 1024))
    for k in range(8):
        A("v_lshlrev_b32 v%d, 16, v%d" % (48 + 2 * k, 24 + k))
        A("v_and_b32 v%d, s41, v%d" % (49 + 2 * k, 24 + k))
    A("s_waitcnt lgkmcnt(0)")
    A("s_barrier")
    for j in (1, 2, 3):
        for g in range(4):
            A("ds_read_b128 %s, v%d offset:%d" % (vr(ACC + j * 16 + 4 * g, 4), 6 + j, 32768 + j * 4096 + g * 1024))
    A("s_waitcnt lgkmcnt(4)")
    for r in range(16):
        A("v_add_f32 v%d, v%d, v%d" % (ACC + r, ACC + r, ACC + 16 + r))
    for r in range(16):
        A("v_add_f32 v%d, v%d, v%d" % (ACC + r, ACC + r, ACC + 32 + r))
    A("s_waitcnt lgkmcnt(0)")
    for r in range(16):
        A("v_add_f32 v%d, v%d, v%d" % (ACC + r, ACC + r, ACC + 48 + r))
    round_bf16(A, regs, 16, "s41")
    for r in range(16):
        A("v_mul_f32 v%d, v%d, v%d" % (ACC + r, ACC + r, 32 + r))
    for k in range(8):
        A(C(16 + k, ACC + 2 * k))
    A("s_nop 1")
    for k in (0, 1, 4, 5):
        A("v_permlane32_swap_b32 v%d, v%d" % (16 + k, 18 + k))
    A("s_nop 0")
    for k in range(8):
        A("v_lshlrev_b32 v%d, 16, v%d" % (32 + 2 * k, 16 + k))
        A("v_and_b32 v%d, s41, v%d" % (33 + 2 * k, 16 + k))
    for r in range(16):
        A("v_add_f32 v%d, v%d, v%d" % (32 + r, 32 + r, 48 + r))
    for k in range(8):
        A(C(16 + k, 32 + 2 * k))
    pad_end(A, "k2s")
    A("buffer_store_dwordx4 v[16:19], v11, s[68:71], s45 offen" + OUTST)
    A("buffer_store_dwordx4 v[20:23], v11, s[68:71], s45 offen offset:32" + OUTST)
    if asmlib.STAMP:
        A("s_waitcnt vmcnt(0)")
    stamp(A, kidx, 10, vt=VT)
    pad_end(A, "k2e")
    A("s_endpgm")
    return 168


def gen_k3(A, name="k3_kernel", kidx=0):
    VT = (176, 177, 178)
    kernel_begin(A, name)
    Lend = A.label("k3end")
    A("s_cmp_ge_u32 s2, 256")
    A("s_cbranch_scc1 %s" % Lend)
    pad_begin(A, "k3")
    A("s_load_dwordx2 s[4:5], s[0:1], 16")
    A("s_load_dwordx2 s[6:7], s[0:1], 0")
    A("s_load_dwordx2 s[8:9], s[0:1], 64")
    A("s_load_dwordx2 s[10:11], s[0:1], 48")
    A("v_and_b32 v1, 63, v0")
    A("v_lshrrev_b32 v8, 6, v0")
    A("s_lshr_b32 s25, s2, 5" if BADMAP else "s_and_b32 s25, s2, 7")
    A("v_readfirstlane_b32 s24, v8")
    A("s_and_b32 s26, s2, 31" if BADMAP else "s_lshr_b32 s26, s2, 3")
    A("s_lshl_b32 s27, s25, 2")
    A("s_and_b32 s28, s26, 3")
    A("s_add_u32 s27, s27, s28")
    A("s_lshr_b32 s28, s26, 2")
    A("v_lshlrev_b32 v2, 4, v1")
    A("s_lshl_b32 s30, s24, 14")
    A("s_lshr_b32 s46, s24, 1")
    A("s_and_b32 s47, s24, 1")
    gemm_addr(A, 1024, "d", "s30", "s46")
    A("s_waitcnt lgkmcnt(0)")
    srd(A, 12, 6, X_BYTES)
    srd(A, 16, 4, WO_BYTES)
    srd(A, 20, 8, WS_BYTES)
    srd(A, 36, 10, X_BYTES)
    A("s_lshl_b32 s31, s27, 16")
    A("s_lshl_b32 s32, s24, 13")
    A("s_add_u32 s31, s31, s32")
    A("s_add_u32 s31, s31, 0x%x" % OF_OFF)
    A("s_lshl_b32 s48, s47, 15")
    A("s_add_u32 s31, s31, s48")
    A("s_lshl_b32 s32, s48, 1")
    A("s_sub_u32 s32, 32768, s32")
    A("s_lshl_b32 s33, s24, 17")
    A("s_lshl_b32 s34, s28, 7")
    A("s_add_u32 s33, s33, s34")
    G = Gemm(A, 8, 8, 8, "d", 1024, 20, 16, 31, 32, 33, "s30", 50)
    G.pre()
    stamp(A, kidx, 0, vt=VT)
    A("v_and_b32 v6, 31, v1")
    A("v_lshrrev_b32 v7, 5, v1")
    A("v_lshlrev_b32 v10, 10, v6")
    A("v_lshl_add_u32 v10, v7, 4, v10")
    A("s_lshl_b32 s42, s27, 16")
    A("s_add_u32 s42, s42, s48")
    A("s_lshl_b32 s43, s28, 7")
    A("s_add_u32 s42, s42, s43")
    A("s_lshl_b32 s43, s46, 6")
    A("s_add_u32 s42, s42, s43")
    A("s_lshl_b32 s44, s27, 16")
    A("s_lshl_b32 s45, s28, 13")
    A("s_add_u32 s44, s44, s45")
    A("s_lshl_b32 s45, s24, 11")
    A("s_add_u32 s44, s44, s45")
    A("s_add_u32 s44, s44, 0x%x" % G_OFF)
    A.vmem("buffer_load_dwordx4 v[160:163], v2, s[20:23], s44 offen", "g")
    A.vmem("buffer_load_dwordx4 v[164:167], v2, s[20:23], s44 offen offset:1024", "g")
    A.vmem("buffer_load_dwordx4 v[168:171], v10, s[12:15], s42 offen", "g")
    A.vmem("buffer_load_dwordx4 v[172:175], v10, s[12:15], s42 offen offset:32", "g")
    G.loop()
    stamp(A, kidx, 2, vt=VT)
    A("v_add_u32 v6, s30, v2")
    A("s_nop 10")
    for j in (1, 2, 3):
        for g in range(4):
            A("ds_write_b128 v6, %s offset:%d" % (vr(ACC + j * 16 + 4 * g, 4), j * 4096 + g * 1024))
    A("v_xor_b32 v7, 0x4000, v6")
    A("v_xor_b32 v8, 0x8000, v6")
    A("v_xor_b32 v9, 0xc000, v6")
    A("s_waitcnt lgkmcnt(0)")
    A("s_barrier")
    for j in (1, 2, 3):
        for g in range(4):
            A("ds_read_b128 %s, v%d offset:%d" % (vr(ACC + j * 16 + 4 * g, 4), 6 + j, j * 4096 + g * 1024))
    A("s_mov_b32 s41, 0xffff0000")
    A.wait_vm("g")
    for k in range(8):
        A("v_lshlrev_b32 v%d, 16, v%d" % (32 + 2 * k, 160 + k))
        A("v_and_b32 v%d, s41, v%d" % (33 + 2 * k, 160 + k))
    for k in range(8):
        A("v_lshlrev_b32 v%d, 16, v%d" % (48 + 2 * k, 168 + k))
        A("v_and_b32 v%d, s41, v%d" % (49 + 2 * k, 168 + k))
    A("s_waitcnt lgkmcnt(0)")
    for r in range(16):
        A("v_add_f32 v%d, v%d, v%d" % (ACC + r, ACC + r, ACC + 16 + r))
        A("v_add_f32 v%d, v%d, v%d" % (ACC + 32 + r, ACC + 32 + r, ACC + 48 + r))
    for r in range(16):
        A("v_add_f32 v%d, v%d, v%d" % (ACC + r, ACC + r, ACC + 32 + r))
    regs = list(range(ACC, ACC + 16))
    round_bf16(A, regs, 16, "s41")
    for r in range(16):
        A("v_mul_f32 v%d, v%d, v%d" % (ACC + r, ACC + r, 32 + r))
    for k in range(8):
        A(C(16 + k, ACC + 2 * k))
    A("s_nop 1")
    for k in (0, 1, 4, 5):
        A("v_permlane32_swap_b32 v%d, v%d" % (16 + k, 18 + k))
    A("s_nop 0")
    for k in range(8):
        A("v_lshlrev_b32 v%d, 16, v%d" % (32 + 2 * k, 16 + k))
        A("v_and_b32 v%d, s41, v%d" % (33 + 2 * k, 16 + k))
    for r in range(16):
        A("v_add_f32 v%d, v%d, v%d" % (32 + r, 32 + r, 48 + r))
    for k in range(8):
        A(C(16 + k, 32 + 2 * k))
    A("buffer_store_dwordx4 v[16:19], v10, s[36:39], s42 offen")
    A("buffer_store_dwordx4 v[20:23], v10, s[36:39], s42 offen offset:32")
    if asmlib.STAMP:
        A("s_waitcnt vmcnt(0)")
    stamp(A, kidx, 3, vt=VT)
    pad_end(A, "k3")
    A("%s:" % Lend)
    A("s_endpgm")
    return 180
```

```python
import asmlib
from asmlib import *
from layout import *

WBASE = 65536
WSLOT = 24576
K1_LDS = 163840

def gen_k1(A, name="k1_kernel", kidx=0, st_flag="", code_bytes=0):
    VT = (128, 129, 130)
    kernel_begin(A, name)
    Lend = A.label("k1end")
    Lld = A.label("k1ld")
    A("s_cmp_ge_u32 s2, 256")
    A("s_cbranch_scc1 %s" % Lend)
    pad_begin(A, "k1")
    A("s_load_dwordx4 s[4:7], s[0:1], 0")
    A("s_load_dwordx2 s[8:9], s[0:1], 64")
    A("v_and_b32 v1, 63, v0")
    A("v_lshrrev_b32 v11, 6, v0")
    A("s_lshr_b32 s25, s2, 5" if BADMAP else "s_and_b32 s25, s2, 7")
    A("v_readfirstlane_b32 s24, v11")
    A("s_and_b32 s26, s2, 31" if BADMAP else "s_lshr_b32 s26, s2, 3")
    A("s_and_b32 s27, s25, 3")
    A("s_lshl_b32 s27, s27, 3")
    A("s_and_b32 s28, s26, 7")
    A("s_add_u32 s27, s27, s28")
    A("s_lshr_b32 s28, s25, 2")
    A("s_lshl_b32 s28, s28, 2")
    A("s_lshr_b32 s29, s26, 3")
    A("s_add_u32 s28, s28, s29")
    A("v_lshrrev_b32 v11, 3, v1")
    A("v_and_b32 v12, 7, v1")
    A("v_lshlrev_b32 v2, 10, v11")
    A("v_lshl_add_u32 v2, v12, 4, v2")
    A("s_lshl_b32 s55, s29, 1")
    A("s_lshr_b32 s54, s25, 2")
    A("s_add_u32 s55, s55, s54")
    if ROT == 1:
        A("s_add_u32 s55, s55, s26")
    A("s_and_b32 s55, s55, 7")
    A("s_waitcnt lgkmcnt(0)")
    srd(A, 12, 4, X_BYTES)
    srd(A, 16, 6, WQKV_BYTES)
    srd(A, 20, 8, WS_BYTES)
    A("s_cmp_ge_u32 s24, 8")
    A("s_cbranch_scc1 %s" % Lld)
    A("s_lshl_b32 s30, s27, 16")
    A("s_lshl_b32 s31, s24, 13")
    A("s_add_u32 s30, s30, s31")
    XR = 32
    for c in range(8):
        A("s_add_u32 s31, s55, %d" % c)
        A("s_and_b32 s31, s31, 7")
        A("s_lshl_b32 s31, s31, 7")
        A("s_add_u32 s31, s31, s30")
        A.vmem("buffer_load_dwordx4 %s, v2, s[12:15], s31 offen%s" % (vr(XR + c * 4, 4), K1NT), "x%d" % c)
    if K1PRE:
        A("s_barrier")
    A("v_xor_b32 v13, v11, v12")
    A("v_lshlrev_b32 v4, 9, v12")
    A("v_lshl_add_u32 v10, v11, 4, v4")
    A("v_lshl_add_u32 v4, v13, 4, v4")
    A("s_lshr_b32 s35, s24, 2")
    A("s_and_b32 s36, s24, 3")
    A("s_lshl_b32 s37, s35, 12")
    A("s_lshl_b32 s38, s36, 7")
    A("s_add_u32 s37, s37, s38")
    A("v_add_u32 v4, s37, v4")
    A("s_lshl_b32 s52, s27, 1")
    A("s_add_u32 s52, s52, s35")
    A("s_lshl_b32 s52, s52, 15")
    A("s_lshl_b32 s53, s55, 12")
    A("s_add_u32 s52, s52, s53")
    A("s_add_u32 s52, s52, s38")
    A("s_add_u32 s52, s52, 0x%x" % XN_OFF)
    A("s_bfe_u32 s35, s24, 0x10001")
    A("s_and_b32 s36, s24, 1")
    A("v_and_b32 v13, 31, v1")
    A("v_lshrrev_b32 v14, 5, v1")
    A("s_lshl_b32 s37, s36, 12")
    for v in range(4):
        A("v_add_u32 v15, %d, v14" % (2 * v))
        A("v_xor_b32 v16, v13, v15")
        A("v_lshlrev_b32 v16, 4, v16")
        A("v_lshl_add_u32 v16, v15, 9, v16")
        A("v_add_u32 v%d, s37, v16" % (5 + v))
    A("v_mul_u32_u24 v9, 3072, v14")
    A("v_bfe_u32 v15, v1, 2, 2")
    A("v_lshl_add_u32 v9, v15, 7, v9")
    A("v_lshrrev_b32 v15, 1, v15")
    A("v_xor_b32 v15, s35, v15")
    A("v_lshl_add_u32 v9, v15, 6, v9")
    A("v_bfe_u32 v15, v1, 4, 1")
    A("v_lshl_add_u32 v9, v15, 5, v9")
    A("v_and_b32 v15, 3, v1")
    A("v_lshl_add_u32 v9, v15, 3, v9")
    A("v_add_u32 v9, %d, v9" % WBASE)
    A("v_lshlrev_b32 v11, 4, v1")
    A("v_bfe_u32 v15, v1, 4, 1")
    A("v_lshlrev_b32 v12, 17, v15")
    A("v_lshl_add_u32 v12, v14, 8, v12")
    A("v_and_b32 v15, 15, v1")
    A("v_lshl_add_u32 v12, v15, 4, v12")
    A("s_lshl_b32 s43, s27, 1")
    A("s_add_u32 s43, s43, s36")
    A("s_lshl_b32 s46, s28, 2")
    A("s_lshl_b32 s47, s35, 1")
    A("s_add_u32 s46, s46, s47")
    A("s_lshl_b32 s47, s46, 16")
    A("s_lshl_b32 s48, s43, 10")
    A("s_add_u32 s47, s47, s48")
    A("s_add_u32 s47, s47, 0x%x" % QF_OFF)
    A("s_add_u32 s48, s47, 65536")
    A("s_lshl_b32 s49, s46, 17")
    A("s_lshl_b32 s50, s43, 11")
    A("s_add_u32 s49, s49, s50")
    A("s_add_u32 s49, s49, 0x%x" % KV_OFF)
    A("s_add_u32 s50, s49, 131072")
    A("s_mov_b32 s51, 0x%x" % QSCALE_BITS)
    ACC = [80, 96, 112]
    for r in range(80, 128):
        A("v_mov_b32 v%d, 0" % r)
    A("s_mov_b32 s56, 1")
    A("s_mov_b32 s57, %d" % WSLOT)
    A("s_mov_b32 s59, 0x%x" % ((-3 * WSLOT) & 0xffffffff))
    A("s_movk_i32 s58, 0x2000")
    A("v_mov_b32 v14, 0x3f803f80")
    A("v_mov_b32 v15, 0xffff0000")
    for i in range(4):
        A("v_mov_b32 v%d, 0" % (16 + i))
    for c in range(8):
        A.wait_vm("x%d" % c)
        for d in range(4):
            r = XR + c * 4 + d
            A("v_dot2c_f32_bf16 v%d, v14, v%d" % (16 + (d & 1), r))
            A("v_dot2c_f32_bf16 v%d, v%d, v%d" % (18 + (d & 1), r, r))
    A("s_nop 2")
    A("v_add_f32 v16, v16, v17")
    A("v_add_f32 v18, v18, v19")
    for mode in ("quad_perm:[1,0,3,2]", "quad_perm:[2,3,0,1]", "row_half_mirror"):
        A("s_nop 0")
        for r in (16, 18):
            A("v_add_f32_dpp v%d, v%d, v%d %s row_mask:0xf bank_mask:0xf" % (r, r, r, mode))
    A("v_mul_f32 v16, 0x3b000000, v16")
    A("v_mul_f32 v18, 0x3b000000, v18")
    A("v_fma_f32 v18, -v16, v16, v18")
    A("v_max_f32 v18, 0, v18")
    A("v_cvt_pk_bf16_f32 v17, v16, v18")
    A("v_lshlrev_b32 v16, 16, v17")
    A("v_and_b32 v18, v15, v17")
    A("v_add_f32 v18, 0x3727c5ac, v18")
    A("v_cvt_pk_bf16_f32 v18, v18, v18")
    A("v_and_b32 v18, v15, v18")
    A("v_sqrt_f32 v18, v18")
    A("s_nop 0")
    A("v_cvt_pk_bf16_f32 v18, v18, v18")
    A("v_and_b32 v18, v15, v18")
    A("v_rcp_f32 v20, v18")
    A("s_nop 0")
    A("v_mul_f32 v21, -v16, v20")
    if asmlib.STAMP:
        A("s_memrealtime s[62:63]")
        A("s_memtime s[64:65]")
    for c in range(8):
        b = XR + c * 4
        T = 64 + 8 * (c & 1)
        for d in range(4):
            A("v_lshlrev_b32 v%d, 16, v%d" % (T + 2 * d, b + d))
            A("v_and_b32 v%d, v15, v%d" % (T + 2 * d + 1, b + d))
        for d in range(8):
            A("v_fma_f32 v%d, v%d, v20, v21" % (T + d, T + d))
        for d in range(4):
            A("v_cvt_pk_bf16_f32 v%d, v%d, v%d" % (b + d, T + 2 * d, T + 2 * d + 1))
        A("ds_write_b128 v4, %s offset:%d" % (vr(b, 4), c * 8192))
    if asmlib.STAMP:
        A("s_memrealtime s[66:67]")
        A("s_memtime s[68:69]")
    A("s_waitcnt lgkmcnt(0)")
    A("s_barrier")
    if asmlib.STAMP:
        A("s_memrealtime s[70:71]")
        A("s_memtime s[72:73]")
        A("s_waitcnt lgkmcnt(0)")
    Lmm = A.label("k1mm")
    A("s_cmp_lt_u32 s24, 4")
    A("s_cbranch_scc1 %s" % Lmm)
    A("buffer_store_dwordx4 %s, v10, s[20:23], s52 offen%s" % (vr(XR, 4), st_flag))
    for i in range(4):
        A("v_mov_b32 v%d, -1" % (16 + i))
    A("s_lshl_b32 s34, s2, 13")
    A("s_lshl_b32 s35, s24, 11")
    A("s_add_u32 s34, s34, s35")
    A("s_add_u32 s34, s34, 0x%x" % (OF_OFF - 8192))
    A("buffer_store_dwordx4 v[16:19], v11, s[20:23], s34 offen" + st_flag)
    A("buffer_store_dwordx4 v[16:19], v11, s[20:23], s34 offen offset:1024" + st_flag)
    for i in range(7):
        A("s_barrier")
    A("s_endpgm")
    A("%s:" % Lmm)
    for i in range(4):
        A("v_mov_b32 v%d, v%d" % (132 + i, XR + i))
    BUF = [16, 32, 48, 64]
    A("s_setprio 3")

    def reads(r, part):
        b = BUF[r]
        if part == 0:
            A("ds_read_b128 %s, v%d" % (vr(b, 4), 5 + r))
        for j in range(2):
            A("ds_read_b64_tr_b16 %s, v9 offset:%d" % (vr(b + 4 + 4 * part + 2 * j, 2), r * 6144 + part * 1024 + j * 512))
    for r in range(2):
        for part in range(3):
            reads(r, part)
    Lloop = A.label("k1loop")
    A(".p2align 6")
    A("%s:" % Lloop)
    filler = {(0, 0): "s_and_b32 s53, s56, 3", (0, 1): "s_cselect_b32 s54, s57, s59", (0, 2): "v_add_u32 v5, s58, v5",
              (1, 0): "s_add_u32 s56, s56, 1", (1, 1): "v_add_u32 v6, s58, v6", (1, 2): "v_add_u32 v7, s58, v7",
              (2, 0): "v_add_u32 v8, s58, v8", (2, 1): "s_nop 0", (2, 2): "s_nop 0", (3, 0): "s_nop 0", (3, 1): "s_nop 0", (3, 2): "s_cmp_lg_u32 s56, 9"}
    for r in range(4):
        b = BUF[r]
        ms = [mfma(ACC[0], b + 4, b, ACC[0]), mfma(ACC[1], b + 8, b, ACC[1]), mfma(ACC[2], b, b + 12, ACC[2])]
        for G in range(3):
            A(filler[(r, G)])
            A("s_waitcnt lgkmcnt(%d)" % (11 if G == 0 else 12))
            A(ms[G])
            if r == 2 and G == 0:
                A("s_barrier")
                A("v_add_u32 v9, s54, v9")
            reads((r + 2) & 3, G)
    A("s_cbranch_scc1 %s" % Lloop)
    if asmlib.STAMP:
        A("s_memrealtime s[74:75]")
        A("s_memtime s[76:77]")
    A("buffer_store_dwordx4 v[132:135], v10, s[20:23], s52 offen" + st_flag)
    A("s_nop 6")
    A("s_waitcnt lgkmcnt(0)")
    for t in (1, 2, 0):
        regs = ACC[t]
        if t == 0:
            for r in range(16):
                A("v_mul_f32 v%d, s51, v%d" % (ACC[0] + r, ACC[0] + r))
        for i in range(8):
            A("v_cvt_pk_bf16_f32 v%d, v%d, v%d" % (16 + t * 8 + i, regs + 2 * i, regs + 2 * i + 1))
        if t == 0:
            A("buffer_store_dwordx4 v[16:19], v11, s[20:23], s47 offen" + st_flag)
            A("buffer_store_dwordx4 v[20:23], v11, s[20:23], s48 offen" + st_flag)
        elif t == 1:
            A("buffer_store_dwordx4 v[24:27], v11, s[20:23], s49 offen" + st_flag)
            A("buffer_store_dwordx4 v[28:31], v11, s[20:23], s50 offen" + st_flag)
        else:
            A("buffer_store_dwordx4 v[32:35], v12, s[20:23], s49 offen offset:1024" + st_flag)
            A("buffer_store_dwordx4 v[36:39], v12, s[20:23], s49 offen offset:1536" + st_flag)
    if asmlib.STAMP:
        A("s_waitcnt vmcnt(0)")
        stamp(A, kidx, 5, vt=VT)
        for slot, b in ((0, 62), (1, 62), (2, 66), (3, 70), (4, 74)):
            stamp(A, kidx, slot, vt=VT, saved=b)
    pad_end(A, "k1")
    A("%s:" % Lend)
    A("s_endpgm")

    A("%s:" % Lld)
    A.vm = []
    Lpf = A.label("k1pf")
    A("s_cmp_eq_u32 s24, 11")
    A("s_cbranch_scc1 %s" % Lpf)
    stamp(A, kidx, 0, vt=VT)
    A("v_lshrrev_b32 v13, 2, v1")
    A("v_and_b32 v13, 4, v13")
    A("v_xor_b32 v13, v12, v13")
    A("v_mul_u32_u24 v3, 3072, v11")
    A("v_lshl_add_u32 v3, v13, 4, v3")
    A("s_sub_u32 s29, s24, 8")
    A("s_lshl_b32 s33, s29, 10")
    A("s_lshl_b32 s32, s28, 7")
    A("s_add_u32 s32, s32, s33")
    A("s_add_u32 s33, s33, %d" % WBASE)

    def wdma(c):
        A("s_add_u32 s34, s55, %d" % c)
        A("s_and_b32 s34, s34, 7")
        A("s_mul_i32 s34, s34, %d" % (4 * 49152))
        for i in range(8):
            A("s_add_u32 m0, s33, %d" % ((c & 3) * WSLOT + i * 3072))
            A("s_add_u32 s34, s34, %s" % ("s32" if i == 0 else "24576"))
            A.vmem("buffer_load_dwordx4 v3, s[16:19], s34 offen%s lds" % K1NT, "w%d" % c)
    if K1PRE == 2:
        wdma(0)
    if K1PRE:
        A("s_barrier")
    for c in range(1 if K1PRE == 2 else 0, K1LEAD):
        wdma(c)
    nxt = K1LEAD
    for c in range(8):
        A.wait_vm("w%d" % c)
        if c in (0, 1, 4, 7):
            stamp(A, kidx, {0: 2, 1: 3, 4: 4, 7: 5}[c], vt=VT)
        A("s_barrier")
        if nxt < 8 and nxt <= max(3, c + 2):
            wdma(nxt)
            nxt += 1
    assert nxt == 8
    A("s_endpgm")
    A("%s:" % Lpf)
    if DBGT:
        A("s_memrealtime s[80:81]")
        A("s_getreg_b32 s78, hwreg(HW_REG_XCC_ID)")
        A("s_waitcnt lgkmcnt(0)")
        A("s_and_b32 s78, s78, 7")
        A("s_lshl_b32 s78, s78, 3")
        A("v_mov_b32 v20, s80")
        A("v_mov_b32 v22, 0")
        A("s_lshl_b32 s79, s2, 2")
        A("s_add_u32 s79, s79, 0x%x" % (22 << 20))
        A("buffer_store_dword v20, v22, s[20:23], s79 offen")
    if K1TOUCH:
        A("v_lshrrev_b32 v13, 5, v1")
        A("v_bfe_u32 v14, v1, 2, 3")
        A("v_and_b32 v15, 3, v1")
        A("v_min_u32 v15, 2, v15")
        A("v_mul_u32_u24 v5, 3072, v14")
        A("v_lshl_add_u32 v5, v15, 10, v5")
        A("s_and_b32 s37, s26, 7")
        A("s_mul_i32 s37, s37, 24576")
        A("s_lshl_b32 s38, s28, 7")
        A("s_add_u32 s37, s37, s38")
        A("s_mov_b32 s39, %d" % (4 * 49152))
        A("v_add_u32 v13, s55, v13")
        for i in range(4):
            A("v_and_b32 v14, 7, v13")
            A("v_mul_lo_u32 v14, v14, s39")
            A("v_add_u32 v14, v14, v5")
            A("buffer_load_dword v%d, v14, s[16:19], s37 offen" % (16 + i))
            A("v_add_u32 v13, 2, v13")
    if code_bytes:
        Lc = A.label("k1code")
        A("s_cmp_ge_u32 s26, (L_code_end - L_code_pc + 8191) / 8192")
        A("s_cbranch_scc1 %s" % Lc)
        A("s_getpc_b64 s[38:39]")
        A("L_code_pc:")
        A("s_lshl_b32 s37, s26, 13")
        A("v_lshlrev_b32 v15, 7, v1")
        A("v_add_u32 v15, s37, v15")
        A("v_min_u32 v15, L_code_end - L_code_pc - 4, v15")
        A("global_load_dword v14, v15, s[38:39]")
        A("%s:" % Lc)
    Lz = A.label("k1z")
    A("s_cmp_lg_u32 s2, 0")
    A("s_cbranch_scc1 %s" % Lz)
    for i in range(4):
        A("v_mov_b32 v%d, 0" % (24 + i))
    A("v_lshlrev_b32 v6, 4, v1")
    for i in range(CNT_BYTES // 1024):
        A("s_mov_b32 s34, 0x%x" % (CNT_OFF + i * 1024))
        A("buffer_store_dwordx4 v[24:27], v6, s[20:23], s34 offen" + st_flag)
    A("%s:" % Lz)
    if PF:
        A("s_load_dwordx2 s[40:41], s[0:1], 16")
        A("s_load_dwordx4 s[44:47], s[0:1], 32")
        A("v_lshlrev_b32 v9, 7, v1")
        A("s_waitcnt lgkmcnt(0)")
        srd(A, 60, 44, W1_BYTES)
        srd(A, 64, 46, W2_BYTES)
        srd(A, 68, 40, WO_BYTES)
    for i in range(10 if K1PRE else 9):
        A("s_barrier")
        if PF and i == PFAT:
            A("s_mul_i32 s34, s2, %d" % (43 * 128))
            A("v_min_u32 v7, %d, v9" % (42 * 128))
            if PF == 1:
                A("buffer_load_dword v20, v7, s[60:63], s34 offen")
            else:
                A("s_lshl_b32 s35, s26, 13")
                for t in range(6):
                    A("s_add_u32 s36, s35, %d" % (t * 262144))
                    A("buffer_load_dword v%d, v9, s[60:63], s36 offen" % (28 + t))
            A("buffer_load_dword v21, v7, s[64:67], s34 offen")
            A("s_lshl_b32 s34, s2, 11")
            A("v_min_u32 v7, %d, v9" % (15 * 128))
            A("buffer_load_dword v22, v7, s[68:71], s34 offen")
    A("s_endpgm")
    return 136
```

```python
import asmlib
from asmlib import *
from layout import *

Q = 4; NEGM = 16; S = [32, 48]; P = 64; O = 72; KF = [88, 92]; VF = [[96, 100], [104, 108]]
def E(r, e64=False): return "v_exp_f32%s v%d, v%d" % ("_e64" if e64 else "", r, r)
def C(d, r): return "v_cvt_pk_bf16_f32 v%d, v%d, v%d" % (d, r, r + 1)

def att_tile(A, i):
    p = i & 1; s = S[p]; sp = S[p ^ 1]
    A(E(s)); A("s_waitcnt lgkmcnt(0)")
    A(C(P + 7, sp + 14))
    A(E(s + 1)); A(E(s + 2))
    A(mfma(O, VF[p ^ 1][1], P + 4, O))
    A(C(P, s))
    A(E(s + 3)); A("s_mov_b64 exec, s[40:41]")
    A("ds_read_b128 %s, v3 offset:%d" % (vr(VF[p ^ 1][0], 4), (i + 1) * 2048))
    A("ds_read_b128 %s, v3 offset:%d" % (vr(VF[p ^ 1][1], 4), (i + 1) * 2048 + 512))
    A("s_mov_b64 exec, -1"); A(E(s + 4))
    A(C(P + 1, s + 2))
    A(E(s + 5)); A(E(s + 6))
    A(mfma(sp, KF[p ^ 1], Q, NEGM))
    A(C(P + 2, s + 4))
    A(E(s + 7)); A(E(s + 8))
    A("ds_read_b128 %s, v2 offset:%d" % (vr(KF[p], 4), (i + 2) * 2048))
    A(C(P + 3, s + 6))
    A(E(s + 9)); A(E(s + 10))
    A(mfma(O, VF[p][0], P, O))
    A(C(P + 4, s + 8))
    A(E(s + 11)); A(E(s + 12))
    A(C(P + 5, s + 10))
    A(E(s + 13)); A(E(s + 14))
    A(C(P + 6, s + 12))
    A(E(s + 15, e64=True))


def rowmax16(A, dst, s, init=None):
    if init is None:
        A("v_max3_f32 v%d, v%d, v%d, v%d" % (dst, s, s + 1, s + 2))
        rest = list(range(3, 16))
    else:
        A("v_max3_f32 v%d, v%d, v%d, v%d" % (dst, s, s + 1, init))
        rest = list(range(2, 16))
    while len(rest) >= 2:
        A("v_max3_f32 v%d, v%d, v%d, v%d" % (dst, dst, s + rest[0], s + rest[1]))
        rest = rest[2:]
    if rest:
        A("v_max_f32 v%d, v%d, v%d" % (dst, dst, s + rest[0]))


def set_negm(A, m):
    A("v_mov_b32 v9, v%d" % m)
    A("s_nop 1")
    A("v_permlane32_swap_b32 v%d, v9" % m)
    A("s_nop 1")
    A("v_max_f32 v%d, v%d, v9" % (m, m))
    A("v_sub_f32 v%d, 0, v%d" % (NEGM, m))
    for r in range(1, 16):
        A("v_mov_b32 v%d, v%d" % (NEGM + r, NEGM))


WFB = [16, 24]
AF = 32
ACC = 96

def gemm_addr(A, rowstride, kind, s_ring, s_bswap):
    A("v_lshrrev_b32 v6, 3, v1")
    A("v_and_b32 v7, 7, v1")
    A("v_lshrrev_b32 v8, 2, v1")
    A("v_and_b32 v8, 4, v8")
    A("v_xor_b32 v7, v7, v8")
    A("v_mul_u32_u24 v3, %d, v6" % rowstride)
    A("v_lshl_add_u32 v3, v7, 4, v3")
    A("v_lshrrev_b32 v6, 5, v1")
    A("v_lshlrev_b32 v4, %d, v6" % (10 if kind == "x" else 9))
    A("v_bfe_u32 v7, v1, 2, 2")
    A("v_lshl_add_u32 v4, v7, 7, v4")
    A("v_lshrrev_b32 v7, 1, v7")
    if s_bswap:
        A("v_xor_b32 v7, %s, v7" % s_bswap)
    A("v_lshl_add_u32 v4, v7, 6, v4")
    A("v_bfe_u32 v7, v1, 4, 1")
    A("v_lshl_add_u32 v4, v7, 5, v4")
    A("v_and_b32 v7, 3, v1")
    A("v_lshl_add_u32 v4, v7, 3, v4")
    A("v_add_u32 v4, %s, v4" % s_ring)
    A("v_xor_b32 v5, 64, v4")


class Gemm:
    def __init__(self, A, nsteps, DW, DA, kind, rowstride, srdA, srdW, sA0, sA1, sW, s_ring, st, aflag="", rot=None, alds=False):
        self.__dict__.update(locals())
        self.jstep = 512 if kind == "x" else 1024

    def grp(self, dst, s, unit, base):
        A = self.A
        if self.rot is None:
            A("s_add_u32 s%d, s%d, %d" % (dst, base, (s // 4) * unit))
        else:
            A("s_add_u32 s%d, %s, %d" % (dst, self.rot, s // 4))
            A("s_and_b32 s%d, s%d, 7" % (dst, dst))
            A("s_mul_i32 s%d, s%d, %d" % (dst, dst, unit))
            A("s_add_u32 s%d, s%d, s%d" % (dst, dst, base))

    def issue_w(self, s, parts=(0, 1)):
        A = self.A
        if F1REP & 8:
            return
        for hh in parts:
            if s % 4 == 0 and hh == 0:
                self.grp(self.st + 1, s, 64 * self.rowstride, self.sW)
            A("s_add_u32 m0, %s, %d" % (self.s_ring, (s % self.DW) * 2048 + hh * 1024))
            A("s_add_u32 s%d, s%d, %d" % (self.st, self.st + 1, (16 * (s % 4) + 8 * hh) * self.rowstride))
            A.vmem("buffer_load_dwordx4 v3, %s, s%d offen lds" % (sr(self.srdW, 4), self.st), "w%d" % s)

    def issue_a(self, s, parts=(0, 1)):
        A = self.A
        for a in parts:
            if s % 4 == 0 and a == 0:
                self.grp(self.st + 2, s, 4096, self.sA0)
                A("s_add_u32 s%d, s%d, s%d" % (self.st + 3, self.st + 2, self.sA1))
            A.vmem("buffer_load_dwordx4 %s, v2, %s, s%d offen offset:%d%s" % (
                vr(AF + ((s % self.DA) * 2 + a) * 4, 4), sr(self.srdA, 4), self.st + 2 + a, (s % 4) * 1024, self.aflag), "a%d" % s)

    def pre(self, a=True, w=True):
        for s in range(max(self.DW, self.DA)):
            if a and s < self.DA and s < self.nsteps:
                self.issue_a(s)
            if w and s < self.DW and s < self.nsteps:
                self.issue_w(s)

    def reads(self, s, part):
        A = self.A
        if F1REP & 4:
            return
        if self.alds:
            A("ds_read_b128 %s, v9 offset:%d" % (vr(AF + ((s & 1) * 2 + part) * 4, 4), (s // 4) * 8192 + part * 4096 + (s % 4) * 1024))
        for j in range(2):
            A("ds_read_b64_tr_b16 %s, v%d offset:%d" % (vr(WFB[s & 1] + 4 * part + 2 * j, 2), 4 + part, (s % self.DW) * 2048 + j * self.jstep))

    def loop(self, hook=None):
        A = self.A
        n = self.nsteps
        DA = 2 if self.alds else self.DA
        A.wait_vm("w0")
        self.reads(0, 0)
        self.reads(0, 1)
        for s in range(n):
            A.wait_vm("a%d" % s, extra="lgkmcnt(0)")
            if hook:
                hook(s)
            for q in range(4):
                b, a = q >> 1, q & 1
                d = ACC + q * 16
                if not (F1REP & 2):
                    A(mfma(d, WFB[s & 1] + 4 * b, AF + ((s % DA) * 2 + a) * 4, "0" if s == 0 else d))
                if q < 2:
                    if s + 1 < n:
                        if q == 0:
                            A.wait_vm("w%d" % (s + 1))
                        self.reads(s + 1, q)
                    if not self.alds and s >= 1 and s - 1 + self.DA < n:
                        self.issue_a(s - 1 + self.DA, (q,))
                elif s + self.DW < n:
                    self.issue_w(s + self.DW, (q - 2,))


def lds_wait(A, vaddr, off, val, vt, st, sleep=1):
    L = A.label("lw")
    A("s_mov_b32 s%d, 0" % (st + 1))
    A("%s:" % L)
    A("ds_read_b32 v%d, v%d offset:%d" % (vt, vaddr, off))
    A("s_add_u32 s%d, s%d, 1" % (st + 1, st + 1))
    A("s_waitcnt lgkmcnt(0)")
    A("v_readfirstlane_b32 s%d, v%d" % (st, vt))
    A("s_cmp_ge_u32 s%d, %s" % (st, val))
    A("s_cbranch_scc1 %s_d" % L)
    A("s_sleep %d" % sleep)
    A("s_cmp_lt_u32 s%d, 0x200000" % (st + 1))
    A("s_cbranch_scc1 %s" % L)
    A("%s_d:" % L)


def round_bf16(A, regs, tmp, smask):
    for k in range(0, len(regs), 2):
        A("v_cvt_pk_bf16_f32 v%d, v%d, v%d" % (tmp + k // 2, regs[k], regs[k + 1]))
    for k in range(0, len(regs), 2):
        A("v_lshlrev_b32 v%d, 16, v%d" % (regs[k], tmp + k // 2))
        A("v_and_b32 v%d, %s, v%d" % (regs[k + 1], smask, tmp + k // 2))


RING = 131072
FLAG = RING + 30720

def gen_k2(A, name="k2_kernel", kidx=0, prio=(10, 14)):
    VT = (112, 113, 114)
    kernel_begin(A, name)
    Lend = A.label("k2end")
    Laux = A.label("k2aux")
    A("s_cmp_ge_u32 s2, 256")
    A("s_cbranch_scc1 %s" % Lend)
    pad_begin(A, "k2")
    A("s_load_dwordx2 s[8:9], s[0:1], 64")
    A("s_load_dwordx4 s[4:7], s[0:1], 32")
    A("s_load_dwordx2 s[56:57], s[0:1], 0")
    A("s_load_dwordx2 s[58:59], s[0:1], 16")
    A("s_load_dwordx2 s[10:11], s[0:1], 48")
    A("v_and_b32 v1, 63, v0")
    A("v_lshrrev_b32 v8, 6, v0")
    A("s_lshr_b32 s25, s2, 5" if BADMAP else "s_and_b32 s25, s2, 7")
    A("v_readfirstlane_b32 s24, v8")
    A("s_and_b32 s26, s2, 31" if BADMAP else "s_lshr_b32 s26, s2, 3")
    A("s_lshl_b32 s27, s25, 2")
    A("s_and_b32 s28, s26, 3")
    A("s_add_u32 s27, s27, s28")
    A("s_lshr_b32 s28, s26, 2")
    A("s_waitcnt lgkmcnt(0)")
    srd(A, 20, 8, WS_BYTES)
    srd(A, 12, 4, W1_BYTES)
    srd(A, 16, 6, W2_BYTES)
    srd(A, 60, 56, X_BYTES)
    srd(A, 64, 58, WO_BYTES)
    srd(A, 68, 10, X_BYTES)
    A("s_cmp_ge_u32 s24, 8")
    A("s_cbranch_scc1 %s" % Laux)
    A("s_lshl_b32 s29, s28, 3")
    A("s_add_u32 s29, s29, s24")
    A("v_lshlrev_b32 v10, 4, v1")
    A("s_lshl_b32 s30, s27, 16")
    A("s_lshl_b32 s31, s29, 10")
    A("s_add_u32 s30, s30, s31")
    A("s_add_u32 s30, s30, 0x%x" % QF_OFF)
    A.vmem("buffer_load_dwordx4 %s, v10, s[20:23], s30 offen" % vr(Q, 4), "q")
    stamp(A, kidx, 0, vt=VT)
    A("s_setprio %d" % ATTPRIO[0])
    A("s_mov_b32 s40, 0x0000ffff")
    A("s_mov_b32 s41, 0x0000ffff")
    A("v_lshrrev_b32 v8, 5, v1")
    A("v_lshlrev_b32 v11, 8, v8")
    A("v_and_b32 v8, 15, v1")
    A("v_lshl_add_u32 v11, v8, 4, v11")
    A("v_add_u32 v11, 1024, v11")
    if ZROWS:
        A("v_and_b32 v8, 27, v1")
        A("v_cmp_eq_u32 vcc, 16, v8")
        A("v_mov_b32 v8, 0x3f803f80")
        A("s_nop 1")
        A("v_cndmask_b32 v96, 0, v8, vcc")
        for r in range(97, 112):
            A("v_mov_b32 v%d, v96" % r)
    else:
        for r in range(96, 112):
            A("v_mov_b32 v%d, 0x3f803f80" % r)
    for r in range(16):
        A("v_mov_b32 v%d, 0" % (O + r))
    for r in (P + 4, P + 5, P + 6, S[1] + 14, S[1] + 15):
        A("v_mov_b32 v%d, 0" % r)
    A("v_mov_b32 v2, v10")
    A("v_mov_b32 v3, v11")
    A("s_mov_b32 s44, 0")
    A("s_mov_b32 s45, 2")
    A("v_mov_b32 v12, %d" % FLAG)
    A("v_mov_b32 v13, 1")
    A.wait_vm("q")
    A("s_barrier")
    stamp(A, kidx, 1, vt=VT)
    A("ds_read_b128 %s, v2" % vr(KF[0], 4))
    A("ds_read_b128 %s, v2 offset:2048" % vr(KF[1], 4))
    A("s_mov_b64 exec, s[40:41]")
    A("ds_read_b128 %s, v3" % vr(VF[0][0], 4))
    A("ds_read_b128 %s, v3 offset:512" % vr(VF[0][1], 4))
    A("s_mov_b64 exec, -1")
    A("s_waitcnt lgkmcnt(3)")
    A(mfma(S[0], KF[0], Q, "0"))
    A("s_nop 11")
    rowmax16(A, 8, S[0])
    set_negm(A, 8)
    A("s_nop 1")
    A(mfma(S[0], KF[0], Q, NEGM))
    A("s_nop 11")
    if NOATT:
        A("s_mov_b64 exec, 1")
        A("ds_add_u32 v12, v13 offset:4")
        A("ds_add_u32 v12, v13 offset:36")
        A("ds_add_u32 v12, v13 offset:40")
        A("s_endpgm")
    Lloop = A.label("attloop")
    Ldone = A.label("attdone")
    A(".p2align 6")
    A("%s:" % Lloop)
    for i in range(4):
        att_tile(A, i)
    A("v_add_u32 v2, 0x2000, v2")
    A("v_add_u32 v3, 0x2000, v3")
    A("s_add_u32 s44, s44, 1")
    A("s_cmp_lg_u32 s44, s45")
    A("s_cbranch_scc1 %s" % Lloop)
    def signal(off=4):
        A("s_mov_b64 exec, 1")
        A("ds_add_u32 v12, v13 offset:%d" % off)
        A("s_mov_b64 exec, -1")
    def kvw(v):
        return lambda: lds_wait(A, 12, 0, v, 14, 46)
    evs = {2: [lambda: lds_wait(A, 12, 20, 4, 14, 46)], 4: [signal], 7: [kvw(1)], 11: [kvw(2)], 12: [lambda: signal(36)]}
    evs.setdefault(prio[0], []).append(lambda: A("s_setprio %d" % ATTPRIO[1]))
    evs.setdefault(prio[1], []).append(lambda: A("s_setprio %d" % ATTPRIO[2]))
    keys = sorted(evs)
    ev = [(k, (lambda fs: (lambda: [f() for f in fs]))(evs[k]), (keys + [16])[i + 1]) for i, k in enumerate(keys)]
    for at, code, nxt in ev:
        Ln = A.label("attev")
        A("s_cmp_lg_u32 s44, %d" % at)
        A("s_cbranch_scc1 %s" % Ln)
        code()
        A("s_mov_b32 s45, %d" % nxt)
        A("s_branch %s" % Lloop)
        A("%s:" % Ln)
    A(C(P + 7, S[1] + 14))
    A("s_nop 1")
    A(mfma(O, VF[1][1], P + 4, O))
    signal(40)
    stamp(A, kidx, 2, vt=VT)
    Lok = A.label("attok")
    A("s_nop 11")
    A("v_mul_f32 v8, 0, v%d" % O)
    for r in range(1, 8):
        A("v_fma_f32 v8, v%d, 0, v8" % (O + r))
    A("s_mov_b32 s45, 0x5f800000")
    A("v_cmp_u_f32 vcc, v8, v8")
    A("v_cmp_ngt_f32 s[46:47], s45, v%d" % (O + 8))
    A("s_nop 1")
    A("s_or_b64 s[46:47], s[46:47], vcc")
    A("s_cbranch_scc0 %s" % Lok)
    Lf1 = A.label("attf1")
    Lf2 = A.label("attf2")
    A("s_lshl_b32 s31, s27, 17")
    A("s_add_u32 s31, s31, 0x%x" % KV_OFF)
    A("s_mov_b32 s32, s31")
    A("s_mov_b32 s44, 64")
    A("v_mov_b32 v8, 0xff800000")
    A("%s:" % Lf1)
    A("buffer_load_dwordx4 %s, v10, s[20:23], s32 offen" % vr(KF[0], 4))
    A("s_add_u32 s32, s32, 2048")
    A("s_waitcnt vmcnt(0)")
    A(mfma(S[0], KF[0], Q, "0"))
    A("s_nop 11")
    rowmax16(A, 8, S[0], init=8)
    A("s_sub_u32 s44, s44, 1")
    A("s_cmp_lg_u32 s44, 0")
    A("s_cbranch_scc1 %s" % Lf1)
    set_negm(A, 8)
    for r in range(16):
        A("v_mov_b32 v%d, 0" % (O + r))
    A("s_mov_b32 s32, s31")
    A("s_mov_b32 s44, 64")
    A("%s:" % Lf2)
    A("buffer_load_dwordx4 %s, v10, s[20:23], s32 offen" % vr(KF[0], 4))
    A("s_mov_b64 exec, s[40:41]")
    A("buffer_load_dwordx4 %s, v11, s[20:23], s32 offen" % vr(VF[0][0], 4))
    A("buffer_load_dwordx4 %s, v11, s[20:23], s32 offen offset:512" % vr(VF[0][1], 4))
    A("s_mov_b64 exec, -1")
    A("s_add_u32 s32, s32, 2048")
    A("s_waitcnt vmcnt(0)")
    A(mfma(S[0], KF[0], Q, NEGM))
    A("s_nop 11")
    for r in range(16):
        A(E(S[0] + r))
    A("s_nop 0")
    for i in range(8):
        A(C(P + i, S[0] + 2 * i))
    A("s_nop 1")
    A(mfma(O, VF[0][0], P, O))
    A(mfma(O, VF[0][1], P + 4, O))
    A("s_sub_u32 s44, s44, 1")
    A("s_cmp_lg_u32 s44, 0")
    A("s_cbranch_scc1 %s" % Lf2)
    A("s_nop 11")
    A("%s:" % Lok)
    A("v_rcp_f32 v8, v%d" % (O + 8))
    A("s_lshl_b32 s30, s29, 15")
    A("s_lshl_b32 s31, s27, 10")
    A("s_add_u32 s30, s30, s31")
    A("s_add_u32 s30, s30, 0x%x" % OF_OFF)
    for r in range(8):
        A("v_mul_f32 v%d, v%d, v8" % (O + r, O + r))
    for i in range(4):
        A(C(P + i, O + 2 * i))
    pad_end(A, "k2a")
    A("buffer_store_dwordx4 %s, v10, s[20:23], s30 offen sc0 sc1" % vr(P, 4))
    if asmlib.STAMP:
        A("s_waitcnt vmcnt(0)")
    stamp(A, kidx, 3, vt=VT)
    pad_end(A, "k2")
    A("%s:" % Lend)
    A("s_endpgm")

    A("%s:" % Laux)
    VT = (14, 15, 13)
    A.vm = []
    A("s_setprio 3")
    A("s_sub_u32 s29, s24, 8")
    A("v_lshlrev_b32 v2, 4, v1")
    A("s_lshl_b32 s31, s27, 17")
    A("s_add_u32 s31, s31, 0x%x" % KV_OFF)
    A("s_lshl_b32 s32, s29, 10")
    def kvb(lo, hi, tag):
        for i in range(lo, hi):
            A("s_add_u32 m0, s32, %d" % (i * 4096))
            A("s_add_u32 s34, m0, s31")
            A.vmem("buffer_load_dwordx4 v2, s[20:23], s34 offen lds", tag)
    kvb(0, 5, "kv")
    stamp(A, kidx, 0, vt=VT)
    A("v_mov_b32 v10, %d" % FLAG)
    A("v_mov_b32 v11, 0")
    A("v_mov_b32 v12, 1")
    A("s_lshr_b32 s46, s29, 1")
    A("s_and_b32 s47, s29, 1")

    def region(dst, a, b):
        A("s_mul_i32 s%d, %s, 15360" % (dst, a))
        A("s_add_u32 s%d, s%d, %d" % (dst, dst, RING))
        A("s_lshl_b32 s49, %s, 14" % a)
        A("s_cmp_eq_u32 %s, 0" % b)
        A("s_cselect_b32 s%d, s49, s%d" % (dst, dst))

    def lds_inc(off):
        A("s_mov_b64 exec, 1")
        A("ds_add_u32 v10, v12 offset:%d" % off)
        A("s_mov_b64 exec, -1")

    def f2_setup():
        region(30, "s47", "s46")
        gemm_addr(A, 1024, "d", "s30", "s46")
        A("s_mul_i32 s33, s29, %d" % (22 * 16 * 1024))
        A("s_lshl_b32 s34, s28, 7")
        A("s_add_u32 s33, s33, s34")
        lds_wait(A, 10, 4, 8, 13, 42)
        lds_wait(A, 10, 28, 3, 13, 42)
        G2.pre(a=False)
    G2 = Gemm(A, 22, 7, 8, "d", 1024, 20, 16, 31, 32, 33, "s30", 34, aflag=" sc0 sc1")
    A("s_lshl_b32 s55, s27, 8")
    A("s_add_u32 s55, s55, 0x%x" % CNT_OFF)
    A("s_and_b32 s40, s26, 3")
    A("s_lshl_b32 s40, s40, 1")
    A("s_lshl_b32 s38, s27, 16")
    A("s_add_u32 s38, s38, 0x%x" % XN_OFF)

    def xn_block(sidx, tag):
        A("s_lshr_b32 s43, %s, 1" % sidx)
        A("s_add_u32 s43, s43, s40")
        A("s_and_b32 s43, s43, 7")
        A("s_lshl_b32 s43, s43, 12")
        A("s_and_b32 s44, %s, 1" % sidx)
        A("s_lshl_b32 s44, s44, 15")
        A("s_add_u32 s43, s43, s44")
        A("s_lshl_b32 s44, %s, 12" % sidx)
        A("s_add_u32 m0, s44, 65536")
        A("s_add_u32 s43, s43, s38")
        for u in range(4):
            A.vmem("buffer_load_dwordx4 v2, s[20:23], s43 offen offset:%d lds" % (u * 1024), tag)
    Lw3 = A.label("aux3")
    Lf2 = A.label("auxf2")
    A("s_cmp_eq_u32 s29, 3")
    A("s_cbranch_scc1 %s" % Lw3)
    A("s_mul_i32 s30, s29, 10240")
    A("s_add_u32 s30, s30, %d" % RING)
    A("s_mul_i32 s39, s28, 3")
    A("s_add_u32 s39, s39, s29")
    gemm_addr(A, 2752, "x", "s30", None)
    A("v_add_u32 v9, 65536, v2")
    A("s_lshl_b32 s33, s39, 7")
    G1 = Gemm(A, 32, 5, 0, "x", 2752, 20, 12, 31, 32, 33, "s30", 34, rot="s40", alds=True)
    A.wait_vm("kv")
    A("s_barrier")
    stamp(A, kidx, 1, vt=VT)
    kvb(5, 16, "xn1")
    if not NOFFN:
        xn_block("s29", "xn1")
        G1.pre(a=False)
    A.wait_vm("xn1")
    lds_inc(20)
    if NOFFN:
        A("s_endpgm")
    A("s_add_u32 s41, s29, 4")
    Lnof1 = A.label("nof1")
    Lf1sig = A.label("f1sig")
    A("s_cmp_ge_u32 s39, 22")
    A("s_cbranch_scc1 %s" % Lnof1)
    lds_wait(A, 10, 20, 4, 13, 42)
    A("s_setprio %d" % AUXPRIO)
    stamp(A, kidx, 2, vt=VT)

    def f1hook(s):
        if s < 4:
            xn_block("s41", "xn2")
            A("s_add_u32 s41, s41, 3")
        if s == 6:
            A.wait_vm("xn2")
            lds_inc(32)
        if s == 7:
            lds_wait(A, 10, 32, 3, 13, 42)
        if s == 16:
            lds_inc(24)
    G1.loop(f1hook)
    A("s_setprio 3")
    stamp(A, kidx, 3, vt=VT)
    A("s_mul_i32 s31, s27, %d" % (2 * HF_MB))
    A("s_lshl_b32 s32, s39, 12")
    A("s_add_u32 s31, s31, s32")
    A("s_add_u32 s31, s31, 0x%x" % HF_OFF)
    A("s_add_u32 s32, s31, %d" % HF_MB)
    A("s_nop 7")
    for b in range(2):
        for a in range(2):
            d = ACC + (b * 2 + a) * 16
            o = AF + (b * 2 + a) * 8
            for i in range(8):
                A(C(o + i, d + 2 * i))
            for i in range(8):
                A("v_pk_max_i16 v%d, v%d, 0" % (o + i, o + i))
            for j in range(2):
                A("buffer_store_dwordx4 %s, v2, s[20:23], s%d offen offset:%d sc0 sc1" % (vr(o + 4 * j, 4), 31 + a, (2 * b + j) * 1024))
    A("s_branch %s" % Lf1sig)
    A("%s:" % Lnof1)
    for t in range(4):
        xn_block("s41", "xn2")
        A("s_add_u32 s41, s41, 3")
    A("s_waitcnt vmcnt(0)")
    lds_inc(32)
    lds_inc(24)
    A("%s:" % Lf1sig)
    lds_inc(28)
    A.vm = ["h"]
    f2_setup()
    A.wait_vm("h")
    A("s_mov_b64 exec, 1")
    A("ds_add_rtn_u32 v13, v10, v12 offset:8")
    A("s_waitcnt lgkmcnt(0)")
    A("v_readfirstlane_b32 s42, v13")
    A("s_lshl_b32 s43, s28, 2")
    A("v_mov_b32 v13, s43")
    Lnp = A.label("nopub")
    A("s_cmp_lg_u32 s42, 2")
    A("s_cbranch_scc1 %s" % Lnp)
    A("buffer_store_dword v12, v13, s[20:23], s55 offen sc0 sc1")
    A("%s:" % Lnp)
    A("s_mov_b64 exec, -1")
    stamp(A, kidx, 4, vt=VT)
    A("s_cmp_lg_u32 s29, 0")
    A("s_cbranch_scc1 %s" % Lf2)
    A("v_and_b32 v13, 7, v1")
    A("v_lshlrev_b32 v13, 2, v13")
    Lp = A.label("poll")
    A("s_mov_b32 s42, 0")
    A("%s:" % Lp)
    A("buffer_load_dword v14, v13, s[20:23], s55 offen sc0 sc1")
    A("s_add_u32 s42, s42, 1")
    A("s_waitcnt vmcnt(0)")
    A("v_cmp_ne_u32 vcc, 1, v14")
    A("s_nop 4")
    A("s_cbranch_vccz %s_d" % Lp)
    A("s_sleep 1")
    A("s_cmp_lt_u32 s42, 0x40000")
    A("s_cbranch_scc1 %s" % Lp)
    A("%s_d:" % Lp)
    A("ds_write_b32 v10, v12 offset:12")
    A("s_branch %s" % Lf2)
    A("%s:" % Lw3)
    A("v_lshlrev_b32 v13, 2, v1")
    A("v_add_u32 v13, v10, v13")
    A("ds_write_b32 v13, v11")
    A.vm = ["kv"]
    A.wait_vm("kv", extra="lgkmcnt(0)")
    A("s_barrier")
    stamp(A, kidx, 1, vt=VT)
    kvb(5, 16, "xn1")
    if not NOFFN:
        xn_block("s29", "xn1")
    A.wait_vm("xn1")
    lds_inc(20)
    A("s_mov_b32 s32, %d" % (64 * 1024))

    def kvrun(end, cnt, val):
        Lk = A.label("kvl")
        A("%s:" % Lk)
        A("s_mov_b32 m0, s32")
        A("s_add_u32 s34, s32, s31")
        A("s_add_u32 s32, s32, 4096")
        for u in range(4):
            A("buffer_load_dwordx4 v2, s[20:23], s34 offen offset:%d lds" % (u * 1024))
        A("s_cmp_lg_u32 s32, %d" % (end * 1024))
        A("s_cbranch_scc1 %s" % Lk)
        A("v_mov_b32 v13, %d" % val)
        A("s_waitcnt vmcnt(%d)" % cnt)
        A("ds_write_b32 v10, v13")
    stamp(A, kidx, 2, vt=VT)
    if not NOFFN:
        lds_wait(A, 10, 24, 3, 13, 42)
    kvrun(96, 0, 1)
    stamp(A, kidx, 3, vt=VT)
    if (TOUCH & 1) and not NOFFN:
        A("v_lshlrev_b32 v9, 7, v1")
        A("s_lshl_b32 s35, s26, 13")
        for i in range(6):
            A("s_add_u32 s36, s35, %d" % (i * 262144))
            A("buffer_load_dword v%d, v9, s[16:19], s36 offen" % (16 + i))
            A("s_waitcnt vmcnt(1)")
    if not NOFFN:
        lds_wait(A, 10, 28, 3, 13, 42)
    kvrun(128, 0, 2)
    stamp(A, kidx, 4, vt=VT)
    if NOFFN:
        A("s_endpgm")
    A.vm = []
    f2_setup()
    A("%s:" % Lf2)
    A("s_xor_b32 s50, s47, 1")
    A("s_xor_b32 s51, s46, 1")
    region(52, "s50", "s46")
    region(53, "s47", "s51")
    region(54, "s50", "s51")
    A("s_mul_i32 s31, s27, %d" % (2 * HF_MB))
    A("s_add_u32 s31, s31, 0x%x" % HF_OFF)
    A("s_lshl_b32 s49, s28, 2")
    A("s_add_u32 s49, s49, s29")
    A("s_mul_i32 s49, s49, %d" % (44 * 128))
    A("s_add_u32 s49, s49, s31")
    A("s_mul_i32 s32, s29, %d" % (22 * 1024))
    A("s_add_u32 s31, s31, s32")
    A("s_mul_i32 s38, s47, %d" % HF_MB)
    A("s_add_u32 s31, s31, s38")
    A("s_lshl_b32 s38, s38, 1")
    A("s_sub_u32 s32, %d, s38" % HF_MB)
    A("v_min_u32 v9, 43, v1")
    A("v_lshlrev_b32 v9, 7, v9")
    lds_wait(A, 10, 12, 1, 13, 42)
    stamp(A, kidx, 5, vt=VT)
    if TOUCH & 2:
        A.vmem("buffer_load_dword v13, v9, s[20:23], s49 offen sc0 sc1", "t")
    G2.pre(w=False)
    A("s_setprio %d" % AUXPRIO)
    G2.loop()
    A("s_setprio 3")
    stamp(A, kidx, 6, vt=VT)
    A("v_add_u32 v6, s30, v2")
    A("v_add_u32 v7, s52, v2")
    A("v_add_u32 v8, s53, v2")
    A("v_add_u32 v9, s54, v2")
    A("s_nop 7")
    for j in (1, 2, 3):
        for g in range(4):
            A("ds_write_b128 v6, %s offset:%d" % (vr(ACC + j * 16 + 4 * g, 4), (j - 1) * 4096 + g * 1024))
    A("s_waitcnt lgkmcnt(0)")
    A("s_mov_b64 exec, 1")
    A("ds_add_u32 v10, v12 offset:16")
    A("s_mov_b64 exec, -1")
    lds_wait(A, 10, 16, 4, 13, 42)
    for j in (1, 2, 3):
        for g in range(4):
            A("ds_read_b128 %s, v%d offset:%d" % (vr(ACC + j * 16 + 4 * g, 4), 6 + j, (j - 1) * 4096 + g * 1024))
    A("s_lshl_b32 s48, s29, 14")
    A("s_add_u32 s48, s48, 32768")
    A("s_sub_u32 s49, s48, s30")
    A("v_add_u32 v4, s49, v4")
    A("v_add_u32 v5, s49, v5")
    A("s_lshl_b32 s33, s29, 17")
    A("s_lshl_b32 s34, s28, 7")
    A("s_add_u32 s33, s33, s34")
    A("s_lshl_b32 s31, s27, 16")
    A("s_lshl_b32 s32, s29, 13")
    A("s_add_u32 s31, s31, s32")
    A("s_add_u32 s31, s31, 0x%x" % OF_OFF)
    A("s_lshl_b32 s38, s47, 15")
    A("s_add_u32 s31, s31, s38")
    A("s_lshl_b32 s32, s38, 1")
    A("s_sub_u32 s32, 32768, s32")
    A("v_and_b32 v6, 31, v1")
    A("v_lshrrev_b32 v7, 5, v1")
    A("v_lshlrev_b32 v11, 10, v6")
    A("v_lshl_add_u32 v11, v7, 4, v11")
    A("s_lshl_b32 s45, s27, 16")
    A("s_add_u32 s45, s45, s38")
    A("s_add_u32 s45, s45, s34")
    A("s_lshl_b32 s44, s46, 6")
    A("s_add_u32 s45, s45, s44")
    lds_wait(A, 10, 36, 8, 13, 42)
    G3 = Gemm(A, 8, 8, 8, "d", 1024, 20, 64, 31, 32, 33, "s48", 34, aflag=" sc0 sc1")
    A.vm = []
    G3.pre(a=False)
    A("buffer_load_dwordx4 v[24:27], v11, s[60:63], s45 offen")
    A("buffer_load_dwordx4 v[28:31], v11, s[60:63], s45 offen offset:32")
    for r in range(16):
        A("v_add_f32 v%d, v%d, v%d" % (ACC + r, ACC + r, ACC + 16 + r))
        A("v_add_f32 v%d, v%d, v%d" % (ACC + 32 + r, ACC + 32 + r, ACC + 48 + r))
    for r in range(16):
        A("v_add_f32 v%d, v%d, v%d" % (ACC + r, ACC + r, ACC + 32 + r))
    A("s_mov_b32 s41, 0xffff0000")
    regs = list(range(ACC, ACC + 16))
    round_bf16(A, regs, 16, "s41")
    for r in regs:
        A("v_mul_f32 v%d, 0x%x, v%d" % (r + 16, f32bits(-LOG2E), r))
    for r in regs:
        A("v_exp_f32 v%d, v%d" % (r + 16, r + 16))
    for r in regs:
        A("v_add_f32 v%d, 1.0, v%d" % (r + 16, r + 16))
    for r in regs:
        A("v_rcp_f32 v%d, v%d" % (r + 16, r + 16))
    for r in regs:
        A("v_mul_f32 v%d, v%d, v%d" % (r, r, r + 16))
    for k in range(8):
        A(C(160 + k, ACC + 2 * k))
    A("s_add_u32 s36, s31, 4096")
    A("s_add_u32 s35, s31, s32")
    A("s_add_u32 s37, s36, s32")
    A("v_add_u32 v6, s48, v2")
    A("s_xor_b32 s49, s29, 1")
    A("s_lshl_b32 s49, s49, 14")
    A("v_add_u32 v7, s49, v2")
    A("s_xor_b32 s49, s29, 2")
    A("s_lshl_b32 s49, s49, 14")
    A("v_add_u32 v8, s49, v2")
    A("s_xor_b32 s49, s29, 3")
    A("s_lshl_b32 s49, s49, 14")
    A("v_add_u32 v9, s49, v2")
    A("s_waitcnt vmcnt(0)")
    stamp(A, kidx, 7, vt=VT)
    pad_end(A, "k2g")
    lds_wait(A, 10, 40, 8, 13, 42)
    stamp(A, kidx, 8, vt=VT)
    if asmlib.STAMP:
        A("s_waitcnt vmcnt(0)")
    Li = A.label("oiss")
    Lc = A.label("ochk")
    A("s_mov_b32 s50, 0")
    A("s_mov_b32 s51, 0")
    for st_ in range(8):
        A("%s_%d:" % (Li, st_))
        for a in range(2):
            A("buffer_load_dwordx4 %s, v2, s[20:23], s%d offen offset:%d sc0 sc1" % (vr(AF + (st_ * 2 + a) * 4, 4), ((31, 35), (36, 37))[st_ >> 2][a], (st_ & 3) * 1024))
    for st_ in range(1, 8):
        A("s_cmp_eq_u32 s50, %d" % st_)
        A("s_cbranch_scc1 %s_%d" % (Lc, st_))
    for st_ in range(8):
        for b in range(2):
            for j in range(2):
                A("ds_read_b64_tr_b16 %s, v%d offset:%d" % (vr(16 + 4 * b + 2 * j, 2), 4 + b, st_ * 2048 + j * 1024))
        A("%s_%d:" % (Lc, st_))
        A("s_waitcnt vmcnt(%d)" % (2 * (7 - st_)))
        f = AF + st_ * 8
        A("v_max3_u32 v13, v%d, v%d, v%d" % (f, f + 1, f + 2))
        A("v_max3_u32 v14, v%d, v%d, v%d" % (f + 3, f + 4, f + 5))
        A("v_max3_u32 v13, v13, v%d, v%d" % (f + 6, f + 7))
        A("v_max_u32 v13, v13, v14")
        A("v_cmp_eq_u32 vcc, -1, v13")
        Lg = A.label("ogo")
        A("s_add_u32 s51, s51, 1")
        A("s_mov_b32 s50, %d" % st_)
        A("s_nop 2")
        A("s_cbranch_vccz %s" % Lg)
        A("s_cmp_lt_u32 s51, 0x20000")
        A("s_cbranch_scc1 %s_%d" % (Li, st_))
        A("%s:" % Lg)
        A("s_waitcnt lgkmcnt(0)")
        for q in range(4):
            d = ACC + q * 16
            A(mfma(d, 16 + 4 * (q >> 1), f + 4 * (q & 1), "0" if st_ == 0 else d))
    stamp(A, kidx, 9, vt=VT)
    for k in range(8):
        A("v_lshlrev_b32 v%d, 16, v%d" % (32 + 2 * k, 160 + k))
        A("v_and_b32 v%d, s41, v%d" % (33 + 2 * k, 160 + k))
    for j in (1, 2, 3):
        for g in range(4):
            A("ds_write_b128 v6, %s offset:%d" % (vr(ACC + j * 16 + 4 * g, 4), j * 4096 + g * 1024))
    for k in range(8):
        A("v_lshlrev_b32 v%d, 16, v%d" % (48 + 2 * k, 24 + k))
        A("v_and_b32 v%d, s41, v%d" % (49 + 2 * k, 24 + k))
    A("s_waitcnt lgkmcnt(0)")
    A("s_barrier")
    for j in (1, 2, 3):
        for g in range(4):
            A("ds_read_b128 %s, v%d offset:%d" % (vr(ACC + j * 16 + 4 * g, 4), 6 + j, 32768 + j * 4096 + g * 1024))
    A("s_waitcnt lgkmcnt(4)")
    for r in range(16):
        A("v_add_f32 v%d, v%d, v%d" % (ACC + r, ACC + r, ACC + 16 + r))
    for r in range(16):
        A("v_add_f32 v%d, v%d, v%d" % (ACC + r, ACC + r, ACC + 32 + r))
    A("s_waitcnt lgkmcnt(0)")
    for r in range(16):
        A("v_add_f32 v%d, v%d, v%d" % (ACC + r, ACC + r, ACC + 48 + r))
    round_bf16(A, regs, 16, "s41")
    for r in range(16):
        A("v_mul_f32 v%d, v%d, v%d" % (ACC + r, ACC + r, 32 + r))
    for k in range(8):
        A(C(16 + k, ACC + 2 * k))
    A("s_nop 1")
    for k in (0, 1, 4, 5):
        A("v_permlane32_swap_b32 v%d, v%d" % (16 + k, 18 + k))
    A("s_nop 0")
    for k in range(8):
        A("v_lshlrev_b32 v%d, 16, v%d" % (32 + 2 * k, 16 + k))
        A("v_and_b32 v%d, s41, v%d" % (33 + 2 * k, 16 + k))
    for r in range(16):
        A("v_add_f32 v%d, v%d, v%d" % (32 + r, 32 + r, 48 + r))
    for k in range(8):
        A(C(16 + k, 32 + 2 * k))
    pad_end(A, "k2s")
    A("buffer_store_dwordx4 v[16:19], v11, s[68:71], s45 offen" + OUTST)
    A("buffer_store_dwordx4 v[20:23], v11, s[68:71], s45 offen offset:32" + OUTST)
    if asmlib.STAMP:
        A("s_waitcnt vmcnt(0)")
    stamp(A, kidx, 10, vt=VT)
    pad_end(A, "k2e")
    if DBGT:
        op = "min" if DBGT == 1 else "max"
        A("s_mov_b32 s79, 0x%x" % (22 << 20))
        A("buffer_load_dwordx4 v[20:23], v2, s[20:23], s79 offen")
        A("s_waitcnt vmcnt(0)")
        A("v_%s_u32 v20, v20, v21" % op)
        A("v_%s3_u32 v20, v20, v22, v23" % op)
        A("s_nop 1")
        A("v_readlane_b32 s80, v20, 0")
        for l in range(1, 64):
            A("v_readlane_b32 s81, v20, %d" % l)
            A("s_nop 3")
            A("s_%s_u32 s80, s80, s81" % op)
        asmlib.PADK = "abs"
        pad_end(A, "abs")
    A("s_endpgm")
    return 168


def gen_k3(A, name="k3_kernel", kidx=0):
    VT = (176, 177, 178)
    kernel_begin(A, name)
    Lend = A.label("k3end")
    A("s_cmp_ge_u32 s2, 256")
    A("s_cbranch_scc1 %s" % Lend)
    pad_begin(A, "k3")
    A("s_load_dwordx2 s[4:5], s[0:1], 16")
    A("s_load_dwordx2 s[6:7], s[0:1], 0")
    A("s_load_dwordx2 s[8:9], s[0:1], 64")
    A("s_load_dwordx2 s[10:11], s[0:1], 48")
    A("v_and_b32 v1, 63, v0")
    A("v_lshrrev_b32 v8, 6, v0")
    A("s_lshr_b32 s25, s2, 5" if BADMAP else "s_and_b32 s25, s2, 7")
    A("v_readfirstlane_b32 s24, v8")
    A("s_and_b32 s26, s2, 31" if BADMAP else "s_lshr_b32 s26, s2, 3")
    A("s_lshl_b32 s27, s25, 2")
    A("s_and_b32 s28, s26, 3")
    A("s_add_u32 s27, s27, s28")
    A("s_lshr_b32 s28, s26, 2")
    A("v_lshlrev_b32 v2, 4, v1")
    A("s_lshl_b32 s30, s24, 14")
    A("s_lshr_b32 s46, s24, 1")
    A("s_and_b32 s47, s24, 1")
    gemm_addr(A, 1024, "d", "s30", "s46")
    A("s_waitcnt lgkmcnt(0)")
    srd(A, 12, 6, X_BYTES)
    srd(A, 16, 4, WO_BYTES)
    srd(A, 20, 8, WS_BYTES)
    srd(A, 36, 10, X_BYTES)
    A("s_lshl_b32 s31, s27, 16")
    A("s_lshl_b32 s32, s24, 13")
    A("s_add_u32 s31, s31, s32")
    A("s_add_u32 s31, s31, 0x%x" % OF_OFF)
    A("s_lshl_b32 s48, s47, 15")
    A("s_add_u32 s31, s31, s48")
    A("s_lshl_b32 s32, s48, 1")
    A("s_sub_u32 s32, 32768, s32")
    A("s_lshl_b32 s33, s24, 17")
    A("s_lshl_b32 s34, s28, 7")
    A("s_add_u32 s33, s33, s34")
    G = Gemm(A, 8, 8, 8, "d", 1024, 20, 16, 31, 32, 33, "s30", 50)
    G.pre()
    stamp(A, kidx, 0, vt=VT)
    A("v_and_b32 v6, 31, v1")
    A("v_lshrrev_b32 v7, 5, v1")
    A("v_lshlrev_b32 v10, 10, v6")
    A("v_lshl_add_u32 v10, v7, 4, v10")
    A("s_lshl_b32 s42, s27, 16")
    A("s_add_u32 s42, s42, s48")
    A("s_lshl_b32 s43, s28, 7")
    A("s_add_u32 s42, s42, s43")
    A("s_lshl_b32 s43, s46, 6")
    A("s_add_u32 s42, s42, s43")
    A("s_lshl_b32 s44, s27, 16")
    A("s_lshl_b32 s45, s28, 13")
    A("s_add_u32 s44, s44, s45")
    A("s_lshl_b32 s45, s24, 11")
    A("s_add_u32 s44, s44, s45")
    A("s_add_u32 s44, s44, 0x%x" % G_OFF)
    A.vmem("buffer_load_dwordx4 v[160:163], v2, s[20:23], s44 offen", "g")
    A.vmem("buffer_load_dwordx4 v[164:167], v2, s[20:23], s44 offen offset:1024", "g")
    A.vmem("buffer_load_dwordx4 v[168:171], v10, s[12:15], s42 offen", "g")
    A.vmem("buffer_load_dwordx4 v[172:175], v10, s[12:15], s42 offen offset:32", "g")
    G.loop()
    stamp(A, kidx, 2, vt=VT)
    A("v_add_u32 v6, s30, v2")
    A("s_nop 10")
    for j in (1, 2, 3):
        for g in range(4):
            A("ds_write_b128 v6, %s offset:%d" % (vr(ACC + j * 16 + 4 * g, 4), j * 4096 + g * 1024))
    A("v_xor_b32 v7, 0x4000, v6")
    A("v_xor_b32 v8, 0x8000, v6")
    A("v_xor_b32 v9, 0xc000, v6")
    A("s_waitcnt lgkmcnt(0)")
    A("s_barrier")
    for j in (1, 2, 3):
        for g in range(4):
            A("ds_read_b128 %s, v%d offset:%d" % (vr(ACC + j * 16 + 4 * g, 4), 6 + j, j * 4096 + g * 1024))
    A("s_mov_b32 s41, 0xffff0000")
    A.wait_vm("g")
    for k in range(8):
        A("v_lshlrev_b32 v%d, 16, v%d" % (32 + 2 * k, 160 + k))
        A("v_and_b32 v%d, s41, v%d" % (33 + 2 * k, 160 + k))
    for k in range(8):
        A("v_lshlrev_b32 v%d, 16, v%d" % (48 + 2 * k, 168 + k))
        A("v_and_b32 v%d, s41, v%d" % (49 + 2 * k, 168 + k))
    A("s_waitcnt lgkmcnt(0)")
    for r in range(16):
        A("v_add_f32 v%d, v%d, v%d" % (ACC + r, ACC + r, ACC + 16 + r))
        A("v_add_f32 v%d, v%d, v%d" % (ACC + 32 + r, ACC + 32 + r, ACC + 48 + r))
    for r in range(16):
        A("v_add_f32 v%d, v%d, v%d" % (ACC + r, ACC + r, ACC + 32 + r))
    regs = list(range(ACC, ACC + 16))
    round_bf16(A, regs, 16, "s41")
    for r in range(16):
        A("v_mul_f32 v%d, v%d, v%d" % (ACC + r, ACC + r, 32 + r))
    for k in range(8):
        A(C(16 + k, ACC + 2 * k))
    A("s_nop 1")
    for k in (0, 1, 4, 5):
        A("v_permlane32_swap_b32 v%d, v%d" % (16 + k, 18 + k))
    A("s_nop 0")
    for k in range(8):
        A("v_lshlrev_b32 v%d, 16, v%d" % (32 + 2 * k, 16 + k))
        A("v_and_b32 v%d, s41, v%d" % (33 + 2 * k, 16 + k))
    for r in range(16):
        A("v_add_f32 v%d, v%d, v%d" % (32 + r, 32 + r, 48 + r))
    for k in range(8):
        A(C(16 + k, 32 + 2 * k))
    A("buffer_store_dwordx4 v[16:19], v10, s[36:39], s42 offen")
    A("buffer_store_dwordx4 v[20:23], v10, s[36:39], s42 offen offset:32")
    if asmlib.STAMP:
        A("s_waitcnt vmcnt(0)")
    stamp(A, kidx, 3, vt=VT)
    pad_end(A, "k3")
    A("%s:" % Lend)
    A("s_endpgm")
    return 180
```

```python
import asmlib
from asmlib import *
from layout import *

Q = 4; NEGM = 16; S = [32, 48]; P = 64; O = 72; KF = [88, 92]; VF = [[96, 100], [104, 108]]
def E(r, e64=False): return "v_exp_f32%s v%d, v%d" % ("_e64" if e64 else "", r, r)
def C(d, r): return "v_cvt_pk_bf16_f32 v%d, v%d, v%d" % (d, r, r + 1)

def att_tile(A, i):
    p = i & 1; s = S[p]; sp = S[p ^ 1]
    A(E(s, e64=True))
    A("ds_read_b128 %s, v2 offset:%d" % (vr(KF[p], 4), (i + 2) * 2048))
    A(C(P + 7, sp + 14))
    A(E(s + 1)); A(E(s + 2))
    A(mfma(O, VF[p ^ 1][1], P + 4, O))
    A(C(P, s))
    A(E(s + 3)); A("s_mov_b64 exec, s[40:41]")
    A("ds_read_b128 %s, v3 offset:%d" % (vr(VF[p ^ 1][0], 4), (i + 1) * 2048))
    A("ds_read_b128 %s, v3 offset:%d" % (vr(VF[p ^ 1][1], 4), (i + 1) * 2048 + 512))
    A("s_mov_b64 exec, -1"); A(E(s + 4))
    A(C(P + 1, s + 2))
    A(E(s + 5)); A(E(s + 6))
    A(C(P + 2, s + 4))
    A(E(s + 7)); A("s_waitcnt lgkmcnt(3)")
    A(mfma(sp, KF[p ^ 1], Q, NEGM))
    A(C(P + 3, s + 6))
    A(E(s + 8)); A(E(s + 9))
    A(E(s + 10)); A(E(s + 11))
    A(mfma(O, VF[p][0], P, O))
    A(C(P + 4, s + 8))
    A(E(s + 12)); A(E(s + 13))
    A(C(P + 5, s + 10))
    A(E(s + 14)); A(E(s + 15))
    A(C(P + 6, s + 12))


def rowmax16(A, dst, s, init=None):
    if init is None:
        A("v_max3_f32 v%d, v%d, v%d, v%d" % (dst, s, s + 1, s + 2))
        rest = list(range(3, 16))
    else:
        A("v_max3_f32 v%d, v%d, v%d, v%d" % (dst, s, s + 1, init))
        rest = list(range(2, 16))
    while len(rest) >= 2:
        A("v_max3_f32 v%d, v%d, v%d, v%d" % (dst, dst, s + rest[0], s + rest[1]))
        rest = rest[2:]
    if rest:
        A("v_max_f32 v%d, v%d, v%d" % (dst, dst, s + rest[0]))


def set_negm(A, m):
    A("v_mov_b32 v9, v%d" % m)
    A("s_nop 1")
    A("v_permlane32_swap_b32 v%d, v9" % m)
    A("s_nop 1")
    A("v_max_f32 v%d, v%d, v9" % (m, m))
    A("v_sub_f32 v%d, 0, v%d" % (NEGM, m))
    for r in range(1, 16):
        A("v_mov_b32 v%d, v%d" % (NEGM + r, NEGM))


WFB = [16, 24]
AF = 32
ACC = 96

def gemm_addr(A, rowstride, kind, s_ring, s_bswap):
    A("v_lshrrev_b32 v6, 3, v1")
    A("v_and_b32 v7, 7, v1")
    A("v_lshrrev_b32 v8, 2, v1")
    A("v_and_b32 v8, 4, v8")
    A("v_xor_b32 v7, v7, v8")
    A("v_mul_u32_u24 v3, %d, v6" % rowstride)
    A("v_lshl_add_u32 v3, v7, 4, v3")
    A("v_lshrrev_b32 v6, 5, v1")
    A("v_lshlrev_b32 v4, %d, v6" % (10 if kind == "x" else 9))
    A("v_bfe_u32 v7, v1, 2, 2")
    A("v_lshl_add_u32 v4, v7, 7, v4")
    A("v_lshrrev_b32 v7, 1, v7")
    if s_bswap:
        A("v_xor_b32 v7, %s, v7" % s_bswap)
    A("v_lshl_add_u32 v4, v7, 6, v4")
    A("v_bfe_u32 v7, v1, 4, 1")
    A("v_lshl_add_u32 v4, v7, 5, v4")
    A("v_and_b32 v7, 3, v1")
    A("v_lshl_add_u32 v4, v7, 3, v4")
    A("v_add_u32 v4, %s, v4" % s_ring)
    A("v_xor_b32 v5, 64, v4")


class Gemm:
    def __init__(self, A, nsteps, DW, DA, kind, rowstride, srdA, srdW, sA0, sA1, sW, s_ring, st, aflag="", rot=None, alds=False):
        self.__dict__.update(locals())
        self.jstep = 512 if kind == "x" else 1024

    def grp(self, dst, s, unit, base):
        A = self.A
        if self.rot is None:
            A("s_add_u32 s%d, s%d, %d" % (dst, base, (s // 4) * unit))
        else:
            A("s_add_u32 s%d, %s, %d" % (dst, self.rot, s // 4))
            A("s_and_b32 s%d, s%d, 7" % (dst, dst))
            A("s_mul_i32 s%d, s%d, %d" % (dst, dst, unit))
            A("s_add_u32 s%d, s%d, s%d" % (dst, dst, base))

    def issue_w(self, s, parts=(0, 1)):
        A = self.A
        if F1REP & 8:
            return
        for hh in parts:
            if s % 4 == 0 and hh == 0:
                self.grp(self.st + 1, s, 64 * self.rowstride, self.sW)
            A("s_add_u32 m0, %s, %d" % (self.s_ring, (s % self.DW) * 2048 + hh * 1024))
            A("s_add_u32 s%d, s%d, %d" % (self.st, self.st + 1, (16 * (s % 4) + 8 * hh) * self.rowstride))
            A.vmem("buffer_load_dwordx4 v3, %s, s%d offen lds" % (sr(self.srdW, 4), self.st), "w%d" % s)

    def issue_a(self, s, parts=(0, 1)):
        A = self.A
        for a in parts:
            if s % 4 == 0 and a == 0:
                self.grp(self.st + 2, s, 4096, self.sA0)
                A("s_add_u32 s%d, s%d, s%d" % (self.st + 3, self.st + 2, self.sA1))
            A.vmem("buffer_load_dwordx4 %s, v2, %s, s%d offen offset:%d%s" % (
                vr(AF + ((s % self.DA) * 2 + a) * 4, 4), sr(self.srdA, 4), self.st + 2 + a, (s % 4) * 1024, self.aflag), "a%d" % s)

    def pre(self, a=True, w=True):
        for s in range(max(self.DW, self.DA)):
            if a and s < self.DA and s < self.nsteps:
                self.issue_a(s)
            if w and s < self.DW and s < self.nsteps:
                self.issue_w(s)

    def reads(self, s, part):
        A = self.A
        if F1REP & 4:
            return
        if self.alds:
            A("ds_read_b128 %s, v9 offset:%d" % (vr(AF + ((s & 1) * 2 + part) * 4, 4), (s // 4) * 8192 + part * 4096 + (s % 4) * 1024))
        for j in range(2):
            A("ds_read_b64_tr_b16 %s, v%d offset:%d" % (vr(WFB[s & 1] + 4 * part + 2 * j, 2), 4 + part, (s % self.DW) * 2048 + j * self.jstep))

    def loop(self, hook=None):
        A = self.A
        n = self.nsteps
        DA = 2 if self.alds else self.DA
        A.wait_vm("w0")
        self.reads(0, 0)
        self.reads(0, 1)
        for s in range(n):
            A.wait_vm("a%d" % s, extra="lgkmcnt(0)")
            if hook:
                hook(s)
            for q in range(4):
                b, a = q >> 1, q & 1
                d = ACC + q * 16
                if not (F1REP & 2):
                    A(mfma(d, WFB[s & 1] + 4 * b, AF + ((s % DA) * 2 + a) * 4, "0" if s == 0 else d))
                if q < 2:
                    if s + 1 < n:
                        if q == 0:
                            A.wait_vm("w%d" % (s + 1))
                        self.reads(s + 1, q)
                    if not self.alds and s >= 1 and s - 1 + self.DA < n:
                        self.issue_a(s - 1 + self.DA, (q,))
                elif s + self.DW < n:
                    self.issue_w(s + self.DW, (q - 2,))


def lds_wait(A, vaddr, off, val, vt, st, sleep=1):
    L = A.label("lw")
    A("s_mov_b32 s%d, 0" % (st + 1))
    A("%s:" % L)
    A("ds_read_b32 v%d, v%d offset:%d" % (vt, vaddr, off))
    A("s_add_u32 s%d, s%d, 1" % (st + 1, st + 1))
    A("s_waitcnt lgkmcnt(0)")
    A("v_readfirstlane_b32 s%d, v%d" % (st, vt))
    A("s_cmp_ge_u32 s%d, %s" % (st, val))
    A("s_cbranch_scc1 %s_d" % L)
    A("s_sleep %d" % sleep)
    A("s_cmp_lt_u32 s%d, 0x200000" % (st + 1))
    A("s_cbranch_scc1 %s" % L)
    A("%s_d:" % L)


def round_bf16(A, regs, tmp, smask):
    for k in range(0, len(regs), 2):
        A("v_cvt_pk_bf16_f32 v%d, v%d, v%d" % (tmp + k // 2, regs[k], regs[k + 1]))
    for k in range(0, len(regs), 2):
        A("v_lshlrev_b32 v%d, 16, v%d" % (regs[k], tmp + k // 2))
        A("v_and_b32 v%d, %s, v%d" % (regs[k + 1], smask, tmp + k // 2))


RING = 131072
FLAG = RING + 30720

def gen_k2(A, name="k2_kernel", kidx=0, prio=PRIOT):
    VT = (112, 113, 114)
    kernel_begin(A, name)
    Lend = A.label("k2end")
    Laux = A.label("k2aux")
    A("s_cmp_ge_u32 s2, 256")
    A("s_cbranch_scc1 %s" % Lend)
    pad_begin(A, "k2")
    A("s_load_dwordx2 s[8:9], s[0:1], 64")
    A("s_load_dwordx4 s[4:7], s[0:1], 32")
    A("s_load_dwordx2 s[56:57], s[0:1], 0")
    A("s_load_dwordx2 s[58:59], s[0:1], 16")
    A("s_load_dwordx2 s[10:11], s[0:1], 48")
    A("v_and_b32 v1, 63, v0")
    A("v_lshrrev_b32 v8, 6, v0")
    A("s_lshr_b32 s25, s2, 5" if BADMAP else "s_and_b32 s25, s2, 7")
    A("v_readfirstlane_b32 s24, v8")
    A("s_and_b32 s26, s2, 31" if BADMAP else "s_lshr_b32 s26, s2, 3")
    A("s_lshl_b32 s27, s25, 2")
    A("s_and_b32 s28, s26, 3")
    A("s_add_u32 s27, s27, s28")
    A("s_lshr_b32 s28, s26, 2")
    A("s_waitcnt lgkmcnt(0)")
    srd(A, 20, 8, WS_BYTES)
    srd(A, 12, 4, W1_BYTES)
    srd(A, 16, 6, W2_BYTES)
    srd(A, 60, 56, X_BYTES)
    srd(A, 64, 58, WO_BYTES)
    srd(A, 68, 10, X_BYTES)
    A("s_cmp_lt_u32 s24, 4")
    A("s_cbranch_scc1 %s" % Laux)
    A("s_lshl_b32 s29, s28, 3")
    A("s_add_u32 s29, s29, s24")
    A("s_sub_u32 s29, s29, 4")
    A("v_lshlrev_b32 v10, 4, v1")
    A("s_lshl_b32 s30, s27, 16")
    A("s_lshl_b32 s31, s29, 10")
    A("s_add_u32 s30, s30, s31")
    A("s_add_u32 s30, s30, 0x%x" % QF_OFF)
    A.vmem("buffer_load_dwordx4 %s, v10, s[20:23], s30 offen" % vr(Q, 4), "q")
    stamp(A, kidx, 0, vt=VT)
    A("s_setprio %d" % ATTPRIO[0])
    A("s_mov_b32 s40, 0x0000ffff")
    A("s_mov_b32 s41, 0x0000ffff")
    A("v_lshrrev_b32 v8, 5, v1")
    A("v_lshlrev_b32 v11, 8, v8")
    A("v_and_b32 v8, 15, v1")
    A("v_lshl_add_u32 v11, v8, 4, v11")
    A("v_add_u32 v11, 1024, v11")
    if ZROWS:
        A("v_and_b32 v8, 27, v1")
        A("v_cmp_eq_u32 vcc, 16, v8")
        A("v_mov_b32 v8, 0x3f803f80")
        A("s_nop 1")
        A("v_cndmask_b32 v96, 0, v8, vcc")
        for r in range(97, 112):
            A("v_mov_b32 v%d, v96" % r)
    else:
        for r in range(96, 112):
            A("v_mov_b32 v%d, 0x3f803f80" % r)
    for r in range(16):
        A("v_mov_b32 v%d, 0" % (O + r))
    for r in (P + 4, P + 5, P + 6, S[1] + 14, S[1] + 15):
        A("v_mov_b32 v%d, 0" % r)
    A("v_mov_b32 v2, v10")
    A("v_mov_b32 v3, v11")
    A("s_mov_b32 s44, 0")
    A("s_mov_b32 s45, 2")
    A("v_mov_b32 v12, %d" % FLAG)
    A("v_mov_b32 v13, 1")
    A.wait_vm("q")
    A("s_barrier")
    stamp(A, kidx, 1, vt=VT)
    A("ds_read_b128 %s, v2" % vr(KF[0], 4))
    A("ds_read_b128 %s, v2 offset:2048" % vr(KF[1], 4))
    A("s_mov_b64 exec, s[40:41]")
    A("ds_read_b128 %s, v3" % vr(VF[0][0], 4))
    A("ds_read_b128 %s, v3 offset:512" % vr(VF[0][1], 4))
    A("s_mov_b64 exec, -1")
    A("s_waitcnt lgkmcnt(3)")
    A(mfma(S[0], KF[0], Q, "0"))
    A("s_nop 11")
    rowmax16(A, 8, S[0])
    set_negm(A, 8)
    A("s_nop 1")
    A(mfma(S[0], KF[0], Q, NEGM))
    A("s_nop 11")
    if NOATT:
        A("s_mov_b64 exec, 1")
        A("ds_add_u32 v12, v13 offset:4")
        A("ds_add_u32 v12, v13 offset:36")
        A("ds_add_u32 v12, v13 offset:40")
        A("s_endpgm")
    Lloop = A.label("attloop")
    Ldone = A.label("attdone")
    A(".p2align 6")
    A("%s:" % Lloop)
    for i in range(4):
        att_tile(A, i)
    A("v_add_u32 v2, 0x2000, v2")
    A("v_add_u32 v3, 0x2000, v3")
    A("s_add_u32 s44, s44, 1")
    A("s_cmp_lg_u32 s44, s45")
    A("s_cbranch_scc1 %s" % Lloop)
    def signal(off=4):
        A("s_mov_b64 exec, 1")
        A("ds_add_u32 v12, v13 offset:%d" % off)
        A("s_mov_b64 exec, -1")
    def kvw(v):
        return lambda: lds_wait(A, 12, 0, v, 14, 46)
    evs = {2: [lambda: lds_wait(A, 12, 20, 4, 14, 46)], 4: [signal], 7: [kvw(1)], 11: [kvw(2)], 12: [lambda: signal(36)]}
    for i_, t_ in enumerate(prio):
        evs.setdefault(t_, []).insert(0, (lambda v: (lambda: A("s_setprio %d" % v)))(ATTPRIO[i_ + 1]))
    keys = sorted(evs)
    ev = [(k, (lambda fs: (lambda: [f() for f in fs]))(evs[k]), (keys + [16])[i + 1]) for i, k in enumerate(keys)]
    saved_ts = []
    for at, code, nxt in ev:
        Ln = A.label("attev")
        A("s_cmp_lg_u32 s44, %d" % at)
        A("s_cbranch_scc1 %s" % Ln)
        def ts():
            if asmlib.STAMP:
                b = 48 + 4 * len(saved_ts)
                saved_ts.append(b)
                A("s_memrealtime s[%d:%d]" % (b, b + 1))
                A("s_memtime s[%d:%d]" % (b + 2, b + 3))
        ts()
        code()
        if at in (2, 7, 11):
            ts()
        A("s_mov_b32 s45, %d" % nxt)
        A("s_branch %s" % Lloop)
        A("%s:" % Ln)
    A(C(P + 7, S[1] + 14))
    A("s_nop 1")
    A(mfma(O, VF[1][1], P + 4, O))
    signal(40)
    stamp(A, kidx, 2, vt=VT)
    Lok = A.label("attok")
    A("s_nop 11")
    A("v_mul_f32 v8, 0, v%d" % O)
    for r in range(1, 8):
        A("v_fma_f32 v8, v%d, 0, v8" % (O + r))
    A("s_mov_b32 s45, 0x5f800000")
    A("v_cmp_u_f32 vcc, v8, v8")
    A("v_cmp_ngt_f32 s[46:47], s45, v%d" % (O + 8))
    A("s_nop 1")
    A("s_or_b64 s[46:47], s[46:47], vcc")
    A("s_cbranch_scc0 %s" % Lok)
    Lf1 = A.label("attf1")
    Lf2 = A.label("attf2")
    A("s_waitcnt lgkmcnt(0)")
    A("s_lshl_b32 s31, s27, 17")
    A("s_add_u32 s31, s31, 0x%x" % KV_OFF)
    A("s_mov_b32 s32, s31")
    A("s_mov_b32 s44, 64")
    A("v_mov_b32 v8, 0xff800000")
    A("%s:" % Lf1)
    A("buffer_load_dwordx4 %s, v10, s[20:23], s32 offen" % vr(KF[0], 4))
    A("s_add_u32 s32, s32, 2048")
    A("s_waitcnt vmcnt(0)")
    A(mfma(S[0], KF[0], Q, "0"))
    A("s_nop 11")
    rowmax16(A, 8, S[0], init=8)
    A("s_sub_u32 s44, s44, 1")
    A("s_cmp_lg_u32 s44, 0")
    A("s_cbranch_scc1 %s" % Lf1)
    set_negm(A, 8)
    for r in range(16):
        A("v_mov_b32 v%d, 0" % (O + r))
    A("s_mov_b32 s32, s31")
    A("s_mov_b32 s44, 64")
    A("%s:" % Lf2)
    A("buffer_load_dwordx4 %s, v10, s[20:23], s32 offen" % vr(KF[0], 4))
    A("s_mov_b64 exec, s[40:41]")
    A("buffer_load_dwordx4 %s, v11, s[20:23], s32 offen" % vr(VF[0][0], 4))
    A("buffer_load_dwordx4 %s, v11, s[20:23], s32 offen offset:512" % vr(VF[0][1], 4))
    A("s_mov_b64 exec, -1")
    A("s_add_u32 s32, s32, 2048")
    A("s_waitcnt vmcnt(0)")
    A(mfma(S[0], KF[0], Q, NEGM))
    A("s_nop 11")
    for r in range(16):
        A(E(S[0] + r))
    A("s_nop 0")
    for i in range(8):
        A(C(P + i, S[0] + 2 * i))
    A("s_nop 1")
    A(mfma(O, VF[0][0], P, O))
    A(mfma(O, VF[0][1], P + 4, O))
    A("s_sub_u32 s44, s44, 1")
    A("s_cmp_lg_u32 s44, 0")
    A("s_cbranch_scc1 %s" % Lf2)
    A("s_nop 11")
    A("%s:" % Lok)
    A("v_rcp_f32 v8, v%d" % (O + 8))
    A("s_lshl_b32 s30, s29, 15")
    A("s_lshl_b32 s31, s27, 10")
    A("s_add_u32 s30, s30, s31")
    A("s_add_u32 s30, s30, 0x%x" % OF_OFF)
    for r in range(8):
        A("v_mul_f32 v%d, v%d, v8" % (O + r, O + r))
    for i in range(4):
        A(C(P + i, O + 2 * i))
    pad_end(A, "k2a")
    A("buffer_store_dwordx4 %s, v10, s[20:23], s30 offen sc0 sc1" % vr(P, 4))
    if asmlib.STAMP:
        A("s_waitcnt vmcnt(0)")
    stamp(A, kidx, 3, vt=VT)
    for i_, b_ in enumerate(saved_ts):
        stamp(A, kidx, 4 + i_, vt=VT, saved=b_)
    pad_end(A, "k2")
    A("%s:" % Lend)
    A("s_endpgm")

    A("%s:" % Laux)
    VT = (14, 15, 13)
    A.vm = []
    A("s_setprio 3")
    A("s_mov_b32 s29, s24")
    A("v_lshlrev_b32 v2, 4, v1")
    A("s_lshl_b32 s31, s27, 17")
    A("s_add_u32 s31, s31, 0x%x" % KV_OFF)
    A("s_lshl_b32 s32, s29, 10")
    def kvb(lo, hi, tag):
        for i in range(lo, hi):
            A("s_add_u32 m0, s32, %d" % (i * 4096))
            A("s_add_u32 s34, m0, s31")
            A.vmem("buffer_load_dwordx4 v2, s[20:23], s34 offen lds", tag)
    kvb(0, 5, "kv")
    stamp(A, kidx, 0, vt=VT)
    A("v_mov_b32 v10, %d" % FLAG)
    A("v_mov_b32 v11, 0")
    A("v_mov_b32 v12, 1")
    A("s_lshr_b32 s46, s29, 1")
    A("s_and_b32 s47, s29, 1")

    def region(dst, a, b):
        A("s_mul_i32 s%d, %s, 15360" % (dst, a))
        A("s_add_u32 s%d, s%d, %d" % (dst, dst, RING))
        A("s_lshl_b32 s49, %s, 14" % a)
        A("s_cmp_eq_u32 %s, 0" % b)
        A("s_cselect_b32 s%d, s49, s%d" % (dst, dst))

    def lds_inc(off):
        A("s_mov_b64 exec, 1")
        A("ds_add_u32 v10, v12 offset:%d" % off)
        A("s_mov_b64 exec, -1")

    def f2_setup():
        region(30, "s47", "s46")
        gemm_addr(A, 1024, "d", "s30", "s46")
        A("s_mul_i32 s33, s29, %d" % (22 * 16 * 1024))
        A("s_lshl_b32 s34, s28, 7")
        A("s_add_u32 s33, s33, s34")
        lds_wait(A, 10, 4, 8, 13, 42)
        lds_wait(A, 10, 28, 3, 13, 42)
        G2.pre(a=False)
    G2 = Gemm(A, 22, 7, 8, "d", 1024, 20, 16, 31, 32, 33, "s30", 34, aflag=" sc0 sc1")
    A("s_lshl_b32 s55, s27, 8")
    A("s_add_u32 s55, s55, 0x%x" % CNT_OFF)
    A("s_and_b32 s40, s26, 3")
    A("s_lshl_b32 s40, s40, 1")
    A("s_lshl_b32 s38, s27, 16")
    A("s_add_u32 s38, s38, 0x%x" % XN_OFF)

    def xn_block(sidx, tag):
        A("s_lshr_b32 s43, %s, 1" % sidx)
        A("s_add_u32 s43, s43, s40")
        A("s_and_b32 s43, s43, 7")
        A("s_lshl_b32 s43, s43, 12")
        A("s_and_b32 s44, %s, 1" % sidx)
        A("s_lshl_b32 s44, s44, 15")
        A("s_add_u32 s43, s43, s44")
        A("s_lshl_b32 s44, %s, 12" % sidx)
        A("s_add_u32 m0, s44, 65536")
        A("s_add_u32 s43, s43, s38")
        for u in range(4):
            A.vmem("buffer_load_dwordx4 v2, s[20:23], s43 offen offset:%d lds" % (u * 1024), tag)
    Lw3 = A.label("aux3")
    Lf2 = A.label("auxf2")
    A("s_cmp_eq_u32 s29, 3")
    A("s_cbranch_scc1 %s" % Lw3)
    A("s_mul_i32 s30, s29, 10240")
    A("s_add_u32 s30, s30, %d" % RING)
    A("s_mul_i32 s39, s28, 3")
    A("s_add_u32 s39, s39, s29")
    gemm_addr(A, 2752, "x", "s30", None)
    A("v_add_u32 v9, 65536, v2")
    A("s_lshl_b32 s33, s39, 7")
    G1 = Gemm(A, 32, 5, 0, "x", 2752, 20, 12, 31, 32, 33, "s30", 34, rot="s40", alds=True)
    A.wait_vm("kv")
    A("s_barrier")
    stamp(A, kidx, 1, vt=VT)
    kvb(5, 16, "xn1")
    if not NOFFN:
        xn_block("s29", "xn1")
        G1.pre(a=False)
    A.wait_vm("xn1")
    lds_inc(20)
    if NOFFN:
        A("s_endpgm")
    A("s_add_u32 s41, s29, 4")
    Lnof1 = A.label("nof1")
    Lf1sig = A.label("f1sig")
    A("s_cmp_ge_u32 s39, 22")
    A("s_cbranch_scc1 %s" % Lnof1)
    lds_wait(A, 10, 20, 4, 13, 42)
    A("s_setprio %d" % AUXPRIO)
    stamp(A, kidx, 2, vt=VT)

    def f1hook(s):
        if s < 4:
            xn_block("s41", "xn2")
            A("s_add_u32 s41, s41, 3")
        if s == 6:
            A.wait_vm("xn2")
            lds_inc(32)
        if s == 7:
            lds_wait(A, 10, 32, 3, 13, 42)
        if s == 16:
            lds_inc(24)
    G1.loop(f1hook)
    A("s_setprio 3")
    stamp(A, kidx, 3, vt=VT)
    A("s_mul_i32 s31, s27, %d" % (2 * HF_MB))
    A("s_lshl_b32 s32, s39, 12")
    A("s_add_u32 s31, s31, s32")
    A("s_add_u32 s31, s31, 0x%x" % HF_OFF)
    A("s_add_u32 s32, s31, %d" % HF_MB)
    A("s_nop 7")
    for b in range(2):
        for a in range(2):
            d = ACC + (b * 2 + a) * 16
            o = AF + (b * 2 + a) * 8
            for i in range(8):
                A(C(o + i, d + 2 * i))
            for i in range(8):
                A("v_pk_max_i16 v%d, v%d, 0" % (o + i, o + i))
            for j in range(2):
                A("buffer_store_dwordx4 %s, v2, s[20:23], s%d offen offset:%d sc0 sc1" % (vr(o + 4 * j, 4), 31 + a, (2 * b + j) * 1024))
    A("s_branch %s" % Lf1sig)
    A("%s:" % Lnof1)
    for t in range(4):
        xn_block("s41", "xn2")
        A("s_add_u32 s41, s41, 3")
    A("s_waitcnt vmcnt(0)")
    lds_inc(32)
    lds_inc(24)
    A("%s:" % Lf1sig)
    lds_inc(28)
    A("s_waitcnt vmcnt(0)")
    A("s_mov_b64 exec, 1")
    A("ds_add_rtn_u32 v13, v10, v12 offset:8")
    A("s_waitcnt lgkmcnt(0)")
    A("v_readfirstlane_b32 s42, v13")
    A("s_lshl_b32 s43, s28, 2")
    A("v_mov_b32 v13, s43")
    Lnp = A.label("nopub")
    A("s_cmp_lg_u32 s42, 2")
    A("s_cbranch_scc1 %s" % Lnp)
    A("buffer_store_dword v12, v13, s[20:23], s55 offen sc0 sc1")
    A("%s:" % Lnp)
    A("s_mov_b64 exec, -1")
    stamp(A, kidx, 4, vt=VT)
    A.vm = []
    f2_setup()
    A("s_cmp_lg_u32 s29, 0")
    A("s_cbranch_scc1 %s" % Lf2)
    A("v_and_b32 v13, 7, v1")
    A("v_lshlrev_b32 v13, 2, v13")
    Lp = A.label("poll")
    A("s_mov_b32 s42, 0")
    A("%s:" % Lp)
    A("buffer_load_dword v14, v13, s[20:23], s55 offen sc0 sc1")
    A("s_add_u32 s42, s42, 1")
    A("s_waitcnt vmcnt(0)")
    A("v_cmp_ne_u32 vcc, 1, v14")
    A("s_nop 4")
    A("s_cbranch_vccz %s_d" % Lp)
    A("s_sleep 1")
    A("s_cmp_lt_u32 s42, 0x40000")
    A("s_cbranch_scc1 %s" % Lp)
    A("%s_d:" % Lp)
    A("ds_write_b32 v10, v12 offset:12")
    A("s_branch %s" % Lf2)
    A("%s:" % Lw3)
    A("v_lshlrev_b32 v13, 2, v1")
    A("v_add_u32 v13, v10, v13")
    A("ds_write_b32 v13, v11")
    A.vm = ["kv"]
    A.wait_vm("kv", extra="lgkmcnt(0)")
    A("s_barrier")
    stamp(A, kidx, 1, vt=VT)
    kvb(5, 16, "xn1")
    if not NOFFN:
        xn_block("s29", "xn1")
    A.wait_vm("xn1")
    lds_inc(20)
    A("s_mov_b32 s32, %d" % (64 * 1024))

    def kvrun(end, cnt, val):
        Lk = A.label("kvl")
        A("%s:" % Lk)
        A("s_mov_b32 m0, s32")
        A("s_add_u32 s34, s32, s31")
        A("s_add_u32 s32, s32, 4096")
        for u in range(4):
            A("buffer_load_dwordx4 v2, s[20:23], s34 offen offset:%d lds" % (u * 1024))
        A("s_cmp_lg_u32 s32, %d" % (end * 1024))
        A("s_cbranch_scc1 %s" % Lk)
        A("v_mov_b32 v13, %d" % val)
        A("s_waitcnt vmcnt(%d)" % cnt)
        A("ds_write_b32 v10, v13")
    stamp(A, kidx, 2, vt=VT)
    if not NOFFN:
        lds_wait(A, 10, 24, 3, 13, 42, sleep=4)
    kvrun(96, 0, 1)
    stamp(A, kidx, 3, vt=VT)
    if (TOUCH & 4) and not NOFFN:
        A("v_lshlrev_b32 v9, 10, v1")
        A("s_and_b32 s35, s26, 3")
        A("s_lshl_b32 s35, s35, 17")
        A("s_lshl_b32 s36, s28, 7")
        A("s_add_u32 s35, s35, s36")
        A("buffer_load_dword v22, v9, s[64:67], s35 offen")
        A("s_add_u32 s35, s35, 65536")
        A("buffer_load_dword v23, v9, s[64:67], s35 offen")
        A("s_lshl_b32 s35, s27, 16")
        A("s_add_u32 s35, s35, s36")
        A("buffer_load_dword v24, v9, s[60:63], s35 offen")
    if (TOUCH & 1) and not NOFFN:
        A("v_lshlrev_b32 v9, 7, v1")
        A("s_lshl_b32 s35, s26, 13")
        for i in range(6):
            A("s_add_u32 s36, s35, %d" % (i * 262144))
            A("buffer_load_dword v%d, v9, s[16:19], s36 offen" % (16 + i))
    if not NOFFN:
        lds_wait(A, 10, 28, 3, 13, 42, sleep=4)
    kvrun(128, 0, 2)
    stamp(A, kidx, 4, vt=VT)
    if NOFFN:
        A("s_endpgm")
    A.vm = []
    f2_setup()
    A("%s:" % Lf2)
    A("s_xor_b32 s50, s47, 1")
    A("s_xor_b32 s51, s46, 1")
    region(52, "s50", "s46")
    region(53, "s47", "s51")
    region(54, "s50", "s51")
    A("s_mul_i32 s31, s27, %d" % (2 * HF_MB))
    A("s_add_u32 s31, s31, 0x%x" % HF_OFF)
    A("s_lshl_b32 s49, s28, 2")
    A("s_add_u32 s49, s49, s29")
    A("s_mul_i32 s49, s49, %d" % (44 * 128))
    A("s_add_u32 s49, s49, s31")
    A("s_mul_i32 s32, s29, %d" % (22 * 1024))
    A("s_add_u32 s31, s31, s32")
    A("s_mul_i32 s38, s47, %d" % HF_MB)
    A("s_add_u32 s31, s31, s38")
    A("s_lshl_b32 s38, s38, 1")
    A("s_sub_u32 s32, %d, s38" % HF_MB)
    A("v_min_u32 v9, 43, v1")
    A("v_lshlrev_b32 v9, 7, v9")
    lds_wait(A, 10, 12, 1, 13, 42)
    stamp(A, kidx, 5, vt=VT)
    if TOUCH & 2:
        A.vmem("buffer_load_dword v13, v9, s[20:23], s49 offen sc0 sc1", "t")
    G2.pre(w=False)
    A("s_setprio %d" % AUXPRIO)
    G2.loop()
    A("s_setprio 3")
    stamp(A, kidx, 6, vt=VT)
    A("v_add_u32 v6, s30, v2")
    A("v_add_u32 v7, s52, v2")
    A("v_add_u32 v8, s53, v2")
    A("v_add_u32 v9, s54, v2")
    A("s_nop 7")
    for j in (1, 2, 3):
        for g in range(4):
            A("ds_write_b128 v6, %s offset:%d" % (vr(ACC + j * 16 + 4 * g, 4), (j - 1) * 4096 + g * 1024))
    A("s_waitcnt lgkmcnt(0)")
    A("s_mov_b64 exec, 1")
    A("ds_add_u32 v10, v12 offset:16")
    A("s_mov_b64 exec, -1")
    lds_wait(A, 10, 16, 4, 13, 42)
    for j in (1, 2, 3):
        for g in range(4):
            A("ds_read_b128 %s, v%d offset:%d" % (vr(ACC + j * 16 + 4 * g, 4), 6 + j, (j - 1) * 4096 + g * 1024))
    A("s_lshl_b32 s48, s29, 14")
    A("s_add_u32 s48, s48, 32768")
    A("s_sub_u32 s49, s48, s30")
    A("v_add_u32 v4, s49, v4")
    A("v_add_u32 v5, s49, v5")
    A("s_lshl_b32 s33, s29, 17")
    A("s_lshl_b32 s34, s28, 7")
    A("s_add_u32 s33, s33, s34")
    A("s_lshl_b32 s31, s27, 16")
    A("s_lshl_b32 s32, s29, 13")
    A("s_add_u32 s31, s31, s32")
    A("s_add_u32 s31, s31, 0x%x" % OF_OFF)
    A("s_lshl_b32 s38, s47, 15")
    A("s_add_u32 s31, s31, s38")
    A("s_lshl_b32 s32, s38, 1")
    A("s_sub_u32 s32, 32768, s32")
    A("v_and_b32 v6, 31, v1")
    A("v_lshrrev_b32 v7, 5, v1")
    A("v_lshlrev_b32 v11, 10, v6")
    A("v_lshl_add_u32 v11, v7, 4, v11")
    A("s_lshl_b32 s45, s27, 16")
    A("s_add_u32 s45, s45, s38")
    A("s_add_u32 s45, s45, s34")
    A("s_lshl_b32 s44, s46, 6")
    A("s_add_u32 s45, s45, s44")
    lds_wait(A, 10, 36, 8, 13, 42)
    G3 = Gemm(A, 8, 8, 8, "d", 1024, 20, 64, 31, 32, 33, "s48", 34, aflag=" sc0 sc1")
    A.vm = []
    G3.pre(a=False)
    A("buffer_load_dwordx4 v[24:27], v11, s[60:63], s45 offen")
    A("buffer_load_dwordx4 v[28:31], v11, s[60:63], s45 offen offset:32")
    for r in range(16):
        A("v_add_f32 v%d, v%d, v%d" % (ACC + r, ACC + r, ACC + 16 + r))
        A("v_add_f32 v%d, v%d, v%d" % (ACC + 32 + r, ACC + 32 + r, ACC + 48 + r))
    for r in range(16):
        A("v_add_f32 v%d, v%d, v%d" % (ACC + r, ACC + r, ACC + 32 + r))
    A("s_mov_b32 s41, 0xffff0000")
    regs = list(range(ACC, ACC + 16))
    round_bf16(A, regs, 16, "s41")
    for r in regs:
        A("v_mul_f32 v%d, 0x%x, v%d" % (r + 16, f32bits(-LOG2E), r))
    for r in regs:
        A("v_exp_f32 v%d, v%d" % (r + 16, r + 16))
    for r in regs:
        A("v_add_f32 v%d, 1.0, v%d" % (r + 16, r + 16))
    for r in regs:
        A("v_rcp_f32 v%d, v%d" % (r + 16, r + 16))
    for r in regs:
        A("v_mul_f32 v%d, v%d, v%d" % (r, r, r + 16))
    for k in range(8):
        A(C(160 + k, ACC + 2 * k))
    A("s_add_u32 s36, s31, 4096")
    A("s_add_u32 s35, s31, s32")
    A("s_add_u32 s37, s36, s32")
    A("v_add_u32 v6, s48, v2")
    A("s_xor_b32 s49, s29, 1")
    A("s_lshl_b32 s49, s49, 14")
    A("v_add_u32 v7, s49, v2")
    A("s_xor_b32 s49, s29, 2")
    A("s_lshl_b32 s49, s49, 14")
    A("v_add_u32 v8, s49, v2")
    A("s_xor_b32 s49, s29, 3")
    A("s_lshl_b32 s49, s49, 14")
    A("v_add_u32 v9, s49, v2")
    A("s_waitcnt vmcnt(0)")
    stamp(A, kidx, 7, vt=VT)
    pad_end(A, "k2g")
    lds_wait(A, 10, 40, 8, 13, 42)
    stamp(A, kidx, 8, vt=VT)
    if asmlib.STAMP:
        A("s_waitcnt vmcnt(0)")
    Li = A.label("oiss")
    Lc = A.label("ochk")
    A("s_mov_b32 s50, 0")
    A("s_mov_b32 s51, 0")
    for st_ in range(8):
        A("%s_%d:" % (Li, st_))
        for a in range(2):
            A("buffer_load_dwordx4 %s, v2, s[20:23], s%d offen offset:%d sc0 sc1" % (vr(AF + (st_ * 2 + a) * 4, 4), ((31, 35), (36, 37))[st_ >> 2][a], (st_ & 3) * 1024))
    for st_ in range(1, 8):
        A("s_cmp_eq_u32 s50, %d" % st_)
        A("s_cbranch_scc1 %s_%d" % (Lc, st_))
    for st_ in range(8):
        for b in range(2):
            for j in range(2):
                A("ds_read_b64_tr_b16 %s, v%d offset:%d" % (vr(16 + 4 * b + 2 * j, 2), 4 + b, st_ * 2048 + j * 1024))
        A("%s_%d:" % (Lc, st_))
        A("s_waitcnt vmcnt(%d)" % (2 * (7 - st_)))
        f = AF + st_ * 8
        A("v_max3_u32 v13, v%d, v%d, v%d" % (f, f + 1, f + 2))
        A("v_max3_u32 v14, v%d, v%d, v%d" % (f + 3, f + 4, f + 5))
        A("v_max3_u32 v13, v13, v%d, v%d" % (f + 6, f + 7))
        A("v_max_u32 v13, v13, v14")
        A("v_cmp_eq_u32 vcc, -1, v13")
        Lg = A.label("ogo")
        A("s_add_u32 s51, s51, 1")
        A("s_mov_b32 s50, %d" % st_)
        A("s_nop 2")
        A("s_cbranch_vccz %s" % Lg)
        A("s_cmp_lt_u32 s51, 0x20000")
        A("s_cbranch_scc1 %s_%d" % (Li, st_))
        A("%s:" % Lg)
        A("s_waitcnt lgkmcnt(0)")
        for q in range(4):
            d = ACC + q * 16
            A(mfma(d, 16 + 4 * (q >> 1), f + 4 * (q & 1), "0" if st_ == 0 else d))
    stamp(A, kidx, 9, vt=VT)
    for k in range(8):
        A("v_lshlrev_b32 v%d, 16, v%d" % (32 + 2 * k, 160 + k))
        A("v_and_b32 v%d, s41, v%d" % (33 + 2 * k, 160 + k))
    for j in (1, 2, 3):
        for g in range(4):
            A("ds_write_b128 v6, %s offset:%d" % (vr(ACC + j * 16 + 4 * g, 4), j * 4096 + g * 1024))
    for k in range(8):
        A("v_lshlrev_b32 v%d, 16, v%d" % (48 + 2 * k, 24 + k))
        A("v_and_b32 v%d, s41, v%d" % (49 + 2 * k, 24 + k))
    A("s_waitcnt lgkmcnt(0)")
    A("s_barrier")
    for j in (1, 2, 3):
        for g in range(4):
            A("ds_read_b128 %s, v%d offset:%d" % (vr(ACC + j * 16 + 4 * g, 4), 6 + j, 32768 + j * 4096 + g * 1024))
    A("s_waitcnt lgkmcnt(4)")
    for r in range(16):
        A("v_add_f32 v%d, v%d, v%d" % (ACC + r, ACC + r, ACC + 16 + r))
    for r in range(16):
        A("v_add_f32 v%d, v%d, v%d" % (ACC + r, ACC + r, ACC + 32 + r))
    A("s_waitcnt lgkmcnt(0)")
    for r in range(16):
        A("v_add_f32 v%d, v%d, v%d" % (ACC + r, ACC + r, ACC + 48 + r))
    round_bf16(A, regs, 16, "s41")
    for r in range(16):
        A("v_mul_f32 v%d, v%d, v%d" % (ACC + r, ACC + r, 32 + r))
    for k in range(8):
        A(C(16 + k, ACC + 2 * k))
    A("s_nop 1")
    for k in (0, 1, 4, 5):
        A("v_permlane32_swap_b32 v%d, v%d" % (16 + k, 18 + k))
    A("s_nop 0")
    for k in range(8):
        A("v_lshlrev_b32 v%d, 16, v%d" % (32 + 2 * k, 16 + k))
        A("v_and_b32 v%d, s41, v%d" % (33 + 2 * k, 16 + k))
    for r in range(16):
        A("v_add_f32 v%d, v%d, v%d" % (32 + r, 32 + r, 48 + r))
    for k in range(8):
        A(C(16 + k, 32 + 2 * k))
    pad_end(A, "k2s")
    A("buffer_store_dwordx4 v[16:19], v11, s[68:71], s45 offen" + OUTST)
    A("buffer_store_dwordx4 v[20:23], v11, s[68:71], s45 offen offset:32" + OUTST)
    if asmlib.STAMP:
        A("s_waitcnt vmcnt(0)")
    stamp(A, kidx, 10, vt=VT)
    pad_end(A, "k2e")
    if DBGT:
        op = "min" if DBGT == 1 else "max"
        A("s_mov_b32 s79, 0x%x" % (22 << 20))
        A("buffer_load_dwordx4 v[20:23], v2, s[20:23], s79 offen")
        A("s_waitcnt vmcnt(0)")
        A("v_%s_u32 v20, v20, v21" % op)
        A("v_%s3_u32 v20, v20, v22, v23" % op)
        A("s_nop 1")
        A("v_readlane_b32 s80, v20, 0")
        for l in range(1, 64):
            A("v_readlane_b32 s81, v20, %d" % l)
            A("s_nop 3")
            A("s_%s_u32 s80, s80, s81" % op)
        asmlib.PADK = "abs"
        pad_end(A, "abs")
    A("s_endpgm")
    return 168


def gen_k3(A, name="k3_kernel", kidx=0):
    VT = (176, 177, 178)
    kernel_begin(A, name)
    Lend = A.label("k3end")
    A("s_cmp_ge_u32 s2, 256")
    A("s_cbranch_scc1 %s" % Lend)
    pad_begin(A, "k3")
    A("s_load_dwordx2 s[4:5], s[0:1], 16")
    A("s_load_dwordx2 s[6:7], s[0:1], 0")
    A("s_load_dwordx2 s[8:9], s[0:1], 64")
    A("s_load_dwordx2 s[10:11], s[0:1], 48")
    A("v_and_b32 v1, 63, v0")
    A("v_lshrrev_b32 v8, 6, v0")
    A("s_lshr_b32 s25, s2, 5" if BADMAP else "s_and_b32 s25, s2, 7")
    A("v_readfirstlane_b32 s24, v8")
    A("s_and_b32 s26, s2, 31" if BADMAP else "s_lshr_b32 s26, s2, 3")
    A("s_lshl_b32 s27, s25, 2")
    A("s_and_b32 s28, s26, 3")
    A("s_add_u32 s27, s27, s28")
    A("s_lshr_b32 s28, s26, 2")
    A("v_lshlrev_b32 v2, 4, v1")
    A("s_lshl_b32 s30, s24, 14")
    A("s_lshr_b32 s46, s24, 1")
    A("s_and_b32 s47, s24, 1")
    gemm_addr(A, 1024, "d", "s30", "s46")
    A("s_waitcnt lgkmcnt(0)")
    srd(A, 12, 6, X_BYTES)
    srd(A, 16, 4, WO_BYTES)
    srd(A, 20, 8, WS_BYTES)
    srd(A, 36, 10, X_BYTES)
    A("s_lshl_b32 s31, s27, 16")
    A("s_lshl_b32 s32, s24, 13")
    A("s_add_u32 s31, s31, s32")
    A("s_add_u32 s31, s31, 0x%x" % OF_OFF)
    A("s_lshl_b32 s48, s47, 15")
    A("s_add_u32 s31, s31, s48")
    A("s_lshl_b32 s32, s48, 1")
    A("s_sub_u32 s32, 32768, s32")
    A("s_lshl_b32 s33, s24, 17")
    A("s_lshl_b32 s34, s28, 7")
    A("s_add_u32 s33, s33, s34")
    G = Gemm(A, 8, 8, 8, "d", 1024, 20, 16, 31, 32, 33, "s30", 50)
    G.pre()
    stamp(A, kidx, 0, vt=VT)
    A("v_and_b32 v6, 31, v1")
    A("v_lshrrev_b32 v7, 5, v1")
    A("v_lshlrev_b32 v10, 10, v6")
    A("v_lshl_add_u32 v10, v7, 4, v10")
    A("s_lshl_b32 s42, s27, 16")
    A("s_add_u32 s42, s42, s48")
    A("s_lshl_b32 s43, s28, 7")
    A("s_add_u32 s42, s42, s43")
    A("s_lshl_b32 s43, s46, 6")
    A("s_add_u32 s42, s42, s43")
    A("s_lshl_b32 s44, s27, 16")
    A("s_lshl_b32 s45, s28, 13")
    A("s_add_u32 s44, s44, s45")
    A("s_lshl_b32 s45, s24, 11")
    A("s_add_u32 s44, s44, s45")
    A("s_add_u32 s44, s44, 0x%x" % G_OFF)
    A.vmem("buffer_load_dwordx4 v[160:163], v2, s[20:23], s44 offen", "g")
    A.vmem("buffer_load_dwordx4 v[164:167], v2, s[20:23], s44 offen offset:1024", "g")
    A.vmem("buffer_load_dwordx4 v[168:171], v10, s[12:15], s42 offen", "g")
    A.vmem("buffer_load_dwordx4 v[172:175], v10, s[12:15], s42 offen offset:32", "g")
    G.loop()
    stamp(A, kidx, 2, vt=VT)
    A("v_add_u32 v6, s30, v2")
    A("s_nop 10")
    for j in (1, 2, 3):
        for g in range(4):
            A("ds_write_b128 v6, %s offset:%d" % (vr(ACC + j * 16 + 4 * g, 4), j * 4096 + g * 1024))
    A("v_xor_b32 v7, 0x4000, v6")
    A("v_xor_b32 v8, 0x8000, v6")
    A("v_xor_b32 v9, 0xc000, v6")
    A("s_waitcnt lgkmcnt(0)")
    A("s_barrier")
    for j in (1, 2, 3):
        for g in range(4):
            A("ds_read_b128 %s, v%d offset:%d" % (vr(ACC + j * 16 + 4 * g, 4), 6 + j, j * 4096 + g * 1024))
    A("s_mov_b32 s41, 0xffff0000")
    A.wait_vm("g")
    for k in range(8):
        A("v_lshlrev_b32 v%d, 16, v%d" % (32 + 2 * k, 160 + k))
        A("v_and_b32 v%d, s41, v%d" % (33 + 2 * k, 160 + k))
    for k in range(8):
        A("v_lshlrev_b32 v%d, 16, v%d" % (48 + 2 * k, 168 + k))
        A("v_and_b32 v%d, s41, v%d" % (49 + 2 * k, 168 + k))
    A("s_waitcnt lgkmcnt(0)")
    for r in range(16):
        A("v_add_f32 v%d, v%d, v%d" % (ACC + r, ACC + r, ACC + 16 + r))
        A("v_add_f32 v%d, v%d, v%d" % (ACC + 32 + r, ACC + 32 + r, ACC + 48 + r))
    for r in range(16):
        A("v_add_f32 v%d, v%d, v%d" % (ACC + r, ACC + r, ACC + 32 + r))
    regs = list(range(ACC, ACC + 16))
    round_bf16(A, regs, 16, "s41")
    for r in range(16):
        A("v_mul_f32 v%d, v%d, v%d" % (ACC + r, ACC + r, 32 + r))
    for k in range(8):
        A(C(16 + k, ACC + 2 * k))
    A("s_nop 1")
    for k in (0, 1, 4, 5):
        A("v_permlane32_swap_b32 v%d, v%d" % (16 + k, 18 + k))
    A("s_nop 0")
    for k in range(8):
        A("v_lshlrev_b32 v%d, 16, v%d" % (32 + 2 * k, 16 + k))
        A("v_and_b32 v%d, s41, v%d" % (33 + 2 * k, 16 + k))
    for r in range(16):
        A("v_add_f32 v%d, v%d, v%d" % (32 + r, 32 + r, 48 + r))
    for k in range(8):
        A(C(16 + k, 32 + 2 * k))
    A("buffer_store_dwordx4 v[16:19], v10, s[36:39], s42 offen")
    A("buffer_store_dwordx4 v[20:23], v10, s[36:39], s42 offen offset:32")
    if asmlib.STAMP:
        A("s_waitcnt vmcnt(0)")
    stamp(A, kidx, 3, vt=VT)
    pad_end(A, "k3")
    A("%s:" % Lend)
    A("s_endpgm")
    return 180
```

```python
import struct
X_BYTES = 2048 * 512 * 2
WQKV_BYTES = 512 * 1536 * 2
WO_BYTES = 512 * 512 * 2
W1_BYTES = 512 * 1376 * 2
W2_BYTES = 1376 * 512 * 2
WS_BYTES = 0x2000000
MB = 1 << 20
QF_OFF = 0
KV_OFF = 2 * MB
XN_OFF = 6 * MB
HF_OFF = 8 * MB
OF_OFF = 14 * MB
G_OFF = 16 * MB
def f32bits(x):
    return struct.unpack("<I", struct.pack("<f", x))[0]
LOG2E = 1.4426950408889634
QSCALE_BITS = f32bits(0.25 * LOG2E)
HF_MB = 88 * 1024
CNT_OFF = 20 * MB
import os
TOUCH = int(os.environ.get('TOUCH', '0'))
NOFFN = int(os.environ.get('NOFFN', '0'))
AUXPRIO = int(os.environ.get('AUXPRIO', '0'))
ATTPRIO = [int(c) for c in os.environ.get('ATTPRIO', '3210')]
K1TOUCH = int(os.environ.get('K1TOUCH', '0'))
K1X = int(os.environ.get('K1X', '0'))
NOATT = int(os.environ.get('NOATT', '0'))
ZROWS = int(os.environ.get('ZROWS', '1'))
ROT = int(os.environ.get('ROT', '1'))
K1NT = os.environ.get('K1NT', '')
CNT_BYTES = 8192
K1LEAD = int(os.environ.get('K1LEAD', '2'))
K1THR = int(os.environ.get('K1THR', '0'))
K1PRE = int(os.environ.get('K1PRE', '0'))
F1REP = int(os.environ.get('F1REP', '0'))
PF = int(os.environ.get('PF', '0'))
PFAT = int(os.environ.get('PFAT', '7'))
BADMAP = int(os.environ.get('BADMAP', '0'))
OUTST = os.environ.get('OUTST', '')
DBGT = int(os.environ.get('DBGT', '0'))
PRIOT = [int(c) for c in os.environ.get('PRIOT', '4,11,15').split(',')]
MAP16 = int(os.environ.get('MAP16', '0'))
QFB = int(os.environ.get('QFB', '13'))
OGATE = int(os.environ.get('OGATE', '8'))
W1T = int(os.environ.get('W1T', '0'))
QSH = int(os.environ.get('QSH', '7'))
PSLEEP = int(os.environ.get('PSLEEP', '4'))
KV0AT = int(os.environ.get('KV0AT', '12'))
```

```python
import asmlib
from asmlib import *
from layout import *
from k2 import (Q, NEGM, S, P, O, KF, VF, E, C, att_tile, rowmax16, set_negm, WFB, AF, ACC, gemm_addr, Gemm, lds_wait, round_bf16)

WSLOT = 24576
XBASE = 98304
FLAG = 131072
RING = FLAG + 2048
EFLAG_OFF = CNT_OFF
DFLAG_OFF = CNT_OFF + 65536
HFLAG_OFF = CNT_OFF + 4096
EPOCH_OFF = CNT_OFF + 16384
WT = os.environ.get("WT", " sc0 sc1")


def poll_flags(A, loads, nregs, vt, s_tag, st, preissued=False):
    L = A.label("poll")
    A("s_mov_b32 s%d, 0" % st)
    if preissued:
        A("s_branch %s_w" % L)
    A("%s:" % L)
    loads()
    A("%s_w:" % L)
    A("s_add_u32 s%d, s%d, 1" % (st, st))
    A("s_waitcnt vmcnt(0)")
    for r in range(nregs):
        A("v_xor_b32 v%d, %s, v%d" % (vt + r, s_tag, vt + r))
    for r in range(1, nregs):
        A("v_or_b32 v%d, v%d, v%d" % (vt, vt, vt + r))
    A("v_cmp_ne_u32 vcc, 0, v%d" % vt)
    A("s_nop 4")
    A("s_cbranch_vccz %s_d" % L)
    if PSLEEP:
        A("s_sleep %d" % PSLEEP)
    A("s_cmp_lt_u32 s%d, 0x40000" % st)
    A("s_cbranch_scc1 %s" % L)
    A("%s_d:" % L)


def gen_mega(A, name, prio=PRIOT):
    kidx = 0
    kernel_begin(A, name)
    Lend = A.label("end")
    Lld = A.label("ld")
    Lattpre = A.label("attpre")
    A("s_cmp_ge_u32 s2, 256")
    A("s_cbranch_scc1 %s" % Lend)
    pad_begin(A, "k")
    A("s_load_dwordx4 s[4:7], s[0:1], 0")
    A("s_load_dwordx2 s[8:9], s[0:1], 64")
    A("s_load_dwordx4 s[72:75], s[0:1], 32")
    A("s_load_dwordx2 s[76:77], s[0:1], 16")
    A("s_load_dwordx2 s[10:11], s[0:1], 48")
    if asmlib.STAMP:
        A("s_memrealtime s[84:85]")
        A("s_memtime s[86:87]")
    A("v_and_b32 v1, 63, v0")
    A("v_lshrrev_b32 v11, 6, v0")
    A("s_and_b32 s25, s2, 7")
    A("v_readfirstlane_b32 s24, v11")
    A("s_lshr_b32 s26, s2, 3")
    if MAP16:
        A("s_and_b32 s78, s25, 1")
        A("s_lshl_b32 s78, s78, 4")
        A("s_and_b32 s79, s26, 15")
        A("s_add_u32 s78, s78, s79")
        A("s_and_b32 s79, s25, 6")
        A("s_lshr_b32 s29, s26, 4")
        A("s_add_u32 s79, s79, s29")
        A("s_lshl_b32 s55, s29, 2")
    else:
        A("s_and_b32 s78, s25, 3")
        A("s_lshl_b32 s78, s78, 3")
        A("s_and_b32 s79, s26, 7")
        A("s_add_u32 s78, s78, s79")
        A("s_and_b32 s79, s25, 4")
        A("s_lshr_b32 s29, s26, 3")
        A("s_add_u32 s79, s79, s29")
        A("s_lshl_b32 s55, s29, 1")
    A("s_add_u32 s55, s55, s26")
    A("s_and_b32 s55, s55, 7")
    A("v_lshrrev_b32 v11, 3, v1")
    A("v_and_b32 v12, 7, v1")
    A("v_lshlrev_b32 v2, 10, v11")
    A("v_lshl_add_u32 v2, v12, 4, v2")
    A("s_lshl_b32 s27, s25, 2")
    A("s_and_b32 s28, s26, 3")
    A("s_add_u32 s27, s27, s28")
    A("s_lshr_b32 s28, s26, 2")
    A("s_lshl_b32 s30, s78, 16")
    A("s_lshl_b32 s31, s24, 13")
    A("s_add_u32 s30, s30, s31")
    A("s_waitcnt lgkmcnt(0)")
    srd(A, 60, 4, X_BYTES)
    A("s_cmp_ge_u32 s24, 8")
    A("s_cbranch_scc1 %s" % Lld)

    def other_srds():
        srd(A, 20, 8, WS_BYTES)
        A("s_add_u32 s82, s8, 0x%x" % EPOCH_OFF)
        A("s_addc_u32 s83, s9, 0")
        A("s_load_dword s3, s[82:83], 0")

    def sentinel():
        A("s_lshl_b32 s29, s28, 3")
        A("s_add_u32 s29, s29, s24")
        A("s_sub_u32 s29, s29, 4")
        A("s_lshl_b32 s34, s29, 15")
        A("s_lshl_b32 s35, s27, 10")
        A("s_add_u32 s34, s34, s35")
        A("s_add_u32 s34, s34, 0x%x" % OF_OFF)
        for i in range(4):
            A("v_mov_b32 v%d, -1" % (16 + i))
        A("v_lshlrev_b32 v10, 4, v1")
        A.vmem("buffer_store_dwordx4 v[16:19], v10, s[20:23], s34 offen" + WT, "sent")

    XR = 32
    for c in range(8):
        A("s_add_u32 s31, s55, %d" % c)
        A("s_and_b32 s31, s31, 7")
        A("s_lshl_b32 s31, s31, 7")
        A("s_add_u32 s31, s31, s30")
        A.vmem("buffer_load_dwordx4 %s, v2, s[60:63], s31 offen" % vr(XR + c * 4, 4), "x%d" % c)
    other_srds()
    A("v_xor_b32 v13, v11, v12")
    A("v_lshlrev_b32 v4, 9, v12")
    A("v_lshl_add_u32 v4, v13, 4, v4")
    A("s_lshr_b32 s35, s24, 2")
    A("s_and_b32 s36, s24, 3")
    A("s_lshl_b32 s37, s35, 12")
    A("s_lshl_b32 s38, s36, 7")
    A("s_add_u32 s37, s37, s38")
    A("s_add_u32 s37, s37, %d" % XBASE)
    A("v_add_u32 v4, s37, v4")
    A("s_bfe_u32 s46, s24, 0x10001")
    A("s_and_b32 s47, s24, 1")
    A("v_and_b32 v13, 31, v1")
    A("v_lshrrev_b32 v14, 5, v1")
    A("s_lshl_b32 s37, s47, 12")
    A("s_add_u32 s37, s37, %d" % XBASE)
    for v in range(4):
        A("v_add_u32 v15, %d, v14" % (2 * v))
        A("v_xor_b32 v16, v13, v15")
        A("v_lshlrev_b32 v16, 4, v16")
        A("v_lshl_add_u32 v16, v15, 9, v16")
        A("v_add_u32 v%d, s37, v16" % (5 + v))
    A("v_mul_u32_u24 v9, 3072, v14")
    A("v_bfe_u32 v15, v1, 2, 2")
    A("v_lshl_add_u32 v9, v15, 7, v9")
    A("v_lshrrev_b32 v15, 1, v15")
    A("v_xor_b32 v15, s46, v15")
    A("v_lshl_add_u32 v9, v15, 6, v9")
    A("v_bfe_u32 v15, v1, 4, 1")
    A("v_lshl_add_u32 v9, v15, 5, v9")
    A("v_and_b32 v15, 3, v1")
    A("v_lshl_add_u32 v9, v15, 3, v9")
    A("v_lshlrev_b32 v2, 4, v1")
    A("v_bfe_u32 v15, v1, 4, 1")
    A("v_lshlrev_b32 v12, 17, v15")
    A("v_lshl_add_u32 v12, v14, 8, v12")
    A("v_and_b32 v15, 15, v1")
    A("v_lshl_add_u32 v12, v15, 4, v12")
    A("s_lshl_b32 s43, s78, 1")
    A("s_add_u32 s43, s43, s47")
    A("s_lshl_b32 s44, s79, 2")
    A("s_lshl_b32 s45, s46, 1")
    A("s_add_u32 s44, s44, s45")
    A("s_lshl_b32 s48, s44, 16")
    A("s_lshl_b32 s49, s43, 10")
    A("s_add_u32 s48, s48, s49")
    A("s_add_u32 s48, s48, 0x%x" % QF_OFF)
    A("s_add_u32 s49, s48, 65536")
    A("s_lshl_b32 s50, s44, 17")
    A("s_lshl_b32 s51, s43, 11")
    A("s_add_u32 s50, s50, s51")
    A("s_add_u32 s50, s50, 0x%x" % KV_OFF)
    A("s_add_u32 s51, s50, 131072")
    A("s_mov_b32 s52, 0x%x" % QSCALE_BITS)
    A("s_mov_b32 s56, 1")
    A("s_mov_b32 s57, %d" % WSLOT)
    A("s_mov_b32 s59, 0x%x" % ((-3 * WSLOT) & 0xffffffff))
    A("s_movk_i32 s58, 0x2000")
    A("v_mov_b32 v14, 0x3f803f80")
    A("v_mov_b32 v15, 0xffff0000")
    for i in range(4):
        A("v_mov_b32 v%d, 0" % (16 + i))
    for c in range(8):
        A.wait_vm("x%d" % c)
        for d in range(4):
            r = XR + c * 4 + d
            A("v_dot2c_f32_bf16 v%d, v14, v%d" % (16 + (d & 1), r))
            A("v_dot2c_f32_bf16 v%d, v%d, v%d" % (18 + (d & 1), r, r))
    A("s_nop 2")
    A("v_add_f32 v16, v16, v17")
    A("v_add_f32 v18, v18, v19")
    for mode in ("quad_perm:[1,0,3,2]", "quad_perm:[2,3,0,1]", "row_half_mirror"):
        A("s_nop 0")
        for r in (16, 18):
            A("v_add_f32_dpp v%d, v%d, v%d %s row_mask:0xf bank_mask:0xf" % (r, r, r, mode))
    A("v_mul_f32 v16, 0x3b000000, v16")
    A("v_mul_f32 v18, 0x3b000000, v18")
    A("v_fma_f32 v18, -v16, v16, v18")
    A("v_max_f32 v18, 0, v18")
    A("v_cvt_pk_bf16_f32 v17, v16, v18")
    A("v_lshlrev_b32 v16, 16, v17")
    A("v_and_b32 v18, v15, v17")
    A("v_add_f32 v18, 0x3727c5ac, v18")
    A("v_cvt_pk_bf16_f32 v18, v18, v18")
    A("v_and_b32 v18, v15, v18")
    A("v_sqrt_f32 v18, v18")
    A("s_nop 0")
    A("v_cvt_pk_bf16_f32 v18, v18, v18")
    A("v_and_b32 v18, v15, v18")
    A("v_rcp_f32 v20, v18")
    A("s_nop 0")
    A("v_mul_f32 v21, -v16, v20")
    if asmlib.STAMP:
        A("s_memrealtime s[64:65]")
        A("s_memtime s[66:67]")
    for c in range(8):
        b = XR + c * 4
        T = 64 + 8 * (c & 1)
        for d in range(4):
            A("v_lshlrev_b32 v%d, 16, v%d" % (T + 2 * d, b + d))
            A("v_and_b32 v%d, v15, v%d" % (T + 2 * d + 1, b + d))
        for d in range(4):
            A("v_pk_fma_f32 %s, %s, v[20:21], v[20:21] op_sel:[0,0,1] op_sel_hi:[1,0,1]" % (vr(T + 2 * d, 2), vr(T + 2 * d, 2)))
        for d in range(4):
            A("v_cvt_pk_bf16_f32 v%d, v%d, v%d" % (b + d, T + 2 * d, T + 2 * d + 1))
        A("ds_write_b128 v4, %s offset:%d" % (vr(b, 4), c * 8192))
    if asmlib.STAMP:
        A("s_memrealtime s[68:69]")
        A("s_memtime s[70:71]")
    A("s_waitcnt lgkmcnt(0)")
    A("s_add_u32 s3, s3, 1")
    A("s_barrier")
    Lmm = A.label("mm")
    A("s_cmp_lt_u32 s24, 4")
    A("s_cbranch_scc1 %s" % Lmm)
    sentinel()
    A("s_lshl_b32 s34, s79, 2")
    A("s_add_u32 s34, s34, s24")
    A("s_sub_u32 s34, s34, 4")
    A("s_lshl_b32 s35, s34, 16")
    A("s_lshl_b32 s36, s78, 11")
    A("s_add_u32 s35, s35, s36")
    A("s_add_u32 s36, s35, 0x%x" % QF_OFF)
    for u in range(2):
        A("buffer_store_dwordx4 v[16:19], v10, s[20:23], s36 offen offset:%d%s" % (u * 1024, WT))
    Lnk = A.label("nokv")
    A("s_cmp_ge_u32 s78, 6")
    A("s_cbranch_scc1 %s" % Lnk)
    A("s_lshl_b32 s35, s35, 1")
    A("s_add_u32 s36, s35, 0x%x" % KV_OFF)
    for u in range(4):
        A("buffer_store_dwordx4 v[16:19], v10, s[20:23], s36 offen offset:%d%s" % (u * 1024, WT))
    A("%s:" % Lnk)
    stamp(A, kidx, 12, vt=(112, 113, 114), saved=64)
    stamp(A, kidx, 13, vt=(112, 113, 114), saved=68)
    A("s_sub_u32 s32, s24, 4")
    A("s_mul_i32 s32, s32, 6144")
    A("s_lshl_b32 s31, s27, 17")
    A("s_add_u32 s31, s31, s32")
    A("s_add_u32 s31, s31, 0x%x" % KV_OFF)
    A("s_add_u32 s33, s31, 3072")
    A("v_add_u32 v9, s32, v10")

    def kv0():
        for u in range(6):
            A("buffer_load_dwordx4 %s, v10, s[20:23], s%d offen offset:%d%s" % (vr(32 + 4 * u, 4), 31 if u < 3 else 33, (u % 3) * 1024, WT))

    def marked(regs, t):
        A("v_max3_u32 v%d, v%d, v%d, v%d" % (t, regs[0], regs[1], regs[2]))
        rest = regs[3:]
        while len(rest) >= 2:
            A("v_max3_u32 v%d, v%d, v%d, v%d" % (t, t, rest[0], rest[1]))
            rest = rest[2:]
        if rest:
            A("v_max_u32 v%d, v%d, v%d" % (t, t, rest[0]))
        A("v_cmp_eq_u32 vcc, -1, v%d" % t)

    def take(loads, regs, t, st, first_wait):
        L = A.label("take")
        A("s_mov_b32 s%d, 0" % st)
        A("s_waitcnt vmcnt(%d)" % first_wait)
        A("s_branch %s_c" % L)
        A("%s:" % L)
        A("s_sleep 1")
        loads()
        A("s_waitcnt vmcnt(0)")
        A("%s_c:" % L)
        marked(regs, t)
        A("s_add_u32 s%d, s%d, 1" % (st, st))
        A("s_nop 3")
        A("s_cbranch_vccz %s_d" % L)
        A("s_cmp_lt_u32 s%d, 0x20000" % st)
        A("s_cbranch_scc1 %s" % L)
        A("%s_d:" % L)

    def qload():
        A("buffer_load_dwordx4 %s, v10, s[20:23], s30 offen%s" % (vr(Q, 4), WT))

    def qaddr():
        A("s_lshl_b32 s30, s27, 16")
        A("s_lshl_b32 s35, s29, 10")
        A("s_add_u32 s30, s30, s35")
        A("s_add_u32 s30, s30, 0x%x" % QF_OFF)
    qaddr()
    for i in range(1, 15):
        if i == 6:
            A("s_waitcnt vmcnt(0)")
        A("s_barrier")
        if i == KV0AT:
            kv0()
        if i == 13:
            qload()
    take(kv0, list(range(32, 56)), 8, 42, 1)
    for u in range(6):
        A("ds_write_b128 v9, %s offset:%d" % (vr(32 + 4 * u, 4), u * 1024))
    A("s_branch %s" % Lattpre)

    A("%s:" % Lld)
    A.vm = []
    srd(A, 12, 6, WQKV_BYTES)
    Lpf = A.label("pf")
    A("s_cmp_eq_u32 s24, 11")
    A("s_cbranch_scc1 %s" % Lpf)
    A("v_lshrrev_b32 v13, 2, v1")
    A("v_and_b32 v13, 4, v13")
    A("v_xor_b32 v13, v12, v13")
    A("v_mul_u32_u24 v3, 3072, v11")
    A("v_lshl_add_u32 v3, v13, 4, v3")
    A("s_sub_u32 s29, s24, 8")
    A("s_lshl_b32 s33, s29, 10")
    A("s_lshl_b32 s32, s79, 7")
    A("s_add_u32 s32, s32, s33")

    def wdma(n):
        c = n & 7
        rs = 3072 if n < 8 else 2752
        A("s_add_u32 s34, s55, %d" % c)
        A("s_and_b32 s34, s34, 7")
        A("s_mul_i32 s34, s34, %d" % (64 * rs))
        for i in range(8):
            A("s_add_u32 m0, s33, %d" % ((n & 3) * WSLOT + i * 3072))
            A("s_add_u32 s34, s34, %s" % (("s32" if n < 8 else "s36") if i == 0 else str(8 * rs)))
            A.vmem("buffer_load_dwordx4 %s, %s, s34 offen lds" % (("v3", "s[12:15]") if n < 8 else ("v4", "s[16:19]")), "w%d" % n)
    for n in range(K1LEAD):
        wdma(n)
    other_srds()
    srd(A, 16, 72, W1_BYTES)
    A("v_mul_u32_u24 v4, 2752, v11")
    A("v_lshl_add_u32 v4, v13, 4, v4")
    A("s_mul_i32 s36, s79, 3")
    A("s_add_u32 s36, s36, s29")
    A("s_lshl_b32 s36, s36, 7")
    if W1T:
        A("v_mul_u32_u24 v5, 2752, v1")
        A("s_mul_i32 s34, s55, %d" % (64 * 2752))
        A("s_add_u32 s34, s34, s36")
        A.vmem("buffer_load_dword v6, v5, s[16:19], s34 offen", "t")
        A("s_cmp_eq_u32 s29, 2")
        A("s_cselect_b64 exec, 0xaaaaaaaa, 1")
        A("s_cselect_b32 exec_hi, 0xaaaaaaaa, 0")
        A.vmem("buffer_load_dword v7, v5, s[16:19], s34 offen offset:124", "t")
        A("s_mov_b64 exec, -1")
    nxt = K1LEAD
    for n in range(15):
        A.wait_vm("w%d" % n)
        if n == 0 and asmlib.STAMP:
            A("s_memrealtime s[64:65]")
            A("s_memtime s[66:67]")
        A("s_barrier")
        if n == 1:
            sentinel()
            stamp(A, kidx, 12, vt=(112, 113, 114), saved=64)
        if nxt < 16 and nxt <= max(3, n + 2):
            wdma(nxt)
            nxt += 1
        if n == 13:
            qaddr()
            qload()
            A.vm.append("q")
    assert nxt == 16
    A.wait_vm("w15")
    A("s_branch %s" % Lattpre)
    A("%s:" % Lpf)
    A.vm = []
    other_srds()
    Lc = A.label("code")
    A("s_cmp_ge_u32 s26, (L_code_end - L_code_pc + 8191) / 8192")
    A("s_cbranch_scc1 %s" % Lc)
    A("s_getpc_b64 s[38:39]")
    A("L_code_pc:")
    A("s_lshl_b32 s37, s26, 13")
    A("v_lshlrev_b32 v15, 7, v1")
    A("v_add_u32 v15, s37, v15")
    A("v_min_u32 v15, L_code_end - L_code_pc - 4, v15")
    A("global_load_dword v14, v15, s[38:39]")
    A("%s:" % Lc)
    sentinel()
    qaddr()
    A("s_lshl_b32 s36, s2, 2")
    A("s_add_u32 s36, s36, 0x%x" % EFLAG_OFF)
    A("s_mul_i32 s37, s79, 4352")
    A("s_lshl_b32 s38, s78, 2")
    A("s_add_u32 s37, s37, s38")
    A("s_add_u32 s37, s37, 0x%x" % DFLAG_OFF)
    A("s_mov_b32 s38, 0x%x" % EFLAG_OFF)
    A("v_mov_b32 v20, 0")
    A("s_waitcnt lgkmcnt(0)")
    A("s_add_u32 s3, s3, 1")
    A("v_mov_b32 v21, s3")
    eld = lambda: A("buffer_load_dwordx4 v[24:27], v10, s[20:23], s38 offen" + WT)

    def post(sreg):
        A("s_mov_b64 exec, 1")
        A("buffer_store_dword v21, v20, s[20:23], %s offen%s" % (sreg, WT))
        A("s_mov_b64 exec, -1")
    for i in range(15):
        if i == 6:
            A("s_waitcnt vmcnt(0)")
        if i == KV0AT:
            poll_flags(A, eld, 4, 24, "s3", 42, preissued=True)
        A("s_barrier")
        if i == 6:
            post("s36")
        if i == KV0AT - 3:
            eld()
        if i == 13:
            qload()
        if i == QFB:
            post("s37")
    A("v_lshlrev_b32 v9, 2, v1")
    A("v_add_u32 v9, %d, v9" % FLAG)
    A("ds_write_b32 v9, v20")

    VT = (112, 113, 114)
    A("%s:" % Lattpre)
    if asmlib.STAMP:
        A("s_memrealtime s[48:49]")
        A("s_memtime s[50:51]")
    A("s_mov_b32 s40, 0x0000ffff")
    A("s_mov_b32 s41, 0x0000ffff")
    A("v_lshrrev_b32 v8, 5, v1")
    A("v_lshlrev_b32 v11, 8, v8")
    A("v_and_b32 v8, 15, v1")
    A("v_lshl_add_u32 v11, v8, 4, v11")
    A("v_add_u32 v11, 1024, v11")
    for r in range(96, 112):
        A("v_mov_b32 v%d, 0x3f803f80" % r)
    for r in range(16):
        A("v_mov_b32 v%d, 0" % (O + r))
    for r in (P + 4, P + 5, P + 6, S[1] + 14, S[1] + 15):
        A("v_mov_b32 v%d, 0" % r)
    A("v_mov_b32 v2, v10")
    A("v_mov_b32 v3, v11")
    A("s_mov_b32 s44, 0")
    A("s_mov_b32 s45, 2")
    A("v_mov_b32 v12, %d" % FLAG)
    A("v_mov_b32 v13, 1")
    A("s_waitcnt lgkmcnt(0)")
    A("s_barrier")
    A("s_setprio %d" % ATTPRIO[0])
    if asmlib.STAMP:
        A("s_memrealtime s[52:53]")
        A("s_memtime s[54:55]")
    A("ds_read_b128 %s, v2" % vr(KF[0], 4))
    A("ds_read_b128 %s, v2 offset:2048" % vr(KF[1], 4))
    A("s_mov_b64 exec, s[40:41]")
    A("ds_read_b128 %s, v3" % vr(VF[0][0], 4))
    A("ds_read_b128 %s, v3 offset:512" % vr(VF[0][1], 4))
    A("s_mov_b64 exec, -1")
    take(qload, list(range(Q, Q + 4)), 8, 42, 0)
    A("s_waitcnt lgkmcnt(%d)" % (0 if asmlib.STAMP else 3))
    A(mfma(S[0], KF[0], Q, "0"))
    A("s_nop 11")
    rowmax16(A, 8, S[0])
    set_negm(A, 8)
    A("s_nop 1")
    A(mfma(S[0], KF[0], Q, NEGM))
    A("s_nop 11")
    Lloop = A.label("attloop")
    A(".p2align 6")
    A("%s:" % Lloop)
    for i in range(4):
        att_tile(A, i)
    A("v_add_u32 v2, 0x2000, v2")
    A("v_add_u32 v3, 0x2000, v3")
    A("s_add_u32 s44, s44, 1")
    A("s_cmp_lg_u32 s44, s45")
    A("s_cbranch_scc1 %s" % Lloop)

    def signal(off):
        A("s_mov_b64 exec, 1")
        A("ds_add_u32 v12, v13 offset:%d" % off)
        A("s_mov_b64 exec, -1")
    evs = {2: [lambda: lds_wait(A, 12, 0, 4, 14, 46)], 4: [lambda: signal(4)], 5: [lambda: lds_wait(A, 12, 24, 4, 14, 46)],
           12: [lambda: signal(36)]}
    for i_, t_ in enumerate(prio):
        evs.setdefault(t_, []).insert(0, (lambda v: (lambda: A("s_setprio %d" % v)))(ATTPRIO[i_ + 1]))
    keys = sorted(evs)
    saved_ts = []
    for i_, at in enumerate(keys):
        Ln = A.label("attev")
        A("s_cmp_lg_u32 s44, %d" % at)
        A("s_cbranch_scc1 %s" % Ln)
        if asmlib.STAMP:
            b = 56 + 4 * len(saved_ts)
            saved_ts.append(b)
            A("s_memrealtime s[%d:%d]" % (b, b + 1))
            A("s_memtime s[%d:%d]" % (b + 2, b + 3))
            A("s_waitcnt lgkmcnt(0)")
        for f in evs[at]:
            f()
        A("s_mov_b32 s45, %d" % (keys + [16])[i_ + 1])
        A("s_branch %s" % Lloop)
        A("%s:" % Ln)
    A("s_setprio 3")
    A(C(P + 7, S[1] + 14))
    A("s_nop 1")
    A(mfma(O, VF[1][1], P + 4, O))
    signal(40)
    stamp(A, kidx, 3, vt=VT)
    Lok = A.label("attok")
    A("s_lshl_b32 s30, s29, 15")
    A("s_lshl_b32 s31, s27, 10")
    A("s_add_u32 s30, s30, s31")
    A("s_add_u32 s30, s30, 0x%x" % OF_OFF)
    A("s_mov_b32 s45, 0x5f800000")
    A("s_nop 3")
    A("v_mul_f32 v8, 0, v%d" % O)
    for r in range(1, 8):
        A("v_fma_f32 v8, v%d, 0, v8" % (O + r))
    A("v_cmp_u_f32 vcc, v8, v8")
    A("v_cmp_ngt_f32 s[46:47], s45, v%d" % (O + 8))
    A("s_nop 1")
    A("s_or_b64 s[46:47], s[46:47], vcc")
    Lfb = A.label("attfb")
    A("s_cbranch_scc1 %s" % Lfb)
    A("%s:" % Lok)
    A("v_rcp_f32 v8, v%d" % (O + 8))
    A("s_nop 0")
    for r in range(8):
        A("v_mul_f32 v%d, v%d, v8" % (O + r, O + r))
    for i in range(4):
        A(C(P + i, O + 2 * i))
    pad_end(A, "ka")
    A("buffer_store_dwordx4 %s, v10, s[20:23], s30 offen%s" % (vr(P, 4), WT))
    if asmlib.STAMP:
        A("s_waitcnt vmcnt(0)")
        stamp(A, kidx, 4, vt=VT)
        for slot, b in [(0, 84), (1, 48), (2, 52)] + [(5 + i_, b_) for i_, b_ in enumerate(saved_ts)]:
            stamp(A, kidx, slot, vt=VT, saved=b)
    A("%s:" % Lend)
    A("s_endpgm")
    A("%s:" % Lfb)
    Lf1 = A.label("attf1")
    Lf2 = A.label("attf2")
    A("s_setprio 0")
    A("s_waitcnt lgkmcnt(0)")
    A("s_lshl_b32 s31, s27, 17")
    A("s_add_u32 s31, s31, 0x%x" % KV_OFF)
    A("s_mov_b32 s32, s31")
    A("s_mov_b32 s44, 64")
    A("v_mov_b32 v8, 0xff800000")
    A("%s:" % Lf1)
    A("buffer_load_dwordx4 %s, v10, s[20:23], s32 offen%s" % (vr(KF[0], 4), WT))
    A("s_add_u32 s32, s32, 2048")
    A("s_waitcnt vmcnt(0)")
    A(mfma(S[0], KF[0], Q, "0"))
    A("s_nop 11")
    rowmax16(A, 8, S[0], init=8)
    A("s_sub_u32 s44, s44, 1")
    A("s_cmp_lg_u32 s44, 0")
    A("s_cbranch_scc1 %s" % Lf1)
    set_negm(A, 8)
    for r in range(16):
        A("v_mov_b32 v%d, 0" % (O + r))
    A("s_mov_b32 s32, s31")
    A("s_mov_b32 s44, 64")
    A("%s:" % Lf2)
    A("buffer_load_dwordx4 %s, v10, s[20:23], s32 offen%s" % (vr(KF[0], 4), WT))
    A("s_mov_b64 exec, s[40:41]")
    A("buffer_load_dwordx4 %s, v11, s[20:23], s32 offen%s" % (vr(VF[0][0], 4), WT))
    A("buffer_load_dwordx4 %s, v11, s[20:23], s32 offen offset:512%s" % (vr(VF[0][1], 4), WT))
    A("s_mov_b64 exec, -1")
    A("s_add_u32 s32, s32, 2048")
    A("s_waitcnt vmcnt(0)")
    A(mfma(S[0], KF[0], Q, NEGM))
    A("s_nop 11")
    for r in range(16):
        A(E(S[0] + r))
    A("s_nop 0")
    for i in range(8):
        A(C(P + i, S[0] + 2 * i))
    A("s_nop 1")
    A(mfma(O, VF[0][0], P, O))
    A(mfma(O, VF[0][1], P + 4, O))
    A("s_sub_u32 s44, s44, 1")
    A("s_cmp_lg_u32 s44, 0")
    A("s_cbranch_scc1 %s" % Lf2)
    A("s_nop 11")
    A("s_branch %s" % Lok)

    VT = (14, 15, 13)
    A("%s:" % Lmm)
    A.vm = []
    if asmlib.STAMP:
        A("s_memrealtime s[12:13]")
        A("s_memtime s[14:15]")
        A("s_waitcnt lgkmcnt(0)")
    BUF = [16, 32, 48, 64]
    PA = [80, 96, 112]
    PK = 132
    A("s_setprio 3")

    def reads(r, part):
        b = BUF[r]
        if part == 0:
            A("ds_read_b128 %s, v%d" % (vr(b, 4), 5 + r))
        for j in range(2):
            A("ds_read_b64_tr_b16 %s, v9 offset:%d" % (vr(b + 4 + 4 * part + 2 * j, 2), r * 6144 + part * 1024 + j * 512))

    def step(r, vlast, first, last_cmp, drain_at):
        b = BUF[r]
        filler = {(0, 0): "s_and_b32 s53, s56, 3", (0, 1): "s_cselect_b32 s54, s57, s59", (0, 2): "v_add_u32 v5, s58, v5",
                  (1, 0): "s_add_u32 s56, s56, 1", (1, 1): "v_add_u32 v6, s58, v6", (1, 2): "v_add_u32 v7, s58, v7",
                  (2, 0): "v_add_u32 v8, s58, v8", (2, 1): "s_cmp_eq_u32 s56, 8", (2, 2): "s_cselect_b32 s58, s39, s38",
                  (3, 0): "s_nop 0", (3, 1): "s_nop 0", (3, 2): "s_cmp_lg_u32 s56, %d" % last_cmp}
        cs = ["0" if first else PA[i] for i in range(3)]
        ms = [mfma(PA[0], b + 4, b, cs[0]), mfma(PA[1], b + 8, b, cs[1]),
              mfma(PA[2], b, b + 12, cs[2]) if vlast else mfma(PA[2], b + 12, b, cs[2])]
        for G in range(3):
            A(filler[(r, G)])
            A("s_waitcnt lgkmcnt(%d)" % (11 if G == 0 else 12))
            A(ms[G])
            if r == 2 and G == 0:
                if drain_at is not None:
                    A("s_cmp_eq_u32 s56, s41")
                    A("s_cbranch_scc1 L_gev")
                    A("L_gev_bar:")
                    A("s_barrier")
                    A("L_gev_nobar:")
                else:
                    A("s_barrier")
                A("v_add_u32 v9, s54, v9")
            reads((r + 2) & 3, G)

    def gemm8(vlast, last_cmp, drain_at):
        Lg = A.label("gloop")
        step(0, vlast, True, last_cmp, drain_at)
        A("s_branch %s_1" % Lg)
        A(".p2align 6")
        A("%s:" % Lg)
        step(0, vlast, False, last_cmp, drain_at)
        A("%s_1:" % Lg)
        for r in range(1, 4):
            step(r, vlast, False, last_cmp, drain_at)
        A("s_cbranch_scc1 %s" % Lg)
    A("s_movk_i32 s38, 0x2000")
    A("s_mov_b32 s39, 0x%x" % ((-7 * 8192) & 0xffffffff))
    for r in range(2):
        for part in range(3):
            reads(r, part)
    gemm8(True, 9, None)
    if asmlib.STAMP:
        A("s_memrealtime s[16:17]")
        A("s_memtime s[18:19]")
        A("s_waitcnt lgkmcnt(0)")
    A("s_nop 5")
    for t in (1, 2, 0):
        regs = PA[t]
        if t == 0:
            for r in range(16):
                A("v_mul_f32 v%d, s52, v%d" % (PA[0] + r, PA[0] + r))
        for i in range(8):
            A("v_cvt_pk_bf16_f32 v%d, v%d, v%d" % (PK + t * 8 + i, regs + 2 * i, regs + 2 * i + 1))
        a, b = vr(PK + t * 8, 4), vr(PK + t * 8 + 4, 4)
        if t == 0:
            A("buffer_store_dwordx4 %s, v2, s[20:23], s48 offen%s" % (a, WT))
            A("buffer_store_dwordx4 %s, v2, s[20:23], s49 offen%s" % (b, WT))
        elif t == 1:
            A("buffer_store_dwordx4 %s, v2, s[20:23], s50 offen%s" % (a, WT))
            A("buffer_store_dwordx4 %s, v2, s[20:23], s51 offen%s" % (b, WT))
        else:
            A("buffer_store_dwordx4 %s, v12, s[20:23], s50 offen offset:1024%s" % (a, WT))
            A("buffer_store_dwordx4 %s, v12, s[20:23], s50 offen offset:1536%s" % (b, WT))
    A("s_mov_b32 s41, %d" % (QFB + 1))
    gemm8(False, 17, True)
    if asmlib.STAMP:
        stamp(A, kidx, 3, vt=VT)
        for slot, b in ((0, 84), (1, 12), (2, 16), (11, 32), (12, 64), (13, 68), (14, 4)):
            stamp(A, kidx, slot, vt=VT, saved=b)
    A("s_mov_b32 s29, s24")
    A("v_mov_b32 v10, %d" % FLAG)
    A("v_mov_b32 v12, 1")

    def lds_inc(off):
        A("s_mov_b64 exec, 1")
        A("ds_add_u32 v10, v12 offset:%d" % off)
        A("s_mov_b64 exec, -1")
    A("s_lshr_b32 s36, s27, 2")
    A("s_mul_i32 s36, s36, 4352")
    A("s_add_u32 s36, s36, 0x%x" % DFLAG_OFF)
    A("v_and_b32 v11, 31, v1")
    A("v_lshlrev_b32 v11, 2, v11")
    dld = lambda: A("buffer_load_dword v128, v11, s[20:23], s36 offen" + WT)
    dld()
    A("s_waitcnt lgkmcnt(0)")
    lds_inc(20)
    A("s_lshl_b32 s31, s27, 17")
    A("s_add_u32 s31, s31, 0x%x" % KV_OFF)
    A("s_mul_i32 s33, s43, %d" % HF_MB)
    A("s_mul_i32 s35, s79, %d" % (3 * 4096))
    A("s_add_u32 s33, s33, s35")
    A("s_lshl_b32 s35, s46, 11")
    A("s_add_u32 s33, s33, s35")
    A("s_add_u32 s33, s33, 0x%x" % HF_OFF)
    for t in range(3):
        for i in range(8):
            A("v_cvt_pk_bf16_f32 v%d, v%d, v%d" % (PK + t * 8 + i, PA[t] + 2 * i, PA[t] + 2 * i + 1))
        for i in range(8):
            A("v_pk_max_i16 v%d, v%d, 0" % (PK + t * 8 + i, PK + t * 8 + i))
    poll_flags(A, dld, 1, 128, "s3", 42, preissued=True)
    A("s_mul_i32 s32, s29, 6144")
    A("s_add_u32 m0, s32, 24576")
    A("s_add_u32 s34, m0, s31")
    A.vm = []
    for u in range(3):
        A.vmem("buffer_load_dwordx4 v2, s[20:23], s34 offen offset:%d%s lds" % (u * 1024, WT), "kva")
    A("s_add_u32 m0, s32, %d" % (24576 + 3072))
    A("s_add_u32 s34, m0, s31")
    for u in range(3):
        A.vmem("buffer_load_dwordx4 v2, s[20:23], s34 offen offset:%d%s lds" % (u * 1024, WT), "kva")
    Lh = A.label("hdone")
    for t in range(3):
        if t == 1:
            A("s_cmp_eq_u32 s79, 7")
            A("s_cbranch_scc1 %s" % Lh)
        for j in range(2):
            A("buffer_store_dwordx4 %s, v2, s[20:23], s33 offen offset:%d%s" % (vr(PK + t * 8 + 4 * j, 4), j * 1024, WT))
        A("s_add_u32 s33, s33, 4096")
    A("s_waitcnt vmcnt(6)")
    A("s_branch %s_j" % Lh)
    A("%s:" % Lh)
    A("s_waitcnt vmcnt(2)")
    A("%s_j:" % Lh)
    lds_inc(0)
    lds_wait(A, 10, 20, 4, 13, 42)
    A("s_mul_i32 s32, s29, 20480")
    for i in range(5):
        A("s_add_u32 m0, s32, %d" % (49152 + i * 4096))
        A("s_add_u32 s34, m0, s31")
        for u in range(4):
            A("buffer_load_dwordx4 v2, s[20:23], s34 offen offset:%d%s lds" % (u * 1024, WT))
    A("s_waitcnt vmcnt(20)")
    A("s_mov_b64 exec, 1")
    A("ds_add_rtn_u32 v13, v10, v12 offset:8")
    A("s_lshl_b32 s35, s78, 7")
    A("s_lshl_b32 s36, s79, 2")
    A("s_add_u32 s35, s35, s36")
    A("s_add_u32 s35, s35, 0x%x" % HFLAG_OFF)
    A("v_mov_b32 v14, s3")
    A("v_mov_b32 v15, 0")
    A("s_waitcnt lgkmcnt(0)")
    A("v_readfirstlane_b32 s42, v13")
    Lnp = A.label("nopub")
    A("s_cmp_lg_u32 s42, 3")
    A("s_cbranch_scc1 %s" % Lnp)
    A("buffer_store_dword v14, v15, s[20:23], s35 offen" + WT)
    A("%s:" % Lnp)
    A("s_mov_b64 exec, -1")
    srd(A, 16, 74, W2_BYTES)
    srd(A, 64, 76, WO_BYTES)
    srd(A, 68, 10, X_BYTES)
    A("s_waitcnt vmcnt(0)")
    lds_inc(24)
    stamp(A, kidx, 4, vt=VT)

    def region(dst, a, b):
        A("s_mul_i32 s%d, %s, 15360" % (dst, a))
        A("s_add_u32 s%d, s%d, %d" % (dst, dst, RING))
        A("s_lshl_b32 s49, %s, 14" % a)
        A("s_cmp_eq_u32 %s, 0" % b)
        A("s_cselect_b32 s%d, s49, s%d" % (dst, dst))
    region(30, "s47", "s46")
    A("s_xor_b32 s50, s47, 1")
    A("s_xor_b32 s51, s46, 1")
    region(52, "s50", "s46")
    region(53, "s47", "s51")
    region(54, "s50", "s51")
    gemm_addr(A, 1024, "d", "s30", "s46")
    A("s_mul_i32 s33, s29, %d" % (22 * 16 * 1024))
    A("s_lshl_b32 s34, s28, 7")
    A("s_add_u32 s33, s33, s34")
    A("s_mul_i32 s31, s27, %d" % (2 * HF_MB))
    A("s_add_u32 s31, s31, 0x%x" % HF_OFF)
    A("s_mul_i32 s32, s29, %d" % (22 * 1024))
    A("s_add_u32 s31, s31, s32")
    A("s_mul_i32 s38, s47, %d" % HF_MB)
    A("s_add_u32 s31, s31, s38")
    A("s_lshl_b32 s38, s38, 1")
    A("s_sub_u32 s32, %d, s38" % HF_MB)
    Lnpoll = A.label("nopoll")
    A("s_cmp_lg_u32 s29, 0")
    A("s_cbranch_scc1 %s" % Lnpoll)
    A("v_and_b32 v13, 7, v1")
    A("v_lshlrev_b32 v13, 2, v13")
    A("s_lshl_b32 s35, s27, 7")
    A("s_add_u32 s35, s35, 0x%x" % HFLAG_OFF)
    poll_flags(A, lambda: A("buffer_load_dword v16, v13, s[20:23], s35 offen" + WT), 1, 16, "s3", 42)
    A("ds_write_b32 v10, v12 offset:12")
    Lne = A.label("noepoch")
    A("s_cmp_lg_u32 s2, 0")
    A("s_cbranch_scc1 %s" % Lne)
    A("s_mov_b32 s36, 0x%x" % EPOCH_OFF)
    A("v_mov_b32 v14, s3")
    A("v_mov_b32 v15, 0")
    A("s_mov_b64 exec, 1")
    A("buffer_store_dword v14, v15, s[20:23], s36 offen" + WT)
    A("s_mov_b64 exec, -1")
    A("%s:" % Lne)
    A("%s:" % Lnpoll)
    G2 = Gemm(A, 22, 7, 8, "d", 1024, 20, 16, 31, 32, 33, "s30", 34, aflag=WT)
    A.vm = []
    lds_wait(A, 10, 12, 1, 13, 42, sleep=2)
    G2.pre(w=False)
    lds_wait(A, 10, 4, 8, 13, 42, sleep=4)
    stamp(A, kidx, 5, vt=VT)
    G2.pre(a=False)
    A("s_setprio %d" % AUXPRIO)
    G2.loop()
    A("s_setprio 3")
    stamp(A, kidx, 6, vt=VT)
    A("v_add_u32 v6, s30, v2")
    A("v_add_u32 v7, s52, v2")
    A("v_add_u32 v8, s53, v2")
    A("v_add_u32 v9, s54, v2")
    A("s_nop 7")
    for j in (1, 2, 3):
        for g in range(4):
            A("ds_write_b128 v6, %s offset:%d" % (vr(ACC + j * 16 + 4 * g, 4), (j - 1) * 4096 + g * 1024))
    A("s_waitcnt lgkmcnt(0)")
    lds_inc(16)
    lds_wait(A, 10, 16, 4, 13, 42)
    for j in (1, 2, 3):
        for g in range(4):
            A("ds_read_b128 %s, v%d offset:%d" % (vr(ACC + j * 16 + 4 * g, 4), 6 + j, (j - 1) * 4096 + g * 1024))
    A("s_lshl_b32 s48, s29, 14")
    A("s_add_u32 s48, s48, 32768")
    A("s_sub_u32 s49, s48, s30")
    A("v_add_u32 v4, s49, v4")
    A("v_add_u32 v5, s49, v5")
    A("s_lshl_b32 s33, s29, 17")
    A("s_lshl_b32 s34, s28, 7")
    A("s_add_u32 s33, s33, s34")
    A("s_lshl_b32 s31, s27, 16")
    A("s_lshl_b32 s32, s29, 13")
    A("s_add_u32 s31, s31, s32")
    A("s_add_u32 s31, s31, 0x%x" % OF_OFF)
    A("s_lshl_b32 s38, s47, 15")
    A("s_add_u32 s31, s31, s38")
    A("s_lshl_b32 s32, s38, 1")
    A("s_sub_u32 s32, 32768, s32")
    A("v_and_b32 v6, 31, v1")
    A("v_lshrrev_b32 v7, 5, v1")
    A("v_lshlrev_b32 v11, 10, v6")
    A("v_lshl_add_u32 v11, v7, 4, v11")
    A("s_lshl_b32 s45, s27, 16")
    A("s_add_u32 s45, s45, s38")
    A("s_add_u32 s45, s45, s34")
    A("s_lshl_b32 s44, s46, 6")
    A("s_add_u32 s45, s45, s44")
    A("buffer_load_dwordx4 v[24:27], v11, s[60:63], s45 offen")
    A("buffer_load_dwordx4 v[28:31], v11, s[60:63], s45 offen offset:32")
    A("s_waitcnt lgkmcnt(0)")
    for r in range(16):
        A("v_add_f32 v%d, v%d, v%d" % (ACC + r, ACC + r, ACC + 16 + r))
        A("v_add_f32 v%d, v%d, v%d" % (ACC + 32 + r, ACC + 32 + r, ACC + 48 + r))
    for r in range(16):
        A("v_add_f32 v%d, v%d, v%d" % (ACC + r, ACC + r, ACC + 32 + r))
    A("s_mov_b32 s41, 0xffff0000")
    regs = list(range(ACC, ACC + 16))
    round_bf16(A, regs, 16, "s41")
    for r in regs:
        A("v_mul_f32 v%d, 0x%x, v%d" % (r + 16, f32bits(-LOG2E), r))
    for r in regs:
        A("v_exp_f32 v%d, v%d" % (r + 16, r + 16))
    for r in regs:
        A("v_add_f32 v%d, 1.0, v%d" % (r + 16, r + 16))
    for r in regs:
        A("v_rcp_f32 v%d, v%d" % (r + 16, r + 16))
    for r in regs:
        A("v_mul_f32 v%d, v%d, v%d" % (r, r, r + 16))
    for k in range(8):
        A(C(160 + k, ACC + 2 * k))
    A("v_add_u32 v6, s48, v2")
    for j in (1, 2, 3):
        A("s_xor_b32 s49, s29, %d" % j)
        A("s_lshl_b32 s49, s49, 14")
        A("v_add_u32 v%d, s49, v2" % (6 + j))
    A("s_waitcnt vmcnt(0)")
    for k in (0, 1, 4, 5):
        A("v_permlane32_swap_b32 v%d, v%d" % (24 + k, 26 + k))
    lds_wait(A, 10, 36, 8, 13, 42, sleep=8)
    G3 = Gemm(A, 8, 8, 8, "d", 1024, 20, 64, 31, 32, 33, "s48", 34)
    A.vm = []
    G3.pre(a=False)
    A("s_add_u32 s36, s31, 4096")
    A("s_add_u32 s35, s31, s32")
    A("s_add_u32 s37, s36, s32")
    A("s_waitcnt vmcnt(0)")
    stamp(A, kidx, 7, vt=VT)
    pad_end(A, "kg")
    lds_wait(A, 10, 40, OGATE, 13, 42, sleep=2)
    stamp(A, kidx, 8, vt=VT)
    if asmlib.STAMP:
        A("s_waitcnt vmcnt(0)")
    Li = A.label("oiss")
    Lc = A.label("ochk")
    A("s_mov_b32 s50, 0")
    A("s_mov_b32 s51, 0")
    for st_ in range(8):
        A("%s_%d:" % (Li, st_))
        for a in range(2):
            A("buffer_load_dwordx4 %s, v2, s[20:23], s%d offen offset:%d%s" % (vr(AF + (st_ * 2 + a) * 4, 4), ((31, 35), (36, 37))[st_ >> 2][a], (st_ & 3) * 1024, WT))
    for st_ in range(1, 8):
        A("s_cmp_eq_u32 s50, %d" % st_)
        A("s_cbranch_scc1 %s_%d" % (Lc, st_))
    for st_ in range(8):
        for b in range(2):
            for j in range(2):
                A("ds_read_b64_tr_b16 %s, v%d offset:%d" % (vr(16 + 4 * b + 2 * j, 2), 4 + b, st_ * 2048 + j * 1024))
        A("%s_%d:" % (Lc, st_))
        A("s_waitcnt vmcnt(%d)" % (2 * (7 - st_)))
        f = AF + st_ * 8
        A("v_max3_u32 v13, v%d, v%d, v%d" % (f, f + 1, f + 2))
        A("v_max3_u32 v14, v%d, v%d, v%d" % (f + 3, f + 4, f + 5))
        A("v_max3_u32 v13, v13, v%d, v%d" % (f + 6, f + 7))
        A("v_max_u32 v13, v13, v14")
        A("v_cmp_eq_u32 vcc, -1, v13")
        Lg = A.label("ogo")
        A("s_add_u32 s51, s51, 1")
        A("s_mov_b32 s50, %d" % st_)
        A("s_nop 2")
        A("s_cbranch_vccz %s" % Lg)
        A("s_cmp_lt_u32 s51, 0x20000")
        A("s_cbranch_scc1 %s_%d" % (Li, st_))
        A("%s:" % Lg)
        A("s_waitcnt lgkmcnt(0)")
        for q in (1, 2, 3, 0):
            d = ACC + q * 16
            A(mfma(d, 16 + 4 * (q >> 1), f + 4 * (q & 1), "0" if st_ == 0 else d))
    stamp(A, kidx, 9, vt=VT)
    for k in range(5):
        A("v_lshlrev_b32 v%d, 16, v%d" % (32 + 2 * k, 160 + k))
        A("v_and_b32 v%d, s41, v%d" % (33 + 2 * k, 160 + k))
    for j in (1, 2, 3):
        for g in range(4):
            A("ds_write_b128 v6, %s offset:%d" % (vr(ACC + j * 16 + 4 * g, 4), j * 4096 + g * 1024))
    for k in range(5, 8):
        A("v_lshlrev_b32 v%d, 16, v%d" % (32 + 2 * k, 160 + k))
        A("v_and_b32 v%d, s41, v%d" % (33 + 2 * k, 160 + k))
    for k in range(8):
        A("v_lshlrev_b32 v%d, 16, v%d" % (48 + 2 * k, 24 + k))
        A("v_and_b32 v%d, s41, v%d" % (49 + 2 * k, 24 + k))
    A("s_waitcnt lgkmcnt(0)")
    A("s_barrier")
    for j in (1, 2, 3):
        for g in range(4):
            A("ds_read_b128 %s, v%d offset:%d" % (vr(ACC + j * 16 + 4 * g, 4), 6 + j, 32768 + j * 4096 + g * 1024))
    for j in (1, 2, 3):
        A("s_waitcnt lgkmcnt(%d)" % (12 - 4 * j))
        for r in range(0, 16, 2):
            A("v_pk_add_f32 %s, %s, %s" % (vr(ACC + r, 2), vr(ACC + r, 2), vr(ACC + 16 * j + r, 2)))
    for r in range(0, 16, 2):
        A("v_pk_fma_f32 %s, %s, %s, %s" % (vr(ACC + r, 2), vr(ACC + r, 2), vr(32 + r, 2), vr(48 + r, 2)))
    for k in range(8):
        A(C(16 + k, ACC + 2 * k))
    A("s_nop 1")
    for k in (0, 1, 4, 5):
        A("v_permlane32_swap_b32 v%d, v%d" % (16 + k, 18 + k))
    pad_end(A, "ks")
    A("buffer_store_dwordx4 v[16:19], v11, s[68:71], s45 offen" + OUTST)
    A("buffer_store_dwordx4 v[20:23], v11, s[68:71], s45 offen offset:32" + OUTST)
    if asmlib.STAMP:
        A("s_waitcnt vmcnt(0)")
    stamp(A, kidx, 10, vt=VT)
    pad_end(A, "ke")
    A("s_endpgm")
    A("L_gev:")
    A("s_cmp_eq_u32 s41, 17")
    A("s_cbranch_scc1 L_gev_nobar")
    A("s_mov_b32 s41, 17")
    if asmlib.STAMP:
        A("s_memrealtime s[32:33]")
        A("s_memtime s[34:35]")
    A("s_waitcnt vmcnt(0)")
    if asmlib.STAMP:
        A("s_memrealtime s[4:5]")
        A("s_memtime s[6:7]")
        A("s_waitcnt lgkmcnt(0)")
    A("s_branch L_gev_bar")
    return 168
```

```python
import sys, os
import asmlib
from asmlib import *
if "--stamp" in sys.argv:
    asmlib.STAMP = True
    sys.argv.remove("--stamp")
import mega
NAME = "recurrent_scan__softmax_full_mha__dense_activation_relu__prompt"
hdr = open("cdna_kernels/%s.s.ref" % NAME).read().split("; Override launch")[0]
A = Asm()
v = mega.gen_mega(A, NAME + "_kernel")
out = hdr
if os.environ.get("ASLIST"):
    out += "; @launch kernel=%s_kernel grid=(256,1,1) block=(768,1,1) lds=163840\n" % NAME
else:
    out += "; @launch grid=(256,1,1) block=(768,1,1) lds=163840\n"
out += '.amdgcn_target "amdgcn-amd-amdhsa--gfx950"\n.text\n' + A.text() + 'L_code_end:\n'
out += '.section .rodata,"a"\n' + descriptor(NAME + "_kernel", v)
dst = sys.argv[1] if len(sys.argv) > 1 else "cdna_kernels/%s.s" % NAME
open(dst, "w").write(out)
print("wrote", dst, len(out))
```
